```python
import torch

def _softmax(x, axis=-1):
    return torch.softmax(x, dim=axis)
def _gelu(x):
    return torch.nn.functional.gelu(x, approximate="tanh")
def _silu(x):
    return torch.nn.functional.silu(x)
def _sigmoid(x):
    return torch.sigmoid(x)
def _layernorm(x, axis=-1, eps=1e-5):
    m = x.mean(dim=axis, keepdim=True)
    v = x.var(dim=axis, keepdim=True, unbiased=False)
    return (x - m) / torch.sqrt(v + eps)
def _scatter_add(tgt, idx, src, axis=0):
    return tgt.clone().index_add_(axis, idx, src)
def _segment_sum(src, seg, n):
    out = torch.zeros((n,) + src.shape[1:], dtype=src.dtype)
    return out.index_add_(0, seg, src)
def _pad(x, pw):
    flat = tuple(v for pair in reversed(pw) for v in pair)
    return torch.nn.functional.pad(x, flat)

kernel_name = 'gated_mix__compressed_kv_cla__geglu_ffn__decode'

def setup_inputs():

    _w = (lambda a: (lambda t: t.to(torch.bfloat16) if t.is_floating_point() else t)(torch.as_tensor(a)))
    def _A_setup():
        B, H, Sq, Sk, D, M = 1, 32, 1, 16384, 128, 640
        Dc = 4 * D
        return {
            "x": _w((lambda *s: torch.randn(*s, dtype=torch.bfloat16) * 0.05)(B, Sq, M)),
            "c_kv": _w((lambda *s: torch.randn(*s, dtype=torch.bfloat16) * 0.8)(B, Sk, Dc)),
            "w_q": _w((lambda *s: torch.randn(*s, dtype=torch.bfloat16) * 6.4)(M, H, D) * (M ** -0.5)),
            "w_uk": _w((lambda *s: torch.randn(*s, dtype=torch.bfloat16) * 6.4)(Dc, H, D) * (Dc ** -0.5)),
            "w_uv": _w((lambda *s: torch.randn(*s, dtype=torch.bfloat16) * 0.8)(Dc, H, D) * (Dc ** -0.5)),
            "w_o": _w((lambda *s: torch.randn(*s, dtype=torch.bfloat16) * 0.8)(H, D, M) * ((H * D) ** -0.5)),
        }
    _A_in = _A_setup()

    def _B_setup():
        B, S, D, F = 1, 1, 640, 1728
        return {
            "x": _w((lambda *s: torch.randn(*s, dtype=torch.bfloat16) * 0.05)(B, S, D)),
            "w_gate": _w((lambda *s: torch.randn(*s, dtype=torch.bfloat16) * 0.1)(D, F)),
            "w_up": _w((lambda *s: torch.randn(*s, dtype=torch.bfloat16) * 0.1)(D, F)),
            "w_down": _w((lambda *s: torch.randn(*s, dtype=torch.bfloat16) * 0.1)(F, D)),
        }
    _B_in = _B_setup()

    return {
        "A_x": _A_in["x"],
        "A_c_kv": _A_in["c_kv"],
        "A_w_q": _A_in["w_q"],
        "A_w_uk": _A_in["w_uk"],
        "A_w_uv": _A_in["w_uv"],
        "A_w_o": _A_in["w_o"],
        "B_x": _B_in["x"],
        "B_w_gate": _B_in["w_gate"],
        "B_w_up": _B_in["w_up"],
        "B_w_down": _B_in["w_down"],
        "gate_w": _w((lambda *s: torch.randn(*s, dtype=torch.bfloat16) * 0.1)(640) * 16.0),
    }

def reference(A_x, A_c_kv, A_w_q, A_w_uk, A_w_uv, A_w_o, B_x, B_w_gate, B_w_up, B_w_down, gate_w):
    def _A_ref(x, c_kv, w_q, w_uk, w_uv, w_o):
        B, Sq, M = x.shape[0], x.shape[1], x.shape[2]
        Sk = c_kv.shape[1]
        H, D = w_q.shape[1], w_q.shape[2]
        q = torch.einsum("bqm,mhd->bhqd", x, w_q)
        k = torch.einsum("bkc,chd->bhkd", c_kv, w_uk)
        v = torch.einsum("bkc,chd->bhkd", c_kv, w_uv)
        scores = torch.einsum("bhqd,bhkd->bhqk", q, k) * (D ** -0.5)
        off = Sk - Sq
        qi = torch.arange(Sq)[:, None]
        kj = torch.arange(Sk)[None, :]
        cmask = kj <= (qi + off)
        scores = torch.where(cmask[None, None], scores, -1e9)
        p = _softmax(scores, axis=-1)
        ctx = torch.einsum("bhqk,bhkd->bhqd", p, v)
        return torch.einsum("bhqd,hdm->bqm", ctx, w_o)

    def _B_ref(x, w_gate, w_up, w_down):
        return (_gelu(x @ w_gate) * (x @ w_up)) @ w_down

    x = A_x
    g = _sigmoid((x * gate_w).sum(-1, keepdims=True))
    a = _A_ref(x, A_c_kv, A_w_q, A_w_uk, A_w_uv, A_w_o)
    b = _B_ref(x, B_w_gate, B_w_up, B_w_down)
    return g * a + (1 - g) * b
```

```python
class Asm:
    def __init__(self):
        self.l = []
        self.nlab = 0
    def __call__(self, s):
        for x in s.split("\n"):
            x = x.strip()
            if x: self.l.append(x if x.endswith(":") else "  " + x)
    def label(self, base="L"):
        self.nlab += 1
        return f"{base}_{self.nlab}"
    def text(self): return "\n".join(self.l) + "\n"

def vr(a, n=1): return f"v{a}" if n == 1 else f"v[{a}:{a+n-1}]"
def sr(a, n=1): return f"s{a}" if n == 1 else f"s[{a}:{a+n-1}]"
def f2u(x):
    import struct
    return struct.unpack("<I", struct.pack("<f", x))[0]

def kdesc(name, nv, ns=102, acc=None):
    acc = acc or (nv + 3) // 4 * 4
    return f""".amdhsa_kernel {name}
  .amdhsa_next_free_vgpr {nv}
  .amdhsa_next_free_sgpr {ns}
  .amdhsa_accum_offset {acc}
  .amdhsa_group_segment_fixed_size 0
  .amdhsa_kernarg_size 112
  .amdhsa_user_sgpr_count 2
  .amdhsa_user_sgpr_kernarg_segment_ptr 1
  .amdhsa_system_sgpr_workgroup_id_x 1
.end_amdhsa_kernel
"""
```

```python
from asmlib import *
import math
WS_QP = 0x1000
WS_GP = 0x21000
WS_QA = 0x40000
WS_ST = 0x50000
WS_FA = 0x90000
WS_FB = 0xE0000
WS_OP = 0x200000
WS_SIZE = 0x600000
SZ = dict(x=1280, ckv=16384*1024, wq=640*8192, wuk=512*8192, wuv=512*8192, wo=32*128*1280, wg=640*3456, wu=640*3456, wd=1728*1280, gw=1280, out=1280)
P = dict(x=40, ckv=42, wq=44, wuk=46, wuv=48, wo=50, wg=54, wu=56, wd=58, gw=60, out=62, dbg=64, ws=66)
S_WAVE = 3
S_WS = 16
S_TAG = 24
QSCALE = (128 ** -0.5) * math.log2(math.e)

def prologue(A):
    A("s_load_dwordx16 s[40:55], s[0:1], 0")
    A("s_load_dwordx8 s[56:63], s[0:1], 64")
    A("s_load_dwordx4 s[64:67], s[0:1], 96")
    A("v_lshrrev_b32 v1, 6, v0")
    A("v_and_b32 v0, 63, v0")
    A("s_nop 0")
    A(f"v_readfirstlane_b32 s{S_WAVE}, v1")
    A("s_waitcnt lgkmcnt(0)")
    srd(A, S_WS, "ws", WS_SIZE)

def srd(A, d, name, size=None):
    A(f"s_mov_b32 s{d}, s{P[name]}")
    A(f"s_mov_b32 s{d+1}, s{P[name]+1}")
    A(f"s_mov_b32 s{d+2}, {size if size is not None else SZ[name]}")
    A(f"s_mov_b32 s{d+3}, 0x20000")

def selectors(A, vsel, ve, tmp):
    A(f"v_and_b32 v{tmp+2}, 1, v{ve}")
    A(f"v_cmp_eq_u32 vcc, 1, v{tmp+2}")
    A(f"v_mov_b32 v{tmp}, 0x0c0c0100")
    A(f"v_mov_b32 v{tmp+2}, 0x01000c0c")
    A(f"v_cndmask_b32 v{tmp}, v{tmp}, v{tmp+2}, vcc")
    A(f"v_mov_b32 v{tmp+1}, 0x0c0c0302")
    A(f"v_mov_b32 v{tmp+2}, 0x03020c0c")
    A(f"v_cndmask_b32 v{tmp+1}, v{tmp+1}, v{tmp+2}, vcc")
    A(f"v_lshrrev_b32 v{tmp+2}, 1, v{ve}")
    for k in range(4):
        A(f"v_cmp_eq_u32 vcc, {k}, v{tmp+2}")
        A(f"v_mov_b32 v{vsel+k}, 0x0c0c0c0c")
        A(f"v_mov_b32 v{vsel+4+k}, 0x0c0c0c0c")
        A(f"v_cndmask_b32 v{vsel+k}, v{vsel+k}, v{tmp}, vcc")
        A(f"v_cndmask_b32 v{vsel+4+k}, v{vsel+4+k}, v{tmp+1}, vcc")

def xw_issue(A, NT):
    A("v_lshrrev_b32 v2, 3, v0")
    A("v_and_b32 v3, 7, v0")
    A("s_mul_i32 s12, s8, 20")
    A("v_mul_lo_u32 v4, v2, s12")
    A("v_lshl_add_u32 v4, v3, 4, v4")
    A("v_mul_u32_u24 v5, 40, v2")
    A("buffer_load_dwordx4 v[8:11], v5, s[20:23], s10 offen")
    A("buffer_load_dwordx4 v[12:15], v5, s[20:23], s10 offen offset:16")
    A("buffer_load_dwordx2 v[16:17], v5, s[20:23], s10 offen offset:32")
    for t in range(20):
        A(f"buffer_load_dwordx4 v[{120+4*t}:{123+4*t}], v4, s[4:7], s9 offen {NT}")
        if t < 19: A("s_add_u32 s9, s9, s8")
def xw_compute(A, ST):
    selectors(A, 20, 3, 28)
    A("v_lshrrev_b32 v28, 4, v0")
    A("v_and_b32 v29, 1, v28")
    A("v_lshrrev_b32 v28, 1, v28")
    A("v_lshl_add_u32 v28, v29, 1, v28")
    A("v_lshl_add_u32 v28, v3, 2, v28")
    A("v_lshlrev_b32 v6, 4, v28")
    A("s_waitcnt vmcnt(20)")
    for t in range(20):
        for k in range(4):
            A(f"v_perm_b32 v{40+4*t+k}, v{8+t//2}, v{8+t//2}, v{20+4*(t&1)+k}")
    A("s_nop 1")
    for t in range(20):
        A(f"s_waitcnt vmcnt({19-t})")
        A(f"v_mfma_f32_16x16x32_bf16 v[32:35], v[{40+4*t}:{43+4*t}], v[{120+4*t}:{123+4*t}], {'0' if t==0 else 'v[32:35]'}")
    A(f"v_mov_b32 v37, s{S_TAG}")
    A(f"v_mov_b32 v39, s{S_TAG}")
    A("s_nop 6")
    A("v_permlane32_swap_b32 v32, v34")
    A("v_permlane32_swap_b32 v33, v35")
    A("s_nop 1")
    A("v_add_f32_dpp v36, v34, v32 row_ror:8 row_mask:0xf bank_mask:0xf")
    A("v_add_f32_dpp v38, v35, v33 row_ror:8 row_mask:0xf bank_mask:0xf")
    A("s_mov_b32 exec_lo, 0x00ff00ff")
    A("s_mov_b32 exec_hi, 0x00ff00ff")
    A(f"buffer_store_dwordx4 v[36:39], v6, s[{S_WS}:{S_WS+3}], s11 offen {ST}")
    A("s_mov_b64 exec, -1")

def xw_setup_q(A):
    srd(A, 4, "wq"); srd(A, 20, "x")
    A("s_mov_b32 s8, 8192")
    A("s_and_b32 s12, s2, 3")
    A("s_lshr_b32 s13, s2, 2")
    A(f"s_mul_i32 s9, s12, {160*8192}")
    A("s_lshl_b32 s14, s13, 7")
    A("s_add_u32 s9, s9, s14")
    A("s_mul_i32 s10, s12, 320")
    A("s_lshr_b32 s14, s13, 1")
    A("s_lshl_b32 s14, s14, 12")
    A("s_and_b32 s13, s13, 1")
    A("s_lshl_b32 s13, s13, 9")
    A("s_lshl_b32 s12, s12, 10")
    A("s_add_u32 s11, s14, s13")
    A("s_add_u32 s11, s11, s12")
    A(f"s_add_u32 s11, s11, {WS_QP}")
def xw_setup_ffn(A, sa, mat):
    srd(A, 4, "wg" if mat == 0 else "wu"); srd(A, 20, "x")
    A("s_mov_b32 s8, 3456")
    A(f"s_and_b32 s12, s{sa}, 3")
    A(f"s_lshr_b32 s13, s{sa}, 2")
    A(f"s_mul_i32 s9, s12, {160*3456}")
    A("s_lshl_b32 s14, s13, 7")
    A("s_add_u32 s9, s9, s14")
    A("s_mul_i32 s10, s12, 320")
    A("s_lshl_b32 s13, s13, 12")
    A("s_lshl_b32 s12, s12, 9")
    A("s_add_u32 s11, s13, s12")
    A(f"s_add_u32 s11, s11, {WS_GP + mat*2048}")

def qa_issue(A, NT):
    srd(A, 4, "wuk")
    A("v_lshrrev_b32 v2, 4, v0")
    A("v_and_b32 v3, 15, v0")
    A("v_lshlrev_b32 v4, 13, v2")
    A("v_lshl_add_u32 v4, v3, 4, v4")
    A("s_lshl_b32 s8, s31, 3")
    A(f"s_add_u32 s8, s8, s{S_WAVE}")
    A("s_lshl_b32 s8, s8, 17")
    A("s_lshl_b32 s9, s30, 8")
    A("s_add_u32 s8, s8, s9")
    for t in range(4):
        A(f"buffer_load_dwordx4 v[{8+4*t}:{11+4*t}], v4, s[4:7], s8 offen {NT}")
        if t < 3: A("s_add_u32 s8, s8, 32768")
def qa_compute(A, LD, ST, check):
    skip = A.label("QA_NOG")
    A(f"s_cmp_lg_u32 s{S_WAVE}, 0")
    A(f"s_cbranch_scc1 {skip}")
    A("v_lshlrev_b32 v5, 4, v0")
    A("s_lshl_b32 s9, s30, 12")
    A(f"s_add_u32 s9, s9, {WS_QP}")
    for e in range(4):
        A(f"buffer_load_dwordx4 v[{24+4*e}:{27+4*e}], v5, s[{S_WS}:{S_WS+3}], s9 offen offset:{e*1024} {LD}")
    A("s_waitcnt vmcnt(0)")
    A("v_add_f32 v24, v24, v28")
    A("v_add_f32 v26, v26, v30")
    A("v_add_f32 v32, v32, v36")
    A("v_add_f32 v34, v34, v38")
    A("v_add_f32 v24, v24, v32")
    A("v_add_f32 v26, v26, v34")
    A("v_cvt_pk_bf16_f32 v24, v24, v26")
    A("v_lshlrev_b32 v5, 2, v0")
    A("ds_write_b32 v5, v24")
    A("s_waitcnt lgkmcnt(0)")
    A(f"{skip}:")
    A("s_barrier")
    A("v_lshlrev_b32 v5, 4, v3")
    A("ds_read_b128 v[24:27], v5")
    for t in range(4): A(f"v_mov_b32 v{28+t}, 0")
    A("v_lshrrev_b32 v6, 3, v3")
    A("v_bfe_u32 v7, v3, 2, 1")
    A("v_lshl_add_u32 v6, v7, 1, v6")
    A("v_lshl_add_u32 v6, v6, 2, v2")
    A(f"s_lshl_b32 s9, s{S_WAVE}, 4")
    A("v_add_u32 v6, s9, v6")
    A("v_lshlrev_b32 v6, 1, v6")
    A("s_waitcnt vmcnt(0) lgkmcnt(0)")
    for k in range(4):
        for t in range(4):
            A(f"v_dot2c_f32_bf16 v{28+t}, v{8+4*t+k}, v{24+k}")
    A("s_nop 2")
    A("v_add_f32_dpp v28, v28, v28 row_ror:8 row_mask:0xf bank_mask:0x3")
    A("v_add_f32_dpp v30, v30, v30 row_ror:8 row_mask:0xf bank_mask:0x3")
    A("v_add_f32_dpp v28, v29, v29 row_ror:8 row_mask:0xf bank_mask:0xc")
    A("v_add_f32_dpp v30, v31, v31 row_ror:8 row_mask:0xf bank_mask:0xc")
    A("s_nop 1")
    A("v_add_f32_dpp v28, v28, v28 row_half_mirror row_mask:0xf bank_mask:0x5")
    A("v_add_f32_dpp v28, v30, v30 row_half_mirror row_mask:0xf bank_mask:0xa")
    A("s_nop 1")
    A("v_add_f32_dpp v28, v28, v28 quad_perm:[1,0,3,2] row_mask:0xf bank_mask:0xf")
    A("s_nop 1")
    A("v_add_f32_dpp v28, v28, v28 quad_perm:[2,3,0,1] row_mask:0xf bank_mask:0xf")
    A(f"v_mul_f32 v28, {hex(f2u(QSCALE))}, v28")
    A("v_cvt_pk_bf16_f32 v28, v28, v28")
    A("ds_write_b16 v6, v28 offset:256")
    A("s_waitcnt lgkmcnt(0)")
    A("s_barrier")
    skip = A.label("QA_NOP")
    A(f"s_cmp_lg_u32 s{S_WAVE}, 0")
    A(f"s_cbranch_scc1 {skip}")
    A("v_lshrrev_b32 v5, 3, v0")
    A("v_and_b32 v6, 7, v0")
    A("v_lshlrev_b32 v7, 5, v6")
    A("v_cmp_eq_u32 vcc, 2, v5")
    A("v_lshlrev_b32 v24, 4, v5")
    A("s_nop 0")
    A("v_cndmask_b32 v24, v24, 12, vcc")
    A("v_add_u32 v24, v24, v7")
    A("v_cndmask_b32 v25, 4, 16, vcc")
    A("v_add_u32 v25, v25, v24")
    A("ds_read_b32 v28, v24 offset:256")
    A("ds_read_b32 v29, v25 offset:256")
    A("ds_read_b32 v30, v24 offset:264")
    A(f"v_mov_b32 v31, s{S_TAG}")
    A("v_lshlrev_b32 v5, 14, v5")
    A("v_lshl_add_u32 v5, v6, 4, v5")
    A("s_lshl_b32 s9, s30, 9")
    A("s_lshl_b32 s10, s31, 7")
    A("s_add_u32 s9, s9, s10")
    A(f"s_add_u32 s9, s9, {WS_QA}")
    A("s_mov_b32 exec_lo, 0x00ffffff")
    A("s_mov_b32 exec_hi, 0")
    A("s_waitcnt lgkmcnt(0)")
    A(f"buffer_store_dwordx4 v[28:31], v5, s[{S_WS}:{S_WS+3}], s9 offen {ST}")
    A("s_mov_b64 exec, -1")
    A(f"{skip}:")

QL = 131072
def swz(k): return ((k & 3) << 2) | ((k >> 2) & 3)
def att_issue(A, sa, NT, window=None):
    srd(A, 4, "ckv")
    A("v_lshlrev_b32 v2, 4, v0")
    A(f"s_lshl_b32 s8, s{sa}, 2")
    A(f"s_add_u32 s8, s8, s{S_WAVE}")
    A("s_lshl_b32 s8, s8, 15")
    A(f"s_lshl_b32 s9, s{S_WAVE}, 15")
    for r in range(32):
        A("s_mov_b32 m0, s9")
        A(f"v_xor_b32 v3, {swz(r) << 4}, v2")
        A(f"buffer_load_dwordx4 v3, s[4:7], s8 offen {NT} lds")
        if r < 31:
            A("s_add_u32 s8, s8, 1024")
            A("s_add_u32 s9, s9, 1024")
        if window and r >= window - 1 and r < 31: A(f"s_waitcnt vmcnt({window-1})")

def att_stage_qa(A, LD, check):
    A(f"s_sub_u32 s8, s{S_WAVE}, 4")
    A("v_lshlrev_b32 v2, 4, v0")
    A("s_lshl_b32 s9, s8, 12")
    A(f"s_add_u32 s9, s9, {WS_QA}")
    A("s_add_u32 s10, s9, 16384")
    A("s_add_u32 s11, s9, 32768")
    A("v_and_b32 v3, 31, v0")
    A("v_lshrrev_b32 v4, 5, v0")
    A("v_and_b32 v5, 7, v0")
    A("v_xor_b32 v4, v4, v5")
    A("v_lshlrev_b32 v4, 4, v4")
    A("v_lshl_add_u32 v4, v3, 10, v4")
    A("s_lshl_b32 s8, s8, 7")
    A(f"s_add_u32 s8, s8, {QL}")
    A("v_add_u32 v4, s8, v4")
    for q in range(1, 4): A(f"v_xor_b32 v{4+q}, {q << 5}, v4")
    for q in range(4):
        for ty in range(3):
            r = 200 + 12*q + 4*ty
            A(f"buffer_load_dwordx4 v[{r}:{r+3}], v2, s[{S_WS}:{S_WS+3}], s{9+ty} offen offset:{q*1024} {LD}")
    for q in range(4):
        for ty in range(3):
            r = 200 + 12*q + 4*ty
            A(f"s_waitcnt vmcnt({11 - 3*q - ty})")
            if ty < 2: A(f"ds_write_b96 v{4+q}, v[{r}:{r+2}] offset:{ty*512}")
            else: A(f"ds_write2_b32 v{4+q}, v{r}, v{r+1} offset0:3 offset1:131")
    A("s_waitcnt lgkmcnt(0)")

def att_compute(A, sa, ST):
    A("v_and_b32 v2, 31, v0")
    A("v_lshrrev_b32 v3, 5, v0")
    A("v_and_b32 v4, 3, v2")
    A("v_bfe_u32 v5, v2, 2, 2")
    A("v_lshl_add_u32 v4, v4, 2, v5")
    A("v_xor_b32 v4, v4, v3")
    A("v_lshlrev_b32 v4, 4, v4")
    A("v_lshl_add_u32 v4, v2, 10, v4")
    A(f"s_lshl_b32 s8, s{S_WAVE}, 15")
    A("v_add_u32 v8, s8, v4")
    for tt in range(1, 8): A(f"v_xor_b32 v{8+tt}, {tt << 5}, v8")
    for tt in range(8):
        A(f"v_xor_b32 v{16+tt}, {tt}, v0")
        A(f"v_lshlrev_b32 v{16+tt}, 4, v{16+tt}")
        A(f"v_add_u32 v{16+tt}, {QL + tt*1024}, v{16+tt}")
    A("v_bfe_u32 v4, v0, 2, 2")
    A("v_bfe_u32 v5, v0, 4, 1")
    A("v_bfe_u32 v6, v0, 1, 1")
    A("v_lshl_add_u32 v5, v5, 1, v6")
    A("v_lshl_add_u32 v6, v4, 2, v3")
    A("v_xor_b32 v5, v5, v6")
    A("v_lshlrev_b32 v5, 4, v5")
    A("v_lshl_add_u32 v6, v3, 2, v4")
    A("v_lshl_add_u32 v5, v6, 10, v5")
    A("v_and_b32 v6, 1, v0")
    A("v_lshl_add_u32 v5, v6, 3, v5")
    A(f"s_lshl_b32 s8, s{S_WAVE}, 8")
    A("v_add_u32 v5, s8, v5")
    for T in range(4):
        for sec in range(2):
            A(f"v_xor_b32 v{24+4*T+sec}, {((4*T) ^ (2*sec)) << 4}, v5")
            A(f"v_add_u32 v{26+4*T+sec}, 0x10000, v{24+4*T+sec}")
    A("s_waitcnt vmcnt(0)")
    for t in range(32):
        if t >= 15: A("s_waitcnt lgkmcnt(14)")
        A(f"ds_read_b128 v[{128+4*t}:{131+4*t}], v{8+(t&7)} offset:{(t>>3)*256}")
    A("s_waitcnt lgkmcnt(0)")
    A("s_barrier")
    for t in range(8):
        A(f"ds_read_b128 v[{64+4*t}:{67+4*t}], v{16+t}")
    for t in range(32):
        A(f"s_waitcnt lgkmcnt({min(7, 31-t)})")
        b = 64 + 4*(t & 7)
        A(f"v_mfma_f32_32x32x16_bf16 v[40:55], v[{128+4*t}:{131+4*t}], v[{b}:{b+3}], {'0' if t==0 else 'v[40:55]'}")
        if t + 8 < 32:
            A(f"ds_read_b128 v[{b}:{b+3}], v{16+(t&7)} offset:{((t+8)>>3)*8192}")
    A(f"s_lshl_b32 s8, s{S_WAVE}, 2")
    A(f"s_add_u32 s9, s8, {QL+8192}")
    A("v_lshlrev_b32 v6, 4, v2")
    A("v_add_u32 v7, s9, v6")
    A(f"v_add_u32 v6, {QL+8192}, v6")
    A("s_barrier")
    A("s_nop 7")
    A("v_max3_f32 v56, v40, v41, v42")
    A("v_max3_f32 v57, v43, v44, v45")
    A("v_max3_f32 v58, v46, v47, v48")
    A("v_max3_f32 v59, v49, v50, v51")
    A("v_max3_f32 v56, v56, v52, v53")
    A("v_max3_f32 v57, v57, v54, v55")
    A("v_max3_f32 v56, v56, v57, v58")
    A("v_max_f32 v56, v56, v59")
    A("v_mov_b32 v57, v56")
    A("s_nop 1")
    A("v_permlane32_swap_b32 v56, v57")
    A("v_max_f32 v56, v56, v57")
    A("ds_write_b32 v7, v56")
    A("s_waitcnt lgkmcnt(0)")
    A("s_barrier")
    A("ds_read_b128 v[56:59], v6")
    A("s_waitcnt lgkmcnt(0)")
    A("v_max3_f32 v56, v56, v57, v58")
    A("v_max_f32 v56, v56, v59")
    A("v_ceil_f32 v60, v56")
    def tr(T):
        for s in range(8):
            for sec in range(2):
                d = 128 + 32*T + 4*s + 2*sec
                A(f"ds_read_b64_tr_b16 v[{d}:{d+1}], v{24+4*T+2*(s>>2)+sec} offset:{sec*8192 + (s&3)*16384}")
    tr(0); tr(1)
    for r in range(16): A(f"v_sub_f32 v{40+r}, v{40+r}, v60")
    for r in range(16): A(f"v_exp_f32 v{40+r}, v{40+r}")
    A("s_nop 0")
    for i in range(8): A(f"v_cvt_pk_bf16_f32 v{64+i}, v{40+2*i}, v{41+2*i}")
    A("v_lshlrev_b32 v7, 4, v0")
    A(f"v_add_u32 v7, {QL}, v7")
    A(f"s_lshl_b32 s8, s{S_WAVE}, 11")
    A("v_add_u32 v56, s8, v7")
    A("ds_write_b128 v56, v[64:67]")
    A("ds_write_b128 v56, v[68:71] offset:1024")
    for i in range(8): A(f"v_add_f32 v{40+i}, v{40+i}, v{48+i}")
    for i in range(4): A(f"v_add_f32 v{40+i}, v{40+i}, v{44+i}")
    A("v_add_f32 v40, v40, v42")
    A("v_add_f32 v41, v41, v43")
    A("v_add_f32 v40, v40, v41")
    A("v_lshlrev_b32 v6, 5, v2")
    A(f"v_add_u32 v6, {QL+9216}, v6")
    A("v_lshl_add_u32 v57, v3, 2, v6")
    A(f"s_lshl_b32 s8, s{S_WAVE}, 3")
    A("v_add_u32 v57, s8, v57")
    A("ds_write_b32 v57, v40")
    A("s_waitcnt lgkmcnt(0)")
    A("s_barrier")
    for s in range(8): A(f"ds_read_b128 v[{64+4*s}:{67+4*s}], v7 offset:{s*1024}")
    A("ds_read_b128 v[40:43], v6")
    A("ds_read_b128 v[44:47], v6 offset:16")
    A("s_waitcnt lgkmcnt(0)")
    tr(2); tr(3)
    OT = [96, 112, 128, 144]
    for T in range(4):
        if T == 2:
            A("s_waitcnt lgkmcnt(0)")
        for s in range(8):
            c = 128 + 32*T + 4*s
            A(f"v_mfma_f32_32x32x16_bf16 v[{OT[T]}:{OT[T]+15}], v[{64+4*s}:{67+4*s}], v[{c}:{c+3}], {'0' if s==0 else 'v[%d:%d]'%(OT[T],OT[T]+15)}")
    for i in range(4): A(f"v_add_f32 v{40+i}, v{40+i}, v{44+i}")
    A("v_add_f32 v40, v40, v42")
    A("v_add_f32 v41, v41, v43")
    A("v_add_f32 v61, v40, v41")
    A("v_bfe_u32 v4, v0, 4, 1")
    A("v_lshl_add_u32 v4, v3, 2, v4")
    A("v_lshlrev_b32 v4, 17, v4")
    A("v_and_b32 v5, 15, v0")
    A("v_lshl_add_u32 v4, v5, 4, v4")
    A(f"s_lshl_b32 s8, s{S_WAVE}, 15")
    A(f"s_lshl_b32 s9, s{sa}, 8")
    A("s_add_u32 s8, s8, s9")
    A(f"s_add_u32 s8, s8, {WS_OP}")
    A("s_nop 7")
    for q in range(8):
        d = 192 + 4*q
        r = 2*q
        A(f"v_cvt_pk_bf16_f32 v{d}, v{OT[0]+r}, v{OT[1]+r}")
        A(f"v_cvt_pk_bf16_f32 v{d+1}, v{OT[2]+r}, v{OT[3]+r}")
        A(f"v_cvt_pk_bf16_f32 v{d+2}, v{OT[0]+r+1}, v{OT[1]+r+1}")
        A(f"v_cvt_pk_bf16_f32 v{d+3}, v{OT[2]+r+1}, v{OT[3]+r+1}")
        A(f"s_add_u32 s9, s8, {(2*(q&1) + 8*(q>>1)) * 131072}")
        A("s_nop 0")
        A(f"v_permlane16_swap_b32 v{d}, v{d+2}")
        A(f"v_permlane16_swap_b32 v{d+1}, v{d+3}")
        A(f"buffer_store_dwordx4 v[{d}:{d+3}], v4, s[{S_WS}:{S_WS+3}], s9 offen {ST}")
    A("v_mov_b32 v62, 0")
    A(f"v_mov_b32 v63, s{S_TAG}")
    A("v_lshlrev_b32 v4, 13, v2")
    A(f"s_lshl_b32 s8, s{S_WAVE}, 11")
    A(f"s_lshl_b32 s9, s{sa}, 4")
    A("s_add_u32 s8, s8, s9")
    A(f"s_add_u32 s8, s8, {WS_ST}")
    A("s_mov_b32 exec_hi, 0")
    A("s_waitcnt vmcnt(0)")
    A(f"buffer_store_dwordx4 v[60:63], v4, s[{S_WS}:{S_WS+3}], s8 offen {ST}")
    A("s_mov_b64 exec, -1")

def pack24(A, v, d, t):
    A(f"v_perm_b32 v{d}, v{v+1}, v{v}, s70")
    A(f"v_perm_b32 v{d+1}, v{v+3}, v{v+2}, s70")
    A(f"v_perm_b32 v{t}, v{v+1}, v{v}, s71")
    A(f"v_perm_b32 v{d+2}, v{v+3}, v{v+2}, s72")
    A(f"v_or_b32 v{d+2}, v{d+2}, v{t}")
def pack24_consts(A):
    A("s_mov_b32 s70, 0x07060302\ns_mov_b32 s71, 0x0c0c0501\ns_mov_b32 s72, 0x05010c0c")

def tail_issue(A, NT):
    srd(A, 4, "wuv"); srd(A, 8, "wo")
    A("v_lshrrev_b32 v2, 4, v0")
    A("v_and_b32 v3, 15, v0")
    A("v_and_b32 v4, 1, v2")
    A("v_lshrrev_b32 v5, 1, v2")
    A("v_lshl_add_u32 v4, v4, 4, v5")
    A("v_lshlrev_b32 v4, 13, v4")
    A("v_lshl_add_u32 v4, v3, 4, v4")
    A("s_lshl_b32 s12, s31, 6")
    A(f"s_add_u32 s12, s12, s{S_WAVE}")
    A("s_lshl_b32 s12, s12, 14")
    A("s_lshl_b32 s13, s30, 8")
    A("s_add_u32 s12, s12, s13")
    for t in range(4):
        A(f"buffer_load_dwordx4 v[{100+4*t}:{103+4*t}], v4, s[4:7], s12 offen {NT}")
        if t < 3: A(f"s_add_u32 s12, s12, {32*8192}")
    A("v_mul_u32_u24 v4, 5120, v2")
    A("v_lshl_add_u32 v4, v3, 4, v4")
    A("s_lshl_b32 s12, s30, 3")
    A(f"s_add_u32 s12, s12, s{S_WAVE}")
    A(f"s_mul_i32 s12, s12, {16*1280}")
    for t in range(4):
        for b in range(5):
            r = 120 + 20*t + 4*b
            A(f"buffer_load_dwordx4 v[{r}:{r+3}], v4, s[8:11], s12 offen offset:{b*256} {NT}")
        if t < 3: A("s_add_u32 s12, s12, 1280")
def tail_init(A):
    A("v_lshlrev_b32 v5, 4, v0")
    A("v_mov_b32 v8, 0\nv_mov_b32 v9, 0\nv_mov_b32 v10, 0\nv_mov_b32 v11, 0")
    A("ds_write_b128 v5, v[8:11]")
    A("v_mov_b32 v8, 0xff800000")
    A("v_mov_b32 v5, 1024")
    A("ds_write_b64 v5, v[8:9]")
    selectors(A, 20, 3, 28)
    pack24_consts(A)
    A("s_waitcnt lgkmcnt(0)")
    A("s_barrier")
def sel_build(A, src, dst):
    for t in range(4):
        for k in range(4):
            A(f"v_perm_b32 v{dst+4*t+k}, v{src+t//2}, v{src+t//2}, v{20+4*(t&1)+k}")
def tail_compute(A, LD, ST, check):
    A("v_and_b32 v5, 3, v0")
    A("v_lshl_add_u32 v5, v5, 2, v2")
    A("v_lshlrev_b32 v5, 4, v5")
    A("s_lshl_b32 s12, s30, 2")
    A("s_add_u32 s12, s12, s31")
    A("s_lshl_b32 s12, s12, 3")
    A(f"s_add_u32 s12, s12, s{S_WAVE}")
    A("s_lshl_b32 s13, s12, 8")
    A(f"s_add_u32 s13, s13, {WS_ST}")
    A("s_lshl_b32 s12, s12, 12")
    A(f"s_add_u32 s12, s12, {WS_OP}")
    A(f"buffer_load_dwordx4 v[32:35], v5, s[{S_WS}:{S_WS+3}], s13 offen {LD}")
    A("s_waitcnt vmcnt(0)")
    A("v_lshlrev_b32 v5, 4, v0")
    for t in range(4):
        A(f"buffer_load_dwordx4 v[{80+4*t}:{83+4*t}], v5, s[{S_WS}:{S_WS+3}], s12 offen offset:{t*1024} {LD}")
    A("v_mov_b32 v6, 1024")
    A("s_mov_b32 exec_lo, 0x000f000f\ns_mov_b32 exec_hi, 0x000f000f")
    A("ds_max_f32 v6, v32")
    A("s_mov_b64 exec, -1")
    A("s_waitcnt lgkmcnt(0)")
    A("s_barrier")
    A("ds_read_b32 v36, v6")
    A("s_waitcnt lgkmcnt(0)")
    A("v_sub_f32 v36, v32, v36")
    A("v_exp_f32 v36, v36")
    A("s_nop 0")
    A("v_mul_f32 v37, v36, v33")
    A("s_mov_b32 exec_lo, 0x000f000f\ns_mov_b32 exec_hi, 0x000f000f")
    A("ds_add_f32 v6, v37 offset:4")
    A("s_mov_b64 exec, -1")
    for t in range(4):
        A(f"v_mov_b32_dpp v{38+t}, v36 quad_perm:[{t},{t},{t},{t}] row_mask:0xf bank_mask:0xf")
    A("v_cvt_pk_bf16_f32 v36, v38, v39")
    A("v_cvt_pk_bf16_f32 v37, v40, v41")
    sel_build(A, 36, 44)
    A("v_lshlrev_b32 v7, 5, v3")
    A("v_lshl_add_u32 v7, v2, 4, v7")
    for t in range(4):
        A(f"s_waitcnt vmcnt({3-t})")
        A(f"v_mfma_f32_16x16x32_bf16 v[40:43], v[{44+4*t}:{47+4*t}], v[{80+4*t}:{83+4*t}], {'0' if t==0 else 'v[40:43]'}")
    A(f"s_lshl_b32 s12, s{S_WAVE}, 6")
    A("v_lshlrev_b32 v8, 4, v2")
    A("v_add_u32 v8, s12, v8")
    A("s_nop 5")
    A("s_mov_b32 exec_hi, 0")
    for r in range(4): A(f"ds_add_f32 v7, v{40+r} offset:{4*r}")
    A("s_mov_b64 exec, -1")
    A("s_waitcnt lgkmcnt(0)")
    A("s_barrier")
    A("ds_read_b128 v[40:43], v8")
    A("ds_read_b32 v39, v6 offset:4")
    A("s_waitcnt lgkmcnt(0)")
    A("v_rcp_f32 v39, v39")
    A("s_nop 0")
    for r in range(4): A(f"v_mul_f32 v{40+r}, v{40+r}, v39")
    A("v_cvt_pk_bf16_f32 v36, v40, v41")
    A("v_cvt_pk_bf16_f32 v37, v42, v43")
    sel_build(A, 36, 44)
    A("s_nop 1")
    for t in range(4):
        A(f"v_mfma_f32_16x16x32_bf16 v[40:43], v[{44+4*t}:{47+4*t}], v[{100+4*t}:{103+4*t}], {'0' if t==0 else 'v[40:43]'}")
    A("s_nop 7")
    A("s_mov_b32 exec_hi, 0")
    for r in range(4): A(f"ds_add_f32 v7, v{40+r} offset:{512+4*r}")
    A("s_mov_b64 exec, -1")
    A("s_waitcnt lgkmcnt(0)")
    A("s_barrier")
    A("ds_read_b128 v[40:43], v8 offset:512")
    A("s_waitcnt lgkmcnt(0)")
    A("v_cvt_pk_bf16_f32 v36, v40, v41")
    A("v_cvt_pk_bf16_f32 v37, v42, v43")
    sel_build(A, 36, 44)
    A("s_nop 1")
    for t in range(4):
        for b in range(5):
            r = 120 + 20*t + 4*b
            A(f"v_mfma_f32_16x16x32_bf16 v[{60+4*b}:{63+4*b}], v[{44+4*t}:{47+4*t}], v[{r}:{r+3}], {'0' if t==0 else 'v[%d:%d]'%(60+4*b,63+4*b)}")
    A(f"s_mul_i32 s12, s{S_WAVE}, 2560")
    A("v_add_u32 v7, s12, v7")
    A("s_nop 6")
    A("s_mov_b32 exec_hi, 0")
    for b in range(5): A(f"ds_write_b128 v7, v[{60+4*b}:{63+4*b}] offset:{2048+512*b}")
    A("s_mov_b64 exec, -1")
    A("s_waitcnt lgkmcnt(0)")
    A("s_barrier")
    done = A.label("T_DONE")
    A(f"s_cmp_ge_u32 s{S_WAVE}, 3")
    A(f"s_cbranch_scc1 {done}")
    A(f"s_lshl_b32 s12, s{S_WAVE}, 6")
    A("v_add_u32 v5, s12, v0")
    A("v_lshlrev_b32 v6, 4, v5")
    for w in range(8): A(f"ds_read_b128 v[{44+4*w}:{47+4*w}], v6 offset:{2048+2560*w}")
    A("v_lshrrev_b32 v6, 1, v5")
    A("v_lshlrev_b32 v6, 12, v6")
    A("v_and_b32 v7, 1, v5")
    A("v_lshl_add_u32 v6, v7, 4, v6")
    A("s_lshl_b32 s12, s32, 5")
    A(f"s_add_u32 s12, s12, {WS_FA}")
    A("v_cmp_gt_u32 vcc, 160, v5")
    A("s_waitcnt lgkmcnt(0)")
    for st in (16, 8, 4):
        for i in range(st): A(f"v_add_f32 v{44+i}, v{44+i}, v{44+st+i}")
    pack24(A, 44, 48, 52)
    A(f"v_mov_b32 v51, s{S_TAG}")
    A("s_and_b64 exec, exec, vcc")
    A(f"buffer_store_dwordx4 v[48:51], v6, s[{S_WS}:{S_WS+3}], s12 offen {ST}")
    A("s_mov_b64 exec, -1")
    A(f"{done}:")

def rnd_bf16(A, v):
    A(f"v_cvt_pk_bf16_f32 v{v}, v{v}, v{v}")
    A(f"v_lshlrev_b32 v{v}, 16, v{v}")

def ffn2_issue(A, sa, NT):
    srd(A, 4, "wd")
    A("v_lshrrev_b32 v2, 4, v0")
    A("v_and_b32 v3, 15, v0")
    A("v_mul_u32_u24 v4, 5120, v2")
    A("v_lshl_add_u32 v4, v3, 4, v4")
    A(f"s_mul_i32 s12, s{sa}, {16*1280}")
    for t in range(4):
        for b in range(5):
            r = 120 + 20*t + 4*b
            A(f"buffer_load_dwordx4 v[{r}:{r+3}], v4, s[4:7], s12 offen offset:{b*256} {NT}")
        if t < 3: A("s_add_u32 s12, s12, 1280")
def ffn2_compute(A, sa, LD, ST, check):
    selectors(A, 20, 3, 28)
    pack24_consts(A)
    A("v_lshrrev_b32 v5, 3, v0")
    A("v_lshlrev_b32 v5, 9, v5")
    A("v_and_b32 v6, 7, v0")
    A("v_lshl_add_u32 v5, v6, 4, v5")
    A(f"s_lshr_b32 s12, s{sa}, 2")
    A("s_lshl_b32 s12, s12, 12")
    A(f"s_and_b32 s13, s{sa}, 3")
    A("s_lshl_b32 s13, s13, 7")
    A("s_add_u32 s12, s12, s13")
    A(f"s_add_u32 s12, s12, {WS_GP}")
    A(f"buffer_load_dwordx4 v[32:35], v5, s[{S_WS}:{S_WS+3}], s12 offen {LD}")
    A("s_waitcnt vmcnt(0)")
    A("v_add_f32_dpp v32, v32, v32 row_ror:8 row_mask:0xf bank_mask:0xf")
    A("v_add_f32_dpp v34, v34, v34 row_ror:8 row_mask:0xf bank_mask:0xf")
    A("v_mov_b32 v33, v32")
    A("v_mov_b32 v35, v34")
    A("s_nop 1")
    A("v_permlane16_swap_b32 v32, v33")
    A("v_permlane16_swap_b32 v34, v35")
    A("v_add_f32 v32, v32, v33")
    A("v_add_f32 v34, v34, v35")
    A("v_mov_b32 v33, v32")
    A("v_mov_b32 v35, v34")
    A("s_nop 1")
    A("v_permlane32_swap_b32 v32, v33")
    A("v_permlane32_swap_b32 v34, v35")
    for v in (32, 33, 34, 35): rnd_bf16(A, v)
    k1 = -2.0 * math.sqrt(2.0 / math.pi) * math.log2(math.e)
    for g in (32, 34):
        A(f"v_mul_f32 v36, v{g}, v{g}")
        A(f"v_mul_f32 v36, {hex(f2u(0.044715))}, v36")
        A("v_add_f32 v36, 1.0, v36")
        A(f"v_mul_f32 v36, v36, v{g}")
        A(f"v_mul_f32 v36, {hex(f2u(k1))}, v36")
        A("v_exp_f32 v36, v36")
        A("s_nop 0")
        A("v_add_f32 v36, 1.0, v36")
        A("v_rcp_f32 v36, v36")
        A("s_nop 0")
        A(f"v_mul_f32 v{g}, v{g}, v36")
        rnd_bf16(A, g)
        A(f"v_mul_f32 v{g}, v{g}, v{g+1}")
    A("v_cvt_pk_bf16_f32 v32, v32, v34")
    A("v_lshlrev_b32 v5, 3, v2")
    A("v_add_u32 v6, 4, v5")
    A("ds_bpermute_b32 v36, v5, v32")
    A("ds_bpermute_b32 v37, v6, v32")
    A("s_waitcnt lgkmcnt(0)")
    sel_build(A, 36, 44)
    A("s_nop 1")
    for t in range(4):
        for b in range(5):
            r = 120 + 20*t + 4*b
            A(f"v_mfma_f32_16x16x32_bf16 v[{60+4*b}:{63+4*b}], v[{44+4*t}:{47+4*t}], v[{r}:{r+3}], {'0' if t==0 else 'v[%d:%d]'%(60+4*b,63+4*b)}")
    A("v_lshlrev_b32 v6, 12, v3")
    A("v_lshl_add_u32 v6, v2, 4, v6")
    A(f"s_lshl_b32 s12, s{sa}, 5")
    A(f"s_add_u32 s12, s12, {WS_FB}")
    A("s_nop 4")
    A("s_mov_b32 exec_hi, 0")
    for b in range(5):
        pack24(A, 60+4*b, 80+4*b, 38)
        A(f"v_mov_b32 v{83+4*b}, s{S_TAG}")
        A(f"buffer_store_dwordx4 v[{80+4*b}:{83+4*b}], v6, s[{S_WS}:{S_WS+3}], s12 offen {ST}")
        if b < 4: A("s_add_u32 s12, s12, 65536")
    A("s_mov_b64 exec, -1")

def wave_sum(A, v, t):
    A(f"v_mov_b32 v{t}, v{v}")
    A("s_nop 1")
    A(f"v_permlane32_swap_b32 v{v}, v{t}")
    A(f"v_add_f32 v{v}, v{v}, v{t}")
    A(f"v_mov_b32 v{t}, v{v}")
    A("s_nop 1")
    A(f"v_permlane16_swap_b32 v{v}, v{t}")
    A(f"v_add_f32 v{v}, v{v}, v{t}")
    for k in (8, 4, 2, 1):
        A("s_nop 1")
        A(f"v_add_f32_dpp v{v}, v{v}, v{v} row_ror:{k} row_mask:0xf bank_mask:0xf")
def final_gate(A):
    srd(A, 4, "x"); srd(A, 8, "gw"); srd(A, 12, "out")
    A("v_mul_u32_u24 v5, 20, v0")
    A("buffer_load_dwordx4 v[8:11], v5, s[4:7], 0 offen")
    A("buffer_load_dword v12, v5, s[4:7], 0 offen offset:16")
    A("buffer_load_dwordx4 v[16:19], v5, s[8:11], 0 offen")
    A("buffer_load_dword v20, v5, s[8:11], 0 offen offset:16")
    A("v_mov_b32 v30, 0")
    A("s_waitcnt vmcnt(0)")
    for i in range(5):
        A(f"v_lshlrev_b32 v24, 16, v{8+i}")
        A(f"v_and_b32 v25, 0xffff0000, v{8+i}")
        A(f"v_lshlrev_b32 v26, 16, v{16+i}")
        A(f"v_and_b32 v27, 0xffff0000, v{16+i}")
        A("v_mul_f32 v24, v24, v26")
        A("v_mul_f32 v25, v25, v27")
        A("v_cvt_pk_bf16_f32 v24, v24, v25")
        A("v_lshlrev_b32 v25, 16, v24")
        A("v_and_b32 v24, 0xffff0000, v24")
        A("v_add_f32 v30, v30, v25")
        A("v_add_f32 v30, v30, v24")
    wave_sum(A, 30, 31)
    rnd_bf16(A, 30)
    A(f"v_mul_f32 v30, {hex(f2u(-math.log2(math.e)))}, v30")
    A("v_exp_f32 v30, v30")
    A("s_nop 0")
    A("v_add_f32 v30, 1.0, v30")
    A("v_rcp_f32 v30, v30")
    A("s_nop 0")
    rnd_bf16(A, 30)
    A("v_sub_f32 v31, 1.0, v30")
    rnd_bf16(A, 31)
    A("s_mov_b32 s70, 0x0504000c\ns_mov_b32 s71, 0x0706010c\ns_mov_b32 s72, 0x0504020c\ns_mov_b32 s73, 0x0706030c")
def final_gather(A, sa, base, nprod, dst, LD, check):
    A("v_lshlrev_b32 v5, 4, v0")
    A(f"s_lshl_b32 s28, s{sa}, 12")
    A(f"s_add_u32 s28, s28, {base}")
    for i in range(4):
        A(f"buffer_load_dwordx4 v[{40+4*i}:{43+4*i}], v5, s[{S_WS}:{S_WS+3}], s28 offen offset:{i*1024} {LD}")
    A("s_waitcnt vmcnt(0)")
    if nprod < 128:
        A(f"v_cmp_gt_u32 vcc, {2*(nprod-96)}, v0")
        A("s_nop 1")
        for k in range(3): A(f"v_cndmask_b32 v{52+k}, 0, v{52+k}, vcc")
    for i in range(4):
        d = 40 + 4*i
        o = 60 + 4*i
        A(f"v_perm_b32 v{o}, v{d}, v{d+2}, s70")
        A(f"v_perm_b32 v{o+1}, v{d}, v{d+2}, s71")
        A(f"v_perm_b32 v{o+2}, v{d+1}, v{d+2}, s72")
        A(f"v_perm_b32 v{o+3}, v{d+1}, v{d+2}, s73")
    for st in (8, 4):
        for i in range(st): A(f"v_add_f32 v{60+i}, v{60+i}, v{60+st+i}")
    A("s_nop 1")
    A("v_permlane32_swap_b32 v60, v61")
    A("v_permlane32_swap_b32 v62, v63")
    A("v_add_f32 v60, v60, v61")
    A("v_add_f32 v62, v62, v63")
    A("s_nop 1")
    A("v_permlane16_swap_b32 v60, v62")
    A(f"v_add_f32 v{dst}, v60, v62")
    for k in (8, 4, 2):
        A("s_nop 1")
        A(f"v_add_f32_dpp v{dst}, v{dst}, v{dst} row_ror:{k} row_mask:0xf bank_mask:0xf")
def final_out(A, sa):
    rnd_bf16(A, 32); rnd_bf16(A, 33)
    A("v_mul_f32 v32, v32, v30")
    A("v_mul_f32 v33, v33, v31")
    rnd_bf16(A, 32); rnd_bf16(A, 33)
    A("v_add_f32 v32, v32, v33")
    A("v_cvt_pk_bf16_f32 v32, v32, v32")
    A("v_and_b32 v5, 1, v0")
    A("v_bfe_u32 v6, v0, 4, 1")
    A("v_lshrrev_b32 v7, 5, v0")
    A("v_lshl_add_u32 v6, v6, 1, v7")
    A("v_lshl_add_u32 v5, v5, 2, v6")
    A("v_lshlrev_b32 v5, 1, v5")
    A(f"s_lshl_b32 s28, s{sa}, 4")
    A("s_mov_b32 exec_lo, 0x00030003\ns_mov_b32 exec_hi, 0x00030003")
    A("buffer_store_short v32, v5, s[12:15], s28 offen")
```

```python
import sys, json
from roles import *
import roles
KN = "gated_mix__compressed_kv_cla__geglu_ffn__decode_kernel"
WS_DBG = 0x700000
SPIN = 200000

def gen(NT="nt", stamps=False, att_win=5, tail_win=3, ffn_win=0, tail_first=True, prefetch=True, poll_sleep=2, hint=True, prewrite=False):
    LD = "sc1"; ST = "sc1"
    A = Asm()
    W = f"s[{S_WS}:{S_WS+3}]"
    nst = [0]
    def stamp(i):
        if stamps: A(f"s_memrealtime s[{80+2*i}:{81+2*i}]")
    def finish():
        if stamps: A("s_branch DUMP")
        else: A("s_endpgm")
    def spin_head(name):
        A(f"s_mov_b32 s25, {SPIN}")
        A(f"{name}:")
    def spin_tail(name, acc, sleep=poll_sleep):
        done = A.label("OK")
        A(f"v_cmp_ne_u32 vcc, 0, v{acc}")
        A(f"s_cbranch_vccz {done}")
        if sleep: A(f"s_sleep {sleep}")
        A("s_sub_u32 s25, s25, 1")
        A("s_cmp_lg_u32 s25, 0")
        A(f"s_cbranch_scc1 {name}")
        A(f"{done}:")
    def tagchk(acc, v, first):
        if first: A(f"v_xor_b32 v{acc}, s{S_TAG}, v{v}")
        else: A(f"v_bitop3_b32 v{acc}, v{v}, s{S_TAG}, v{acc} bitop3:0xbe")

    A(f".globl {KN}\n.p2align 8\n.type {KN},@function\n{KN}:")
    A("s_cmp_ge_u32 s2, 256\ns_cbranch_scc1 END")
    if stamps:
        for i in range(10): A(f"s_mov_b64 s[{80+2*i}:{81+2*i}], 0")
    stamp(0)
    A("s_load_dwordx16 s[40:55], s[0:1], 0")
    A("s_load_dwordx8 s[56:63], s[0:1], 64")
    A("s_load_dwordx4 s[64:67], s[0:1], 96")
    A("v_lshrrev_b32 v1, 6, v0")
    A("v_and_b32 v0, 63, v0")
    A("s_and_b32 s33, s2, 127")
    A(f"v_readfirstlane_b32 s{S_WAVE}, v1")
    A("s_waitcnt lgkmcnt(0)")
    A(f"s_load_dword s{S_TAG}, s[66:67], 0")
    srd(A, S_WS, "ws", (WS_DBG + 0x40000) if stamps else WS_SIZE)
    A(f"s_cmp_lg_u32 s{S_WAVE}, 7\ns_cbranch_scc1 NOTQ")
    xw_setup_q(A)
    xw_issue(A, NT)
    stamp(1)
    A("NOTQ:")
    if prefetch:
        A(f"s_cmp_lg_u32 s{S_WAVE}, 6\ns_cbranch_scc1 NOPF")
        A("s_getpc_b64 s[26:27]")
        A("s_lshr_b32 s28, s2, 3")
        A("s_and_b32 s28, s28, 7")
        A("s_lshl_b32 s28, s28, 11")
        A("v_lshlrev_b32 v254, 7, v0")
        A("v_add_u32 v254, s28, v254")
        A("s_mov_b64 exec, 0xffff")
        A("global_load_dword v255, v254, s[26:27]")
        A("s_mov_b64 exec, -1")
        A("NOPF:")
    A(f"s_cmp_{'ge' if tail_first else 'lt'}_u32 s2, 128\ns_cbranch_scc1 ATT")
    A("s_and_b32 s30, s33, 7")
    A("s_lshl_b32 s30, s30, 2")
    A("s_lshr_b32 s31, s33, 5")
    A("s_add_u32 s30, s30, s31")
    A("s_bfe_u32 s31, s33, 0x20003")
    srd(A, 72, "wuk")
    A("v_lshrrev_b32 v216, 4, v0")
    A("v_and_b32 v217, 15, v0")
    A("v_lshlrev_b32 v218, 13, v216")
    A("v_lshl_add_u32 v218, v217, 4, v218")
    A("s_lshl_b32 s26, s31, 3")
    A(f"s_add_u32 s26, s26, s{S_WAVE}")
    A("s_lshl_b32 s26, s26, 17")
    A("s_lshl_b32 s27, s30, 8")
    A("s_add_u32 s26, s26, s27")
    for t in range(4):
        A(f"buffer_load_dwordx4 v[{200+4*t}:{203+4*t}], v218, s[72:75], s26 offen {NT}")
        if t < 3: A("s_add_u32 s26, s26, 32768")
    A("s_waitcnt lgkmcnt(0)")
    A(f"s_add_u32 s{S_TAG}, s{S_TAG}, 1")
    A(f"s_cmp_lg_u32 s{S_WAVE}, 7\ns_cbranch_scc1 T_NOQ")
    xw_compute_x(A, ST, 4)
    stamp(2)
    A("T_NOQ:")
    A("v_mov_b32 v2, v216\nv_mov_b32 v3, v217")
    A("v_lshlrev_b32 v5, 4, v0")
    A("v_mov_b32 v8, 0\nv_mov_b32 v9, 0\nv_mov_b32 v10, 0\nv_mov_b32 v11, 0")
    A("ds_write_b128 v5, v[8:11]")
    A("v_mov_b32 v8, 0xff800000")
    A("v_mov_b32 v6, 1024")
    A("ds_write_b64 v6, v[8:9]")
    selectors(A, 20, 3, 28)
    pack24_consts(A)
    A("v_lshrrev_b32 v6, 3, v3")
    A("v_bfe_u32 v7, v3, 2, 1")
    A("v_lshl_add_u32 v6, v7, 1, v6")
    A("v_lshl_add_u32 v6, v6, 2, v2")
    A(f"s_lshl_b32 s9, s{S_WAVE}, 4")
    A("v_add_u32 v6, s9, v6")
    A("v_lshlrev_b32 v6, 1, v6")
    A("v_lshlrev_b32 v7, 4, v3")
    for t in range(4): A(f"v_mov_b32 v{56+t}, 0")
    A(f"s_cmp_lg_u32 s{S_WAVE}, 0\ns_cbranch_scc1 T_NOG")
    A("s_lshl_b32 s9, s30, 12")
    A(f"s_add_u32 s9, s9, {WS_QP}")
    spin_head("T_QPOLL")
    for e in range(4):
        A(f"buffer_load_dwordx4 v[{32+4*e}:{35+4*e}], v5, {W}, s9 offen offset:{e*1024} {LD}")
    for e in range(4):
        A(f"s_waitcnt vmcnt({3-e})")
        tagchk(31, 33+4*e, e == 0); tagchk(31, 35+4*e, False)
    spin_tail("T_QPOLL", 31)
    stamp(3)
    A("v_add_f32 v32, v32, v36\nv_add_f32 v34, v34, v38\nv_add_f32 v40, v40, v44\nv_add_f32 v42, v42, v46")
    A("v_add_f32 v32, v32, v40\nv_add_f32 v34, v34, v42")
    A("v_cvt_pk_bf16_f32 v32, v32, v34")
    A("v_lshlrev_b32 v5, 2, v0")
    A("ds_write_b32 v5, v32 offset:1536")
    A("T_NOG:")
    A("s_waitcnt lgkmcnt(0)")
    A("s_barrier")
    A("ds_read_b128 v[32:35], v7 offset:1536")
    A("s_waitcnt vmcnt(0) lgkmcnt(0)")
    for k in range(4):
        for t in range(4):
            A(f"v_dot2c_f32_bf16 v{56+t}, v{200+4*t+k}, v{32+k}")
    A("s_nop 2")
    A("v_add_f32_dpp v56, v56, v56 row_ror:8 row_mask:0xf bank_mask:0x3")
    A("v_add_f32_dpp v58, v58, v58 row_ror:8 row_mask:0xf bank_mask:0x3")
    A("v_add_f32_dpp v56, v57, v57 row_ror:8 row_mask:0xf bank_mask:0xc")
    A("v_add_f32_dpp v58, v59, v59 row_ror:8 row_mask:0xf bank_mask:0xc")
    A("s_nop 1")
    A("v_add_f32_dpp v56, v56, v56 row_half_mirror row_mask:0xf bank_mask:0x5")
    A("v_add_f32_dpp v56, v58, v58 row_half_mirror row_mask:0xf bank_mask:0xa")
    A("s_nop 1")
    A("v_add_f32_dpp v56, v56, v56 quad_perm:[1,0,3,2] row_mask:0xf bank_mask:0xf")
    A("s_nop 1")
    A("v_add_f32_dpp v56, v56, v56 quad_perm:[2,3,0,1] row_mask:0xf bank_mask:0xf")
    A(f"v_mul_f32 v56, {hex(f2u(QSCALE))}, v56")
    A("v_cvt_pk_bf16_f32 v56, v56, v56")
    A("ds_write_b16 v6, v56 offset:1792")
    A("s_waitcnt lgkmcnt(0)")
    A("s_barrier")
    A(f"s_cmp_lg_u32 s{S_WAVE}, 0\ns_cbranch_scc1 T_NOP")
    A("v_lshrrev_b32 v5, 3, v0")
    A("v_and_b32 v6, 7, v0")
    A("v_lshlrev_b32 v7, 5, v6")
    A("v_cmp_eq_u32 vcc, 2, v5")
    A("v_lshlrev_b32 v32, 4, v5")
    A("s_nop 0")
    A("v_cndmask_b32 v32, v32, 12, vcc")
    A("v_add_u32 v32, v32, v7")
    A("v_cndmask_b32 v33, 4, 16, vcc")
    A("v_add_u32 v33, v33, v32")
    A("ds_read_b32 v36, v32 offset:1792")
    A("ds_read_b32 v37, v33 offset:1792")
    A("ds_read_b32 v38, v32 offset:1800")
    A(f"v_mov_b32 v39, s{S_TAG}")
    A("v_lshlrev_b32 v5, 14, v5")
    A("v_lshl_add_u32 v5, v6, 4, v5")
    A("s_lshl_b32 s9, s30, 9")
    A("s_lshl_b32 s10, s31, 7")
    A("s_add_u32 s9, s9, s10")
    A(f"s_add_u32 s9, s9, {WS_QA}")
    A("s_mov_b64 exec, 0xffffff")
    A("s_waitcnt lgkmcnt(0)")
    A(f"buffer_store_dwordx4 v[36:39], v5, {W}, s9 offen {ST}")
    A("s_mov_b64 exec, -1")
    stamp(4)
    A("T_NOP:")
    srd(A, 4, "wuv"); srd(A, 8, "wo")
    A("v_and_b32 v4, 1, v2")
    A("v_lshrrev_b32 v5, 1, v2")
    A("v_lshl_add_u32 v4, v4, 4, v5")
    A("v_lshlrev_b32 v4, 13, v4")
    A("v_lshl_add_u32 v4, v3, 4, v4")
    A("s_lshl_b32 s12, s31, 6")
    A(f"s_add_u32 s12, s12, s{S_WAVE}")
    A("s_lshl_b32 s12, s12, 14")
    A("s_lshl_b32 s13, s30, 8")
    A("s_add_u32 s12, s12, s13")
    A("v_mul_u32_u24 v9, 1280, v2")
    A("v_lshl_add_u32 v9, v3, 4, v9")
    A("s_lshl_b32 s13, s30, 5")
    A(f"s_add_u32 s13, s13, s{S_WAVE}")
    A(f"s_mul_i32 s13, s13, {4*1280}")
    n = [0]
    def pace():
        n[0] += 1
        if tail_win and n[0] >= tail_win: A(f"s_waitcnt vmcnt({tail_win-1})")
    def wo(t):
        A(f"s_add_u32 s14, s31, {t}")
        A("s_and_b32 s14, s14, 3")
        A(f"s_lshl_b32 s{34+t}, s14, 7")
        A(f"s_mul_i32 s14, s14, {32*1280}")
        A("s_add_u32 s14, s14, s13")
        for b in range(5):
            r = 120 + 20*t + 4*b
            A(f"buffer_load_dwordx4 v[{r}:{r+3}], v9, s[8:11], s14 offen offset:{b*256} {NT}")
            pace()
    wo(0)
    for t in range(4):
        A(f"buffer_load_dwordx4 v[{100+4*t}:{103+4*t}], v4, s[4:7], s12 offen {NT}")
        if t < 3: A(f"s_add_u32 s12, s12, {32*8192}")
        pace()
    wo(1); wo(2); wo(3)
    stamp(5)
    A("v_and_b32 v5, 3, v0")
    A("v_lshl_add_u32 v5, v5, 2, v2")
    A("v_lshlrev_b32 v5, 4, v5")
    A("s_lshl_b32 s12, s30, 2")
    A("s_add_u32 s12, s12, s31")
    A("s_lshl_b32 s12, s12, 3")
    A(f"s_add_u32 s12, s12, s{S_WAVE}")
    A("s_lshl_b32 s13, s12, 8")
    A(f"s_add_u32 s13, s13, {WS_ST}")
    A("s_lshl_b32 s12, s12, 12")
    A(f"s_add_u32 s12, s12, {WS_OP}")
    A("v_lshlrev_b32 v10, 4, v0")
    A("v_mov_b32 v6, 1024")
    A("v_lshlrev_b32 v7, 5, v3")
    A("v_lshl_add_u32 v7, v2, 4, v7")
    A(f"s_lshl_b32 s14, s{S_WAVE}, 6")
    A("v_lshlrev_b32 v8, 4, v2")
    A("v_add_u32 v8, s14, v8")
    A(f"s_lshl_b32 s14, s{S_WAVE}, 4")
    A("v_lshlrev_b32 v11, 2, v2")
    A("v_add_u32 v11, s14, v11")
    for t in range(4): A(f"v_add_u32 v{12+t}, s{34+t}, v11")
    spin_head("T_SPOLL")
    A(f"buffer_load_dwordx4 v[32:35], v5, {W}, s13 offen {LD}")
    A("s_waitcnt vmcnt(0)")
    tagchk(31, 35, True)
    spin_tail("T_SPOLL", 31)
    for t in range(4):
        A(f"buffer_load_dwordx4 v[{80+4*t}:{83+4*t}], v10, {W}, s12 offen offset:{t*1024} {LD}")
    stamp(6)
    A("s_mov_b32 exec_lo, 0x000f000f\ns_mov_b32 exec_hi, 0x000f000f")
    A("ds_max_f32 v6, v32")
    A("s_mov_b64 exec, -1")
    A("s_waitcnt lgkmcnt(0)")
    A("s_barrier")
    A("ds_read_b32 v36, v6")
    A("s_waitcnt lgkmcnt(0)")
    A("v_sub_f32 v36, v32, v36")
    A("v_exp_f32 v36, v36")
    A("s_nop 0")
    A("v_mul_f32 v37, v36, v33")
    A("s_mov_b32 exec_lo, 0x000f000f\ns_mov_b32 exec_hi, 0x000f000f")
    A("ds_add_f32 v6, v37 offset:4")
    A("s_mov_b64 exec, -1")
    for t in range(4):
        A(f"v_mov_b32_dpp v{38+t}, v36 quad_perm:[{t},{t},{t},{t}] row_mask:0xf bank_mask:0xf")
    A("v_cvt_pk_bf16_f32 v36, v38, v39")
    A("v_cvt_pk_bf16_f32 v37, v40, v41")
    sel_build(A, 36, 44)
    A("s_nop 0")
    for t in range(4):
        A(f"s_waitcnt vmcnt({3-t})")
        A(f"v_mfma_f32_16x16x32_bf16 v[40:43], v[{44+4*t}:{47+4*t}], v[{80+4*t}:{83+4*t}], {'0' if t==0 else 'v[40:43]'}")
    stamp(7)
    A("s_nop 7")
    A("s_mov_b32 exec_hi, 0")
    for r in range(4): A(f"ds_add_f32 v7, v{40+r} offset:{4*r}")
    A("s_mov_b64 exec, -1")
    A("s_waitcnt lgkmcnt(0)")
    A("s_barrier")
    A("ds_read_b128 v[40:43], v8")
    A("ds_read_b32 v39, v6 offset:4")
    A("s_waitcnt lgkmcnt(0)")
    A("v_rcp_f32 v39, v39")
    A("s_nop 0")
    for r in range(4): A(f"v_mul_f32 v{40+r}, v{40+r}, v39")
    A("v_cvt_pk_bf16_f32 v36, v40, v41")
    A("v_cvt_pk_bf16_f32 v37, v42, v43")
    sel_build(A, 36, 44)
    A("s_nop 1")
    for t in range(4):
        A(f"v_mfma_f32_16x16x32_bf16 v[40:43], v[{44+4*t}:{47+4*t}], v[{100+4*t}:{103+4*t}], {'0' if t==0 else 'v[40:43]'}")
    A("s_nop 7")
    A("s_mov_b32 exec_hi, 0")
    for r in range(4): A(f"ds_add_f32 v7, v{40+r} offset:{512+4*r}")
    A("s_mov_b64 exec, -1")
    A("s_waitcnt lgkmcnt(0)")
    A("s_barrier")
    for t in range(4): A(f"ds_read_b32 v{40+t}, v{12+t} offset:512")
    A("s_waitcnt lgkmcnt(0)")
    A("v_cvt_pk_bf16_f32 v36, v40, v41")
    A("v_cvt_pk_bf16_f32 v37, v42, v43")
    sel_build(A, 36, 44)
    A("s_nop 1")
    for t in range(4):
        for b in range(5):
            r = 120 + 20*t + 4*b
            A(f"v_mfma_f32_16x16x32_bf16 v[{60+4*b}:{63+4*b}], v[{44+4*t}:{47+4*t}], v[{r}:{r+3}], {'0' if t==0 else 'v[%d:%d]'%(60+4*b,63+4*b)}")
    A(f"s_mul_i32 s12, s{S_WAVE}, 2560")
    A("v_add_u32 v7, s12, v7")
    A("s_nop 6")
    A("s_mov_b32 exec_hi, 0")
    for b in range(5): A(f"ds_write_b128 v7, v[{60+4*b}:{63+4*b}] offset:{2048+512*b}")
    A("s_mov_b64 exec, -1")
    A(f"s_lshl_b32 s12, s{S_WAVE}, 6")
    A("v_add_u32 v5, s12, v0")
    A("v_lshlrev_b32 v6, 4, v5")
    A("s_waitcnt lgkmcnt(0)")
    A("s_barrier")
    A(f"s_cmp_ge_u32 s{S_WAVE}, 3\ns_cbranch_scc1 T_DONE")
    for w in range(8): A(f"ds_read_b128 v[{44+4*w}:{47+4*w}], v6 offset:{2048+2560*w}")
    A("v_lshrrev_b32 v6, 1, v5")
    A("v_lshlrev_b32 v6, 12, v6")
    A("v_and_b32 v7, 1, v5")
    A("v_lshl_add_u32 v6, v7, 4, v6")
    A("s_lshl_b32 s12, s33, 5")
    A(f"s_add_u32 s12, s12, {WS_FA}")
    A("v_cmp_gt_u32 vcc, 160, v5")
    A("s_waitcnt lgkmcnt(0)")
    for st in (16, 8, 4):
        for i in range(st): A(f"v_add_f32 v{44+i}, v{44+i}, v{44+st+i}")
    pack24(A, 44, 48, 52)
    A(f"v_mov_b32 v51, s{S_TAG}")
    A("s_and_b64 exec, exec, vcc")
    A(f"buffer_store_dwordx4 v[48:51], v6, {W}, s12 offen {ST}")
    A("s_mov_b64 exec, -1")
    A("T_DONE:")
    stamp(8)
    finish()
    A("ATT:")
    A(f"s_cmp_ge_u32 s{S_WAVE}, 4\ns_cbranch_scc1 SIDE")
    att_addr(A)
    att_issue(A, 33, NT, att_win)
    stamp(1)
    A("s_waitcnt lgkmcnt(0)")
    A(f"s_add_u32 s{S_TAG}, s{S_TAG}, 1")
    att_main(A, 33, ST, stamp)
    stamp(8)
    finish()
    A("SIDE:")
    A("s_waitcnt lgkmcnt(0)")
    A(f"s_add_u32 s{S_TAG}, s{S_TAG}, 1")
    A(f"s_cmp_lg_u32 s{S_WAVE}, 7\ns_cbranch_scc1 S_NOQ")
    xw_compute_x(A, ST, 0)
    stamp(2)
    A("S_NOQ:")
    A(f"s_sub_u32 s8, s{S_WAVE}, 4")
    A("v_lshlrev_b32 v2, 4, v0")
    A("s_lshl_b32 s9, s8, 12")
    A(f"s_add_u32 s9, s9, {WS_QA}")
    A("s_add_u32 s10, s9, 16384")
    A("s_add_u32 s11, s9, 32768")
    A("v_and_b32 v3, 31, v0")
    A("v_lshrrev_b32 v4, 5, v0")
    A("v_and_b32 v5, 7, v0")
    A("v_xor_b32 v4, v4, v5")
    A("v_lshlrev_b32 v4, 4, v4")
    A("v_lshl_add_u32 v4, v3, 10, v4")
    A("s_lshl_b32 s8, s8, 7")
    A(f"s_add_u32 s8, s8, {QL}")
    A("v_add_u32 v4, s8, v4")
    for q in range(1, 4): A(f"v_xor_b32 v{4+q}, {q << 5}, v4")
    if hint:
        spin_head("S_HINT")
        A(f"buffer_load_dwordx4 v[200:203], v2, {W}, s11 offen offset:3072 {LD}")
        A("s_waitcnt vmcnt(0)")
        tagchk(31, 203, True)
        spin_tail("S_HINT", 31, 4)
    stamp(3)
    spin_head("S_QA")
    for q in range(4):
        for ty in range(3):
            r = 200 + 12*q + 4*ty
            A(f"buffer_load_dwordx4 v[{r}:{r+3}], v2, {W}, s{9+ty} offen offset:{q*1024} {LD}")
    for q in range(4):
        for ty in range(3):
            r = 200 + 12*q + 4*ty
            A(f"s_waitcnt vmcnt({11 - 3*q - ty})")
            tagchk(31, r+3, q == 0 and ty == 0)
            if ty < 2: A(f"ds_write_b96 v{4+q}, v[{r}:{r+2}] offset:{ty*512}")
            else: A(f"ds_write2_b32 v{4+q}, v{r}, v{r+1} offset0:3 offset1:131")
    A("s_waitcnt lgkmcnt(0)")
    spin_tail("S_QA", 31)
    stamp(4)
    A("s_barrier")
    A(f"s_cmp_eq_u32 s{S_WAVE}, 7\ns_cbranch_scc1 S_FIN")
    A("s_cmp_ge_u32 s33, 108\ns_cbranch_scc1 S_END")
    A(f"s_cmp_eq_u32 s{S_WAVE}, 6\ns_cbranch_scc1 S_F2")
    A(f"s_cmp_eq_u32 s{S_WAVE}, 4\ns_cbranch_scc1 S_G")
    xw_setup_ffn(A, 33, 1); A("s_branch S_GO")
    A("S_G:"); xw_setup_ffn(A, 33, 0)
    A("S_GO:")
    xw_issue_paced(A, NT, ffn_win, barriers=3)
    stamp(5)
    xw_compute_x(A, ST, 0)
    stamp(8)
    A("S_END:")
    finish()
    A("S_F2:")
    A("s_barrier\ns_barrier\ns_barrier")
    ffn2_issue(A, 33, NT)
    ffn2_compute_x(A, 33, LD, ST, spin_head, spin_tail, tagchk, stamp)
    stamp(8)
    finish()
    A("S_FIN:")
    A("s_cmp_ge_u32 s33, 80\ns_cbranch_scc1 S_END")
    A("s_barrier\ns_barrier\ns_barrier")
    final_gate(A)
    final_gather_x(A, 33, WS_FB, 108, 33, LD, "F_B", spin_head, spin_tail, tagchk, 8)
    stamp(6)
    final_gather_x(A, 33, WS_FA, 128, 32, LD, "F_A", spin_head, spin_tail, tagchk, 1)
    stamp(7)
    final_out(A, 33)
    A("s_cmp_lg_u32 s33, 0\ns_cbranch_scc1 F_NOE")
    A("s_mov_b64 exec, 1")
    A(f"v_mov_b32 v5, 0\nv_mov_b32 v6, s{S_TAG}")
    A(f"buffer_store_dword v6, v5, {W}, 0 offen")
    A("F_NOE:")
    A("s_mov_b64 exec, -1")
    stamp(8)
    finish()
    if stamps:
        A("DUMP:")
        A("s_waitcnt vmcnt(0)")
        stamp(9)
        A("s_waitcnt lgkmcnt(0)")
        for i in range(10): A(f"v_mov_b32 v{8+i}, s{80+2*i}")
        A("s_lshl_b32 s8, s2, 3")
        A(f"s_add_u32 s8, s8, s{S_WAVE}")
        A("s_lshl_b32 s8, s8, 6")
        A(f"s_add_u32 s8, s8, {WS_DBG}")
        A("v_mov_b32 v5, 0")
        A("s_mov_b64 exec, 1")
        A(f"buffer_store_dwordx4 v[8:11], v5, {W}, s8 offen")
        A(f"buffer_store_dwordx4 v[12:15], v5, {W}, s8 offen offset:16")
        A(f"buffer_store_dwordx2 v[16:17], v5, {W}, s8 offen offset:32")
    A("END:\ns_endpgm")
    hdr = open("gated_mix__compressed_kv_cla__geglu_ffn__decode.s.ref").read().split("; Override")[0]
    txt = hdr + "; @launch grid=(256,1,1) block=(512,1,1) lds=163840\n" + '.amdgcn_target "amdgcn-amd-amdhsa--gfx950"\n.text\n' + A.text() \
        + ".fill 4096, 4, 0xbf810000\n" + '.section .rodata,"a"\n.p2align 6\n' + kdesc(KN, 256)
    return txt

def xw_compute_x(A, ST, extra):
    B = Asm(); xw_compute(B, ST)
    import re
    for l in B.l:
        m = re.match(r"\s*s_waitcnt vmcnt\((\d+)\)", l)
        if m: l = f"  s_waitcnt vmcnt({int(m.group(1)) + extra})"
        A.l.append(l)
def xw_issue_paced(A, NT, win, barriers):
    B = Asm(); xw_issue(B, NT)
    n = 0; done = False
    for l in B.l:
        A.l.append(l)
        if "buffer_load_dwordx4 v[1" in l and "s[4:7]" in l:
            n += 1
            if win and n == win and not done:
                for _ in range(barriers): A("s_barrier")
                done = True
            if win and n >= win and n < 20: A(f"s_waitcnt vmcnt({win-1})")
    if not done:
        for _ in range(barriers): A("s_barrier")
def att_addr(A):
    B = Asm(); att_compute(B, 33, "")
    i = B.l.index("  s_waitcnt vmcnt(0)")
    A.l += B.l[:i]
def att_issue(A, sa, NT, window):
    B = Asm(); roles.att_issue(B, sa, NT, window)
    A.l += [l.replace("v2", "v62").replace("v3,", "v63,") for l in B.l]
def att_main(A, sa, ST, stamp):
    B = Asm(); att_compute(B, sa, ST)
    i = B.l.index("  s_waitcnt vmcnt(0)")
    nb = 0
    for k, l in enumerate(B.l[i:]):
        A.l.append(l)
        if k == 0: stamp(2)
        if l.strip() == "s_barrier":
            nb += 1
            if nb == 1: stamp(3)
            if nb == 2: stamp(4)
            if nb == 4: stamp(5)
        if l.strip() == "v_add_f32 v61, v40, v41": stamp(6)
        if l.strip() == "s_mov_b32 exec_hi, 0": stamp(7)
def ffn2_compute_x(A, sa, LD, ST, spin_head, spin_tail, tagchk, stamp):
    B = Asm(); ffn2_compute(B, sa, LD, ST, True)
    for l in B.l:
        if "buffer_load_dwordx4 v[32:35]" in l:
            spin_head("F2_POLL"); A.l.append(l); continue
        A.l.append(l)
        if l.strip() == "s_waitcnt vmcnt(0)":
            tagchk(31, 33, True); tagchk(31, 35, False); spin_tail("F2_POLL", 31, 4); stamp(6)
def final_gather_x(A, sa, base, nprod, dst, LD, name, spin_head, spin_tail, tagchk, sleep):
    B = Asm(); final_gather(B, sa, base, nprod, dst, LD, True)
    first = True
    for l in B.l:
        if "buffer_load_dwordx4" in l and first:
            spin_head(name); first = False
        A.l.append(l)
        if l.strip() == "s_waitcnt vmcnt(0)":
            tagchk(38, 55, True)
            if nprod < 128:
                A(f"v_cmp_gt_u32 vcc, {2*(nprod-96)}, v0")
                A("s_nop 1")
                A("v_cndmask_b32 v38, 0, v38, vcc")
            for i in range(3): tagchk(38, 43+4*i, False)
            spin_tail(name, 38, sleep)

if __name__ == "__main__":
    kw = eval("dict(%s)" % (sys.argv[2] if len(sys.argv) > 2 else ""))
    open(sys.argv[1], "w").write(gen(**kw))
```

```python
import sys, json
from roles import *
import roles
KN = "gated_mix__compressed_kv_cla__geglu_ffn__decode_kernel"
WS_DBG = 0x700000
SPIN = 200000

def gen(NT="nt", stamps=False, att_win=5, tail_win=3, ffn_win=0, tail_first=True, prefetch=True, poll_sleep=2, hint=True, prewrite=False, amp=None):
    LD = "sc1"; ST = "sc1"
    A = Asm()
    W = f"s[{S_WS}:{S_WS+3}]"
    nst = [0]
    def stamp(i):
        if stamps: A(f"s_memrealtime s[{80+2*i}:{81+2*i}]")
    def finish():
        if stamps: A("s_branch DUMP")
        else: A("s_endpgm")
    def spin_head(name):
        A(f"s_mov_b32 s25, {SPIN}")
        A(f"{name}:")
    def spin_tail(name, acc, sleep=poll_sleep):
        done = A.label("OK")
        A(f"v_cmp_ne_u32 vcc, 0, v{acc}")
        A(f"s_cbranch_vccz {done}")
        if sleep: A(f"s_sleep {sleep}")
        A("s_sub_u32 s25, s25, 1")
        A("s_cmp_lg_u32 s25, 0")
        A(f"s_cbranch_scc1 {name}")
        A(f"{done}:")
    def tagchk(acc, v, first):
        if first: A(f"v_xor_b32 v{acc}, s{S_TAG}, v{v}")
        else: A(f"v_bitop3_b32 v{acc}, v{v}, s{S_TAG}, v{acc} bitop3:0xbe")

    A(f".globl {KN}\n.p2align 8\n.type {KN},@function\n{KN}:")
    A("s_cmp_ge_u32 s2, 256\ns_cbranch_scc1 END")
    if stamps:
        for i in range(10): A(f"s_mov_b64 s[{80+2*i}:{81+2*i}], 0")
    stamp(0)
    A("s_load_dwordx16 s[40:55], s[0:1], 0")
    A("s_load_dwordx8 s[56:63], s[0:1], 64")
    A("s_load_dwordx4 s[64:67], s[0:1], 96")
    A("v_lshrrev_b32 v1, 6, v0")
    A("v_and_b32 v0, 63, v0")
    A("s_and_b32 s33, s2, 127")
    A(f"v_readfirstlane_b32 s{S_WAVE}, v1")
    A("s_waitcnt lgkmcnt(0)")
    A(f"s_load_dword s{S_TAG}, s[66:67], 0")
    srd(A, S_WS, "ws", (WS_DBG + 0x40000) if stamps else WS_SIZE)
    A(f"s_cmp_lg_u32 s{S_WAVE}, 7\ns_cbranch_scc1 NOTQ")
    xw_setup_q(A)
    xw_issue(A, NT)
    stamp(1)
    A("NOTQ:")
    if prefetch:
        A(f"s_cmp_lg_u32 s{S_WAVE}, 6\ns_cbranch_scc1 NOPF")
        A("s_getpc_b64 s[26:27]")
        A("s_lshr_b32 s28, s2, 3")
        A("s_and_b32 s28, s28, 7")
        A("s_lshl_b32 s28, s28, 11")
        A("v_lshlrev_b32 v254, 7, v0")
        A("v_add_u32 v254, s28, v254")
        A("s_mov_b64 exec, 0xffff")
        A("global_load_dword v255, v254, s[26:27]")
        A("s_mov_b64 exec, -1")
        A("NOPF:")
    A(f"s_cmp_{'ge' if tail_first else 'lt'}_u32 s2, 128\ns_cbranch_scc1 ATT")
    A("s_and_b32 s30, s33, 7")
    A("s_lshl_b32 s30, s30, 2")
    A("s_lshr_b32 s31, s33, 5")
    A("s_add_u32 s30, s30, s31")
    A("s_bfe_u32 s31, s33, 0x20003")
    srd(A, 72, "wuk")
    A("v_lshrrev_b32 v216, 4, v0")
    A("v_and_b32 v217, 15, v0")
    A("v_lshlrev_b32 v218, 13, v216")
    A("v_lshl_add_u32 v218, v217, 4, v218")
    A("s_lshl_b32 s26, s31, 3")
    A(f"s_add_u32 s26, s26, s{S_WAVE}")
    A("s_lshl_b32 s26, s26, 17")
    A("s_lshl_b32 s27, s30, 8")
    A("s_add_u32 s26, s26, s27")
    for t in range(4):
        A(f"buffer_load_dwordx4 v[{200+4*t}:{203+4*t}], v218, s[72:75], s26 offen {NT}")
        if t < 3: A("s_add_u32 s26, s26, 32768")
    A("s_waitcnt lgkmcnt(0)")
    A(f"s_add_u32 s{S_TAG}, s{S_TAG}, 1")
    A(f"s_cmp_lg_u32 s{S_WAVE}, 7\ns_cbranch_scc1 T_NOQ")
    xw_compute_x(A, ST, 4)
    stamp(2)
    A("T_NOQ:")
    A("v_mov_b32 v2, v216\nv_mov_b32 v3, v217")
    A("v_lshlrev_b32 v5, 4, v0")
    A("v_mov_b32 v8, 0\nv_mov_b32 v9, 0\nv_mov_b32 v10, 0\nv_mov_b32 v11, 0")
    A("ds_write_b128 v5, v[8:11]")
    A("v_mov_b32 v8, 0xff800000")
    A("v_mov_b32 v6, 1024")
    A("ds_write_b64 v6, v[8:9]")
    selectors(A, 20, 3, 28)
    pack24_consts(A)
    A("v_lshrrev_b32 v6, 3, v3")
    A("v_bfe_u32 v7, v3, 2, 1")
    A("v_lshl_add_u32 v6, v7, 1, v6")
    A("v_lshl_add_u32 v6, v6, 2, v2")
    A(f"s_lshl_b32 s9, s{S_WAVE}, 4")
    A("v_add_u32 v6, s9, v6")
    A("v_lshlrev_b32 v6, 1, v6")
    A("v_lshlrev_b32 v7, 4, v3")
    for t in range(4): A(f"v_mov_b32 v{56+t}, 0")
    A(f"s_cmp_lg_u32 s{S_WAVE}, 0\ns_cbranch_scc1 T_NOG")
    A("s_lshl_b32 s9, s30, 12")
    A(f"s_add_u32 s9, s9, {WS_QP}")
    spin_head("T_QPOLL")
    for e in range(4):
        A(f"buffer_load_dwordx4 v[{32+4*e}:{35+4*e}], v5, {W}, s9 offen offset:{e*1024} {LD}")
    for e in range(4):
        A(f"s_waitcnt vmcnt({3-e})")
        tagchk(31, 33+4*e, e == 0); tagchk(31, 35+4*e, False)
    spin_tail("T_QPOLL", 31)
    stamp(3)
    A("v_add_f32 v32, v32, v36\nv_add_f32 v34, v34, v38\nv_add_f32 v40, v40, v44\nv_add_f32 v42, v42, v46")
    A("v_add_f32 v32, v32, v40\nv_add_f32 v34, v34, v42")
    A("v_cvt_pk_bf16_f32 v32, v32, v34")
    A("v_lshlrev_b32 v5, 2, v0")
    A("ds_write_b32 v5, v32 offset:1536")
    A("T_NOG:")
    A("s_waitcnt lgkmcnt(0)")
    A("s_barrier")
    A("ds_read_b128 v[32:35], v7 offset:1536")
    A("s_waitcnt vmcnt(0) lgkmcnt(0)")
    for k in range(4):
        for t in range(4):
            A(f"v_dot2c_f32_bf16 v{56+t}, v{200+4*t+k}, v{32+k}")
    A("s_nop 2")
    A("v_add_f32_dpp v56, v56, v56 row_ror:8 row_mask:0xf bank_mask:0x3")
    A("v_add_f32_dpp v58, v58, v58 row_ror:8 row_mask:0xf bank_mask:0x3")
    A("v_add_f32_dpp v56, v57, v57 row_ror:8 row_mask:0xf bank_mask:0xc")
    A("v_add_f32_dpp v58, v59, v59 row_ror:8 row_mask:0xf bank_mask:0xc")
    A("s_nop 1")
    A("v_add_f32_dpp v56, v56, v56 row_half_mirror row_mask:0xf bank_mask:0x5")
    A("v_add_f32_dpp v56, v58, v58 row_half_mirror row_mask:0xf bank_mask:0xa")
    A("s_nop 1")
    A("v_add_f32_dpp v56, v56, v56 quad_perm:[1,0,3,2] row_mask:0xf bank_mask:0xf")
    A("s_nop 1")
    A("v_add_f32_dpp v56, v56, v56 quad_perm:[2,3,0,1] row_mask:0xf bank_mask:0xf")
    A(f"v_mul_f32 v56, {hex(f2u(QSCALE))}, v56")
    A("v_cvt_pk_bf16_f32 v56, v56, v56")
    A("ds_write_b16 v6, v56 offset:1792")
    A("s_waitcnt lgkmcnt(0)")
    A("s_barrier")
    A(f"s_cmp_lg_u32 s{S_WAVE}, 0\ns_cbranch_scc1 T_NOP")
    A("v_lshrrev_b32 v5, 3, v0")
    A("v_and_b32 v6, 7, v0")
    A("v_lshlrev_b32 v7, 5, v6")
    A("v_cmp_eq_u32 vcc, 2, v5")
    A("v_lshlrev_b32 v32, 4, v5")
    A("s_nop 0")
    A("v_cndmask_b32 v32, v32, 12, vcc")
    A("v_add_u32 v32, v32, v7")
    A("v_cndmask_b32 v33, 4, 16, vcc")
    A("v_add_u32 v33, v33, v32")
    A("ds_read_b32 v36, v32 offset:1792")
    A("ds_read_b32 v37, v33 offset:1792")
    A("ds_read_b32 v38, v32 offset:1800")
    A(f"v_mov_b32 v39, s{S_TAG}")
    A("v_lshlrev_b32 v5, 14, v5")
    A("v_lshl_add_u32 v5, v6, 4, v5")
    A("s_lshl_b32 s9, s30, 9")
    A("s_lshl_b32 s10, s31, 7")
    A("s_add_u32 s9, s9, s10")
    A(f"s_add_u32 s9, s9, {WS_QA}")
    A("s_mov_b64 exec, 0xffffff")
    A("s_waitcnt lgkmcnt(0)")
    A(f"buffer_store_dwordx4 v[36:39], v5, {W}, s9 offen {ST}")
    A("s_mov_b64 exec, -1")
    stamp(4)
    A("T_NOP:")
    srd(A, 4, "wuv"); srd(A, 8, "wo")
    A("v_and_b32 v4, 1, v2")
    A("v_lshrrev_b32 v5, 1, v2")
    A("v_lshl_add_u32 v4, v4, 4, v5")
    A("v_lshlrev_b32 v4, 13, v4")
    A("v_lshl_add_u32 v4, v3, 4, v4")
    A("s_lshl_b32 s12, s31, 6")
    A(f"s_add_u32 s12, s12, s{S_WAVE}")
    A("s_lshl_b32 s12, s12, 14")
    A("s_lshl_b32 s13, s30, 8")
    A("s_add_u32 s12, s12, s13")
    A("v_mul_u32_u24 v9, 1280, v2")
    A("v_lshl_add_u32 v9, v3, 4, v9")
    A("s_lshl_b32 s13, s30, 5")
    A(f"s_add_u32 s13, s13, s{S_WAVE}")
    A(f"s_mul_i32 s13, s13, {4*1280}")
    n = [0]
    def pace():
        n[0] += 1
        if tail_win and n[0] >= tail_win: A(f"s_waitcnt vmcnt({tail_win-1})")
    def wo(t):
        A(f"s_add_u32 s14, s31, {t}")
        A("s_and_b32 s14, s14, 3")
        A(f"s_lshl_b32 s{34+t}, s14, 7")
        A(f"s_mul_i32 s14, s14, {32*1280}")
        A("s_add_u32 s14, s14, s13")
        for b in range(5):
            r = 120 + 20*t + 4*b
            A(f"buffer_load_dwordx4 v[{r}:{r+3}], v9, s[8:11], s14 offen offset:{b*256} {NT}")
            pace()
    wo(0)
    for t in range(4):
        A(f"buffer_load_dwordx4 v[{100+4*t}:{103+4*t}], v4, s[4:7], s12 offen {NT}")
        if t < 3: A(f"s_add_u32 s12, s12, {32*8192}")
        pace()
    wo(1); wo(2); wo(3)
    stamp(5)
    A("v_and_b32 v5, 3, v0")
    A("v_lshl_add_u32 v5, v5, 2, v2")
    A("v_lshlrev_b32 v5, 4, v5")
    A("s_lshl_b32 s12, s30, 2")
    A("s_add_u32 s12, s12, s31")
    A("s_lshl_b32 s12, s12, 3")
    A(f"s_add_u32 s12, s12, s{S_WAVE}")
    A("s_lshl_b32 s13, s12, 8")
    A(f"s_add_u32 s13, s13, {WS_ST}")
    A("s_lshl_b32 s12, s12, 12")
    A(f"s_add_u32 s12, s12, {WS_OP}")
    A("v_lshlrev_b32 v10, 4, v0")
    A("v_mov_b32 v6, 1024")
    A("v_lshlrev_b32 v7, 5, v3")
    A("v_lshl_add_u32 v7, v2, 4, v7")
    A(f"s_lshl_b32 s14, s{S_WAVE}, 6")
    A("v_lshlrev_b32 v8, 4, v2")
    A("v_add_u32 v8, s14, v8")
    A(f"s_lshl_b32 s14, s{S_WAVE}, 4")
    A("v_lshlrev_b32 v11, 2, v2")
    A("v_add_u32 v11, s14, v11")
    for t in range(4): A(f"v_add_u32 v{12+t}, s{34+t}, v11")
    spin_head("T_SPOLL")
    A(f"buffer_load_dwordx4 v[32:35], v5, {W}, s13 offen {LD}")
    A("s_waitcnt vmcnt(0)")
    tagchk(31, 35, True)
    spin_tail("T_SPOLL", 31)
    for t in range(4):
        A(f"buffer_load_dwordx4 v[{80+4*t}:{83+4*t}], v10, {W}, s12 offen offset:{t*1024} {LD}")
    stamp(6)
    A("s_mov_b32 exec_lo, 0x000f000f\ns_mov_b32 exec_hi, 0x000f000f")
    A("ds_max_f32 v6, v32")
    A("s_mov_b64 exec, -1")
    A("s_waitcnt lgkmcnt(0)")
    A("s_barrier")
    A("ds_read_b32 v36, v6")
    A("s_waitcnt lgkmcnt(0)")
    A("v_sub_f32 v36, v32, v36")
    A("v_exp_f32 v36, v36")
    A("s_nop 0")
    A("v_mul_f32 v37, v36, v33")
    A("s_mov_b32 exec_lo, 0x000f000f\ns_mov_b32 exec_hi, 0x000f000f")
    A("ds_add_f32 v6, v37 offset:4")
    A("s_mov_b64 exec, -1")
    for t in range(4):
        A(f"v_mov_b32_dpp v{38+t}, v36 quad_perm:[{t},{t},{t},{t}] row_mask:0xf bank_mask:0xf")
    A("v_cvt_pk_bf16_f32 v36, v38, v39")
    A("v_cvt_pk_bf16_f32 v37, v40, v41")
    sel_build(A, 36, 44)
    A("s_nop 0")
    for t in range(4):
        A(f"s_waitcnt vmcnt({3-t})")
        A(f"v_mfma_f32_16x16x32_bf16 v[40:43], v[{44+4*t}:{47+4*t}], v[{80+4*t}:{83+4*t}], {'0' if t==0 else 'v[40:43]'}")
    stamp(7)
    A("s_nop 7")
    A("s_mov_b32 exec_hi, 0")
    for r in range(4): A(f"ds_add_f32 v7, v{40+r} offset:{4*r}")
    A("s_mov_b64 exec, -1")
    A("s_waitcnt lgkmcnt(0)")
    A("s_barrier")
    A("ds_read_b128 v[40:43], v8")
    A("ds_read_b32 v39, v6 offset:4")
    A("s_waitcnt lgkmcnt(0)")
    A("v_rcp_f32 v39, v39")
    A("s_nop 0")
    for r in range(4): A(f"v_mul_f32 v{40+r}, v{40+r}, v39")
    A("v_cvt_pk_bf16_f32 v36, v40, v41")
    A("v_cvt_pk_bf16_f32 v37, v42, v43")
    sel_build(A, 36, 44)
    A("s_nop 1")
    for t in range(4):
        A(f"v_mfma_f32_16x16x32_bf16 v[40:43], v[{44+4*t}:{47+4*t}], v[{100+4*t}:{103+4*t}], {'0' if t==0 else 'v[40:43]'}")
    A("s_nop 7")
    A("s_mov_b32 exec_hi, 0")
    for r in range(4): A(f"ds_add_f32 v7, v{40+r} offset:{512+4*r}")
    A("s_mov_b64 exec, -1")
    A("s_waitcnt lgkmcnt(0)")
    A("s_barrier")
    for t in range(4): A(f"ds_read_b32 v{40+t}, v{12+t} offset:512")
    A("s_waitcnt lgkmcnt(0)")
    A("v_cvt_pk_bf16_f32 v36, v40, v41")
    A("v_cvt_pk_bf16_f32 v37, v42, v43")
    sel_build(A, 36, 44)
    A("s_nop 1")
    for t in range(4):
        for b in range(5):
            r = 120 + 20*t + 4*b
            A(f"v_mfma_f32_16x16x32_bf16 v[{60+4*b}:{63+4*b}], v[{44+4*t}:{47+4*t}], v[{r}:{r+3}], {'0' if t==0 else 'v[%d:%d]'%(60+4*b,63+4*b)}")
    A(f"s_mul_i32 s12, s{S_WAVE}, 2560")
    A("v_add_u32 v7, s12, v7")
    A("s_nop 6")
    A("s_mov_b32 exec_hi, 0")
    for b in range(5): A(f"ds_write_b128 v7, v[{60+4*b}:{63+4*b}] offset:{2048+512*b}")
    A("s_mov_b64 exec, -1")
    A(f"s_lshl_b32 s12, s{S_WAVE}, 6")
    A("v_add_u32 v5, s12, v0")
    A("v_lshlrev_b32 v6, 4, v5")
    A("s_waitcnt lgkmcnt(0)")
    A("s_barrier")
    A(f"s_cmp_ge_u32 s{S_WAVE}, 3\ns_cbranch_scc1 T_DONE")
    for w in range(8): A(f"ds_read_b128 v[{44+4*w}:{47+4*w}], v6 offset:{2048+2560*w}")
    A("v_lshrrev_b32 v6, 1, v5")
    A("v_lshlrev_b32 v6, 12, v6")
    A("v_and_b32 v7, 1, v5")
    A("v_lshl_add_u32 v6, v7, 4, v6")
    A("s_lshl_b32 s12, s33, 5")
    A(f"s_add_u32 s12, s12, {WS_FA}")
    A("v_cmp_gt_u32 vcc, 160, v5")
    A("s_waitcnt lgkmcnt(0)")
    for st in (16, 8, 4):
        for i in range(st): A(f"v_add_f32 v{44+i}, v{44+i}, v{44+st+i}")
    pack24(A, 44, 48, 52)
    A(f"v_mov_b32 v51, s{S_TAG}")
    A("s_and_b64 exec, exec, vcc")
    A(f"buffer_store_dwordx4 v[48:51], v6, {W}, s12 offen {ST}")
    A("s_mov_b64 exec, -1")
    A("T_DONE:")
    stamp(8)
    finish()
    A("ATT:")
    A(f"s_cmp_ge_u32 s{S_WAVE}, 4\ns_cbranch_scc1 SIDE")
    att_addr(A)
    att_issue(A, 33, NT, att_win)
    stamp(1)
    A("s_waitcnt lgkmcnt(0)")
    A(f"s_add_u32 s{S_TAG}, s{S_TAG}, 1")
    att_main(A, 33, ST, stamp)
    stamp(8)
    finish()
    A("SIDE:")
    A("s_waitcnt lgkmcnt(0)")
    A(f"s_add_u32 s{S_TAG}, s{S_TAG}, 1")
    A(f"s_cmp_lg_u32 s{S_WAVE}, 7\ns_cbranch_scc1 S_NOQ")
    xw_compute_x(A, ST, 0)
    stamp(2)
    A("S_NOQ:")
    A(f"s_sub_u32 s8, s{S_WAVE}, 4")
    A("v_lshlrev_b32 v2, 4, v0")
    A("s_lshl_b32 s9, s8, 12")
    A(f"s_add_u32 s9, s9, {WS_QA}")
    A("s_add_u32 s10, s9, 16384")
    A("s_add_u32 s11, s9, 32768")
    A("v_and_b32 v3, 31, v0")
    A("v_lshrrev_b32 v4, 5, v0")
    A("v_and_b32 v5, 7, v0")
    A("v_xor_b32 v4, v4, v5")
    A("v_lshlrev_b32 v4, 4, v4")
    A("v_lshl_add_u32 v4, v3, 10, v4")
    A("s_lshl_b32 s8, s8, 7")
    A(f"s_add_u32 s8, s8, {QL}")
    A("v_add_u32 v4, s8, v4")
    for q in range(1, 4): A(f"v_xor_b32 v{4+q}, {q << 5}, v4")
    if hint:
        spin_head("S_HINT")
        A(f"buffer_load_dwordx4 v[200:203], v2, {W}, s11 offen offset:3072 {LD}")
        A("s_waitcnt vmcnt(0)")
        tagchk(31, 203, True)
        spin_tail("S_HINT", 31, 4)
    stamp(3)
    spin_head("S_QA")
    for q in range(4):
        for ty in range(3):
            r = 200 + 12*q + 4*ty
            A(f"buffer_load_dwordx4 v[{r}:{r+3}], v2, {W}, s{9+ty} offen offset:{q*1024} {LD}")
    for q in range(4):
        for ty in range(3):
            r = 200 + 12*q + 4*ty
            A(f"s_waitcnt vmcnt({11 - 3*q - ty})")
            tagchk(31, r+3, q == 0 and ty == 0)
            if ty < 2: A(f"ds_write_b96 v{4+q}, v[{r}:{r+2}] offset:{ty*512}")
            else: A(f"ds_write2_b32 v{4+q}, v{r}, v{r+1} offset0:3 offset1:131")
    A("s_waitcnt lgkmcnt(0)")
    spin_tail("S_QA", 31)
    stamp(4)
    A("s_barrier")
    A(f"s_cmp_eq_u32 s{S_WAVE}, 7\ns_cbranch_scc1 S_FIN")
    A("s_cmp_ge_u32 s33, 108\ns_cbranch_scc1 S_END")
    A(f"s_cmp_eq_u32 s{S_WAVE}, 6\ns_cbranch_scc1 S_F2")
    A(f"s_cmp_eq_u32 s{S_WAVE}, 4\ns_cbranch_scc1 S_G")
    xw_setup_ffn(A, 33, 1); A("s_branch S_GO")
    A("S_G:"); xw_setup_ffn(A, 33, 0)
    A("S_GO:")
    xw_issue_paced(A, NT, ffn_win, barriers=3)
    stamp(5)
    xw_compute_x(A, ST, 0)
    stamp(8)
    A("S_END:")
    finish()
    A("S_F2:")
    A("s_barrier\ns_barrier\ns_barrier")
    ffn2_issue(A, 33, NT)
    ffn2_compute_x(A, 33, LD, ST, spin_head, spin_tail, tagchk, stamp)
    stamp(8)
    finish()
    A("S_FIN:")
    A("s_cmp_ge_u32 s33, 80\ns_cbranch_scc1 S_END")
    A("s_barrier\ns_barrier\ns_barrier")
    final_gate(A)
    final_gather_x(A, 33, WS_FB, 108, 33, LD, "F_B", spin_head, spin_tail, tagchk, 8)
    stamp(6)
    final_gather_x(A, 33, WS_FA, 128, 32, LD, "F_A", spin_head, spin_tail, tagchk, 1)
    stamp(7)
    final_out(A, 33)
    A("s_cmp_lg_u32 s33, 0\ns_cbranch_scc1 F_NOE")
    A("s_mov_b64 exec, 1")
    A(f"v_mov_b32 v5, 0\nv_mov_b32 v6, s{S_TAG}")
    A(f"buffer_store_dword v6, v5, {W}, 0 offen")
    if amp is not None:
        A("s_memrealtime s[76:77]")
        A("s_waitcnt lgkmcnt(0)")
        A(f"s_sub_u32 s78, s{80+2*amp}, s80")
        A("s_lshl_b32 s78, s78, 3")
        A("s_min_u32 s78, s78, 100000")
        A("AMPL:")
        A("s_memrealtime s[74:75]")
        A("s_waitcnt lgkmcnt(0)")
        A("s_sub_u32 s79, s74, s76")
        A("s_cmp_lt_u32 s79, s78")
        A("s_cbranch_scc1 AMPL")
    A("F_NOE:")
    A("s_mov_b64 exec, -1")
    stamp(8)
    finish()
    if stamps:
        A("DUMP:")
        A("s_waitcnt vmcnt(0)")
        stamp(9)
        A("s_waitcnt lgkmcnt(0)")
        for i in range(10): A(f"v_mov_b32 v{8+i}, s{80+2*i}")
        A("s_lshl_b32 s8, s2, 3")
        A(f"s_add_u32 s8, s8, s{S_WAVE}")
        A("s_lshl_b32 s8, s8, 6")
        A(f"s_add_u32 s8, s8, {WS_DBG}")
        A("v_mov_b32 v5, 0")
        A("s_mov_b64 exec, 1")
        A(f"buffer_store_dwordx4 v[8:11], v5, {W}, s8 offen")
        A(f"buffer_store_dwordx4 v[12:15], v5, {W}, s8 offen offset:16")
        A(f"buffer_store_dwordx2 v[16:17], v5, {W}, s8 offen offset:32")
    A("END:\ns_endpgm")
    hdr = open("gated_mix__compressed_kv_cla__geglu_ffn__decode.s.ref").read().split("; Override")[0]
    txt = hdr + "; @launch grid=(256,1,1) block=(512,1,1) lds=163840\n" + '.amdgcn_target "amdgcn-amd-amdhsa--gfx950"\n.text\n' + A.text() \
        + ".fill 4096, 4, 0xbf810000\n" + '.section .rodata,"a"\n.p2align 6\n' + kdesc(KN, 256)
    return txt

def xw_compute_x(A, ST, extra):
    B = Asm(); xw_compute(B, ST)
    import re
    for l in B.l:
        m = re.match(r"\s*s_waitcnt vmcnt\((\d+)\)", l)
        if m: l = f"  s_waitcnt vmcnt({int(m.group(1)) + extra})"
        A.l.append(l)
def xw_issue_paced(A, NT, win, barriers):
    B = Asm(); xw_issue(B, NT)
    n = 0; done = False
    for l in B.l:
        A.l.append(l)
        if "buffer_load_dwordx4 v[1" in l and "s[4:7]" in l:
            n += 1
            if win and n == win and not done:
                for _ in range(barriers): A("s_barrier")
                done = True
            if win and n >= win and n < 20: A(f"s_waitcnt vmcnt({win-1})")
    if not done:
        for _ in range(barriers): A("s_barrier")
def att_addr(A):
    B = Asm(); att_compute(B, 33, "")
    i = B.l.index("  s_waitcnt vmcnt(0)")
    A.l += B.l[:i]
def att_issue(A, sa, NT, window):
    B = Asm(); roles.att_issue(B, sa, NT, window)
    A.l += [l.replace("v2", "v62").replace("v3,", "v63,") for l in B.l]
def att_main(A, sa, ST, stamp):
    B = Asm(); att_compute(B, sa, ST)
    i = B.l.index("  s_waitcnt vmcnt(0)")
    nb = 0
    for k, l in enumerate(B.l[i:]):
        A.l.append(l)
        if k == 0: stamp(2)
        if l.strip() == "s_barrier":
            nb += 1
            if nb == 1: stamp(3)
            if nb == 2: stamp(4)
            if nb == 4: stamp(5)
        if l.strip() == "v_add_f32 v61, v40, v41": stamp(6)
        if l.strip() == "s_mov_b32 exec_hi, 0": stamp(7)
def ffn2_compute_x(A, sa, LD, ST, spin_head, spin_tail, tagchk, stamp):
    B = Asm(); ffn2_compute(B, sa, LD, ST, True)
    for l in B.l:
        if "buffer_load_dwordx4 v[32:35]" in l:
            spin_head("F2_POLL"); A.l.append(l); continue
        A.l.append(l)
        if l.strip() == "s_waitcnt vmcnt(0)":
            tagchk(31, 33, True); tagchk(31, 35, False); spin_tail("F2_POLL", 31, 4); stamp(6)
def final_gather_x(A, sa, base, nprod, dst, LD, name, spin_head, spin_tail, tagchk, sleep):
    B = Asm(); final_gather(B, sa, base, nprod, dst, LD, True)
    first = True
    for l in B.l:
        if "buffer_load_dwordx4" in l and first:
            spin_head(name); first = False
        A.l.append(l)
        if l.strip() == "s_waitcnt vmcnt(0)":
            tagchk(38, 55, True)
            if nprod < 128:
                A(f"v_cmp_gt_u32 vcc, {2*(nprod-96)}, v0")
                A("s_nop 1")
                A("v_cndmask_b32 v38, 0, v38, vcc")
            for i in range(3): tagchk(38, 43+4*i, False)
            spin_tail(name, 38, sleep)

if __name__ == "__main__":
    kw = eval("dict(%s)" % (sys.argv[2] if len(sys.argv) > 2 else ""))
    open(sys.argv[1], "w").write(gen(**kw))
```

```python
import sys, math
from asmlib import *
KN = "gated_mix__compressed_kv_cla__geglu_ffn__decode_kernel"
WS_CX = 0x1000; WS_CX2 = 0x600000; WS_QP = 0x180000; WS_QP2 = 0x1c0000; WS_QA = 0x40000; WS_ST = 0x50000; WS_FA = 0x90000; WS_FB = 0xE0000; WS_GP = 0x140000; WS_OP = 0x200000
WS_SIZE = 0x640000; WS_DBG = 0x700000
SZ = dict(x=1280, ckv=16384*1024, wq=640*8192, wuk=512*8192, wuv=512*8192, wo=32*128*1280, wg=640*3456, wu=640*3456, wd=1728*1280, gw=1280, out=1280)
P = dict(x=40, ckv=42, wq=44, wuk=46, wuv=48, wo=50, wg=54, wu=56, wd=58, gw=60, out=62)
QSCALE = (128 ** -0.5) * math.log2(math.e)
QL = 131072
SPIN = 200000
WV = "s3"; TAG = "s24"; W = "s[16:19]"
L_OUT = 32768; L_PART = 53248; L_Q = 55808; L_QA = 56064; L_M = 56320; L_L = 56352; L_QP = 57344

def gen(NT="nt", stamps=False, att_win=8, att_w0=2, att_n0=8, trig=32, tail_win=0, tail_win0=1, tail_n0=2, prefetch=True, poll_sleep=2, amp=None, NTW=None,
        cyc=False, prio=True, st_full=True, fa_sleep=1, uk_wait=3, uk_early=6, dbgf=False, apre=True, att_w1=4, att_n1=6, dual=True):
    LD = "sc1"; ST = "sc1"
    if NTW is None: NTW = NT
    A = Asm()
    def stamp(i):
        if stamps: A(f"{'s_memtime' if cyc else 's_memrealtime'} s[{80+2*i}:{81+2*i}]")
    def finish():
        A("s_branch DUMP" if stamps else "s_endpgm")
    def srd(d, name):
        A(f"s_mov_b32 s{d}, s{P[name]}\ns_mov_b32 s{d+1}, s{P[name]+1}\ns_mov_b32 s{d+2}, {SZ[name]}\ns_mov_b32 s{d+3}, 0x20000")
    def spin_head(name):
        A(f"s_mov_b32 s25, {SPIN}\n{name}:")
    def spin_tail(name, acc, sleep=poll_sleep):
        done = A.label("OK")
        A(f"v_cmp_ne_u32 vcc, 0, v{acc}\ns_cbranch_vccz {done}")
        if sleep: A(f"s_sleep {sleep}")
        A(f"s_sub_u32 s25, s25, 1\ns_cmp_lg_u32 s25, 0\ns_cbranch_scc1 {name}\n{done}:")
    def tagchk(acc, v, first):
        if first: A(f"v_xor_b32 v{acc}, {TAG}, v{v}")
        else: A(f"v_bitop3_b32 v{acc}, v{v}, {TAG}, v{acc} bitop3:0xbe")
    def selectors(ve):
        A(f"v_and_b32 v25, 1, v{ve}")
        A("v_cmp_eq_u32 vcc, 1, v25")
        A("v_mov_b32 v26, 0x0c0c0100\nv_mov_b32 v25, 0x01000c0c")
        A("v_cndmask_b32 v26, v26, v25, vcc")
        A("v_mov_b32 v27, 0x0c0c0302\nv_mov_b32 v25, 0x03020c0c")
        A("v_cndmask_b32 v27, v27, v25, vcc")
        A(f"v_lshrrev_b32 v25, 2, v{ve}")
        for k in range(2):
            A(f"v_cmp_eq_u32 vcc, {k}, v25")
            A(f"v_mov_b32 v{20+k}, 0x0c0c0c0c\nv_mov_b32 v{22+k}, 0x0c0c0c0c")
            A(f"v_cndmask_b32 v{20+k}, v{20+k}, v26, vcc\nv_cndmask_b32 v{22+k}, v{22+k}, v27, vcc")
        A(f"v_and_b32 v25, 2, v{ve}")
        A("v_cmp_eq_u32 vcc, 2, v25")
        A("v_mov_b32 v24, 0x4444\nv_mov_b32 v25, 0xeeee")
        A("v_cndmask_b32 v24, v24, v25, vcc")
    def sel4(dst, src):
        for k in range(4): A(f"v_perm_b32 v{dst+k}, v{src}, v{src}, v{20+k}")
    def smf(d, a, b): A(f"v_smfmac_f32_16x16x64_bf16 v[{d}:{d+3}], v[{a}:{a+3}], v[{b}:{b+7}], v24")
    def pack24(v, d, t):
        A(f"v_perm_b32 v{d}, v{v+1}, v{v}, s70\nv_perm_b32 v{d+1}, v{v+3}, v{v+2}, s70")
        A(f"v_perm_b32 v{t}, v{v+1}, v{v}, s71\nv_perm_b32 v{d+2}, v{v+3}, v{v+2}, s72\nv_or_b32 v{d+2}, v{d+2}, v{t}")
    def pack24_consts(): A("s_mov_b32 s70, 0x07060302\ns_mov_b32 s71, 0x0c0c0501\ns_mov_b32 s72, 0x05010c0c")
    def rnd(v): A(f"v_cvt_pk_bf16_f32 v{v}, v{v}, v{v}\nv_lshlrev_b32 v{v}, 16, v{v}")
    def common_loads():
        A("s_load_dwordx16 s[40:55], s[0:1], 0")
        A("s_load_dwordx8 s[56:63], s[0:1], 64")
    def common_setup():
        A(f"s_mov_b32 s18, {(WS_DBG + 0x40000) if stamps else WS_SIZE}\ns_mov_b32 s19, 0x20000")
    def code_prefetch(wave):
        if not prefetch: return
        l = A.label("NOPF")
        A(f"s_cmp_lg_u32 {WV}, {wave}\ns_cbranch_scc1 {l}")
        A(f"s_getpc_b64 s[26:27]\nPFB{wave}:\ns_sub_u32 s26, s26, PFB{wave}-{KN}\ns_subb_u32 s27, s27, 0")
        A("s_bfe_u32 s28, s2, 0x30003\ns_lshl_b32 s28, s28, 11")
        A("v_lshlrev_b32 v254, 7, v0\nv_add_u32 v254, s28, v254")
        A("s_mov_b64 exec, 0xffff\nglobal_load_dword v255, v254, s[26:27]\ns_mov_b64 exec, -1")
        A(f"{l}:")

    A(f".globl {KN}\n.p2align 8\n.type {KN},@function\n{KN}:")
    stamp(0)
    A("s_load_dwordx8 s[64:71], s[0:1], 0")
    A("s_load_dwordx2 s[16:17], s[0:1], 104")
    A("v_cmp_gt_u32 vcc, 256, v0\ns_lshr_b32 s31, s2, 5\ns_and_b32 s30, s2, 31\ns_lshl_b32 s8, s30, 8")
    A("v_lshlrev_b32 v1, 9, v0\nv_and_b32 v1, 0xffffe000, v1\nv_and_b32 v3, 15, v0\nv_lshl_or_b32 v1, v3, 4, v1")
    A("s_cbranch_vccz HI")
    A(f"s_mul_i32 s9, s31, {80*8192}\ns_add_u32 s9, s9, s8\nv_add_u32 v4, s9, v1\ns_mov_b32 s10, 0x20000")
    A("s_cmp_ge_u32 s31, 8\ns_cbranch_scc1 END")
    A("s_waitcnt lgkmcnt(0)")
    for i in range(5):
        A(f"global_load_dwordx4 v[{120+4*i}:{123+4*i}], v4, s[68:69] {NT}")
        if i < 4: A("v_add_u32 v4, s10, v4")
    A("v_lshrrev_b32 v5, 6, v0\nv_bfe_u32 v7, v0, 4, 1\nv_lshlrev_b32 v7, 2, v7\nv_lshl_add_u32 v7, v5, 3, v7\ns_mul_i32 s11, s31, 160\nv_add_u32 v7, s11, v7")
    A("v_bfe_u32 v6, v0, 5, 1\nv_lshl_add_u32 v6, v6, 5, v7")
    A("global_load_dword v8, v6, s[64:65]\nglobal_load_dword v9, v6, s[64:65] offset:64\nglobal_load_dword v10, v7, s[64:65] offset:128")
    A(f"s_load_dword {TAG}, s[16:17], 0")
    A(f"s_lshl_b32 s9, s30, 13\ns_add_u32 s9, s9, {WS_QP}\ns_lshl_b32 s11, s31, 10\ns_add_u32 s11, s11, s9")
    if dual:
        A(f"v_lshrrev_b32 v6, 5, v0\nv_lshlrev_b32 v6, 7, v6\nv_add_u32 v6, s11, v6\nv_add_u32 v6, {WS_QP2-WS_QP}, v6")
        A(f"global_load_dword v31, v6, s[16:17] {LD}")
    common_loads()
    A(f"v_readfirstlane_b32 {WV}, v5")
    A("v_and_b32 v0, 63, v0\nv_lshrrev_b32 v2, 4, v0")
    if stamps:
        for i in range(1, 10): A(f"s_mov_b64 s[{80+2*i}:{81+2*i}], 0")
    stamp(1)
    common_setup()
    code_prefetch(3)
    A("s_and_b32 s33, s2, 127")
    selectors(3)
    for i in range(4): A(f"v_mov_b32 v{140+i}, 0\nv_mov_b32 v{32+i}, 0")
    A(f"v_lshlrev_b32 v11, 5, v3\nv_lshl_add_u32 v11, v2, 4, v11\ns_lshl_b32 s12, {WV}, 9\ns_add_u32 s12, s12, {QL}\nv_add_u32 v11, s12, v11")
    A(f"v_lshlrev_b32 v5, 4, v0\nv_lshlrev_b32 v17, 2, v0\nv_lshlrev_b32 v18, 3, v0\nv_add_u32 v18, {QL}, v18")
    A(f"s_waitcnt lgkmcnt(0)\ns_add_u32 {TAG}, {TAG}, 1")
    A(f"v_mov_b32 v37, {TAG}\nv_mov_b32 v39, {TAG}")
    A("s_waitcnt vmcnt(0)")
    if dbgf: stamp(6)
    for U in range(3): sel4(40+4*U, 8+U)
    A("s_nop 0")
    for U in range(3): smf(32, 40+4*U, 120+8*U)
    A("s_nop 6")
    A("s_mov_b32 exec_hi, 0\nds_write_b128 v11, v[32:35]\ns_mov_b64 exec, -1")
    A("s_waitcnt lgkmcnt(0)\ns_barrier")
    A(f"s_cmp_lg_u32 {WV}, 0\ns_cbranch_scc1 Q_DONE")
    for w in range(4): A(f"ds_read_b64 v[{60+2*w}:{61+2*w}], v18 offset:{512*w}")
    A("s_waitcnt lgkmcnt(2)\nv_pk_add_f32 v[60:61], v[60:61], v[62:63]")
    A("s_waitcnt lgkmcnt(0)\nv_pk_add_f32 v[64:65], v[64:65], v[66:67]")
    A("v_add_f32 v36, v60, v64\nv_add_f32 v38, v61, v65")
    if dual: A(f"s_add_u32 s12, s11, {WS_QP2-WS_QP}\nbuffer_store_dwordx4 v[36:39], v5, {W}, s12 offen")
    A(f"buffer_store_dwordx4 v[36:39], v5, {W}, s11 offen {ST}")
    stamp(2)
    A("Q_DONE:")
    A("s_cmp_ge_u32 s31, 4\ns_cbranch_scc1 SIDE")
    A(f"s_cmp_lg_u32 {WV}, 1\ns_cbranch_scc1 T_NOG")
    A("v_lshrrev_b32 v12, 3, v0\nv_and_b32 v13, 7, v0\nv_lshlrev_b32 v14, 5, v13")
    A("v_cmp_eq_u32 vcc, 2, v12\nv_lshlrev_b32 v15, 4, v12\ns_nop 0")
    A("v_cndmask_b32 v15, v15, 12, vcc\nv_add_u32 v15, v15, v14\nv_cndmask_b32 v16, 4, 16, vcc\nv_add_u32 v16, v16, v15")
    A("v_lshlrev_b32 v12, 14, v12\nv_lshl_add_u32 v12, v13, 4, v12")
    A(f"s_lshl_b32 s10, s30, 9\ns_lshl_b32 s12, s31, 7\ns_add_u32 s10, s10, s12\ns_add_u32 s10, s10, {WS_QA}")
    A(f"v_mov_b32 v55, {TAG}")
    spin_head("T_QPOLL")
    if dual: A(f"s_and_b32 s12, s25, 3\ns_cmp_eq_u32 s12, 1\ns_cselect_b32 s12, 0, {WS_QP2-WS_QP}\ns_add_u32 s12, s12, s9")
    else: A("s_mov_b32 s12, s9")
    A("s_add_u32 s13, s12, 4096")
    for e in range(8):
        A(f"buffer_load_dwordx4 v[{60+4*e}:{63+4*e}], v5, {W}, s{12+(e>>2)} offen offset:{(e&3)*1024} {LD}")
    for e in range(8):
        A(f"s_waitcnt vmcnt({7-e})")
        tagchk(31, 61+4*e, e == 0); tagchk(31, 63+4*e, False)
        if e & 1: A(f"v_add_f32 v{56+4*e}, v{56+4*e}, v{60+4*e}\nv_add_f32 v{58+4*e}, v{58+4*e}, v{62+4*e}")
    spin_tail("T_QPOLL", 31, 0)
    stamp(3)
    if dbgf: A(f"s_waitcnt lgkmcnt(0)\ns_sub_u32 s96, {SPIN+1}, s25\ns_add_u32 s96, s96, s80")
    A("v_add_f32 v60, v60, v68\nv_add_f32 v62, v62, v70\nv_add_f32 v76, v76, v84\nv_add_f32 v78, v78, v86")
    A("v_add_f32 v60, v60, v76\nv_add_f32 v62, v62, v78")
    A("v_cvt_pk_bf16_f32 v60, v60, v62")
    A(f"ds_write_b32 v17, v60 offset:{L_Q}")
    A("s_waitcnt lgkmcnt(0)\ns_barrier\ns_barrier")
    A(f"ds_read_b32 v52, v15 offset:{L_QA}\nds_read_b32 v53, v16 offset:{L_QA}\nds_read_b32 v54, v15 offset:{L_QA+8}")
    A("s_mov_b64 exec, 0xffffff")
    A("s_waitcnt lgkmcnt(0)")
    A(f"buffer_store_dwordx4 v[52:55], v12, {W}, s10 offen {ST}")
    A("s_mov_b64 exec, -1")
    stamp(4)
    A("s_branch T_NOP")
    A("T_NOG:\ns_barrier\ns_barrier\ns_branch T_NOP")
    A("HI:")
    A("s_cmp_ge_u32 s31, 4\ns_cbranch_scc1 ATT")
    A("s_lshl_b32 s9, s31, 20\ns_add_u32 s9, s9, s8\ns_sub_u32 s9, s9, 0x20000\nv_add_u32 v19, s9, v1\ns_mov_b32 s10, 0x20000")
    A("s_waitcnt lgkmcnt(0)")
    A(f"s_load_dword {TAG}, s[16:17], 0")
    common_loads()
    A("v_lshrrev_b32 v5, 6, v0\nv_and_b32 v0, 63, v0\nv_lshrrev_b32 v2, 4, v0")
    A(f"v_readfirstlane_b32 {WV}, v5")
    if stamps:
        for i in range(1, 10): A(f"s_mov_b64 s[{80+2*i}:{81+2*i}], 0")
    common_setup()
    A("s_and_b32 s33, s2, 127")
    def wuk(t):
        A(f"global_load_dwordx4 v[{200+4*t}:{203+4*t}], v19, s[70:71] {NT}")
        if t < 7: A("v_add_u32 v19, s10, v19")
    for t in range(uk_early): wuk(t)
    stamp(1)
    A("s_barrier")
    for t in range(uk_early, 8): wuk(t)
    selectors(3)
    A("v_lshrrev_b32 v6, 3, v3\nv_bfe_u32 v7, v3, 2, 1\nv_lshl_add_u32 v6, v7, 1, v6\nv_bfe_u32 v7, v3, 1, 1\nv_lshl_add_u32 v6, v7, 2, v6\nv_lshl_add_u32 v6, v6, 4, v2")
    A(f"s_lshl_b32 s9, {WV}, 2\ns_sub_u32 s9, s9, 16\nv_add_u32 v6, s9, v6\nv_lshlrev_b32 v6, 1, v6")
    A("v_cmp_ne_u32 vcc, 0, v7\nv_lshlrev_b32 v7, 4, v3")
    for t in range(8): A(f"v_mov_b32 v{56+t}, 0")
    A(f"s_waitcnt lgkmcnt(0)\ns_add_u32 {TAG}, {TAG}, 1")
    A("s_waitcnt vmcnt(0)")
    if dbgf: stamp(7)
    A("s_barrier")
    A(f"ds_read_b128 v[32:35], v7 offset:{L_Q}")
    A("s_waitcnt lgkmcnt(0)")
    for k in range(4):
        for t in range(8):
            A(f"v_dot2c_f32_bf16 v{56+t}, v{200+4*t+k}, v{32+k}")
    for p_ in range(4): A(f"v_add_f32_dpp v{56+2*p_}, v{56+2*p_}, v{56+2*p_} row_ror:8 row_mask:0xf bank_mask:0x3")
    for p_ in range(4): A(f"v_add_f32_dpp v{56+2*p_}, v{57+2*p_}, v{57+2*p_} row_ror:8 row_mask:0xf bank_mask:0xc")
    A("v_add_f32_dpp v56, v56, v56 row_half_mirror row_mask:0xf bank_mask:0x5")
    A("v_add_f32_dpp v60, v60, v60 row_half_mirror row_mask:0xf bank_mask:0x5")
    A("v_add_f32_dpp v56, v58, v58 row_half_mirror row_mask:0xf bank_mask:0xa")
    A("v_add_f32_dpp v60, v62, v62 row_half_mirror row_mask:0xf bank_mask:0xa")
    A("s_nop 0")
    A("v_add_f32_dpp v56, v56, v56 quad_perm:[2,3,0,1] row_mask:0xf bank_mask:0xf")
    A("v_add_f32_dpp v60, v60, v60 quad_perm:[2,3,0,1] row_mask:0xf bank_mask:0xf")
    A("v_cndmask_b32 v56, v56, v60, vcc\ns_nop 1")
    A("v_add_f32_dpp v56, v56, v56 quad_perm:[1,0,3,2] row_mask:0xf bank_mask:0xf")
    A(f"v_mul_f32 v56, {hex(f2u(QSCALE))}, v56")
    A("v_cvt_pk_bf16_f32 v56, v56, v56")
    A(f"ds_write_b16 v6, v56 offset:{L_QA}")
    A("s_waitcnt lgkmcnt(0)\ns_barrier")
    A("T_NOP:")
    pack24_consts()
    srd(4, "wuv"); srd(8, "wo")
    A("v_lshlrev_b32 v4, 17, v2\nv_lshl_add_u32 v4, v3, 4, v4")
    A(f"s_lshl_b32 s12, s31, 6\ns_add_u32 s12, s12, {WV}\ns_lshl_b32 s12, s12, 14\ns_lshl_b32 s13, s30, 8\ns_add_u32 s12, s12, s13")
    A("v_mul_u32_u24 v9, 1280, v2\nv_lshl_add_u32 v9, v3, 4, v9")
    A(f"s_lshl_b32 s34, s30, 2\ns_add_u32 s34, s34, s31")
    A(f"s_mul_i32 s13, s34, {32*1280}\ns_lshl_b32 s14, {WV}, 8\ns_add_u32 s13, s13, s14")
    A(f"s_lshl_b32 s35, s34, 10\ns_lshl_b32 s14, {WV}, 7\ns_add_u32 s35, s35, s14\ns_add_u32 s35, s35, {WS_CX}")
    A(f"s_add_u32 s36, s35, {WS_CX2-WS_CX}\nv_mov_b32 v11, 0")
    A(f"s_lshl_b32 s15, {WV}, 12")
    if tail_n0: A(f"s_cmp_eq_u32 {WV}, 7\ns_cbranch_scc1 T_TRK\ns_barrier\nT_TRK:")
    for t in range(4):
        A(f"s_add_u32 m0, s15, {t*1024}")
        A(f"s_add_u32 s14, s12, {(64*(t&1) + (t>>1))*8192}")
        A(f"buffer_load_dwordx4 v4, s[4:7], s14 offen {NT} lds")
        if t < tail_n0:
            l_ = A.label("TRK")
            A(f"s_cmp_lg_u32 {WV}, 7\ns_cbranch_scc1 {l_}\ns_waitcnt vmcnt(0)")
            if t == tail_n0 - 1: A("s_barrier")
            A(f"{l_}:")
    A(f"buffer_load_dword v31, v11, {W}, s36 offen {LD}")
    A(f"s_cmp_ge_u32 {WV}, 5\ns_cbranch_scc1 T_NOWO")
    for t in range(8):
        A(f"buffer_load_dwordx4 v[{120+4*t}:{123+4*t}], v9, s[8:11], s13 offen {NT}")
        if t < 7: A("s_add_u32 s13, s13, 5120")
    A("T_NOWO:")
    A("v_bfe_u32 v5, v0, 1, 1\nv_lshlrev_b32 v5, 3, v5\nv_lshl_add_u32 v5, v2, 1, v5\nv_and_b32 v6, 1, v0\nv_add_u32 v5, v5, v6")
    A(f"s_lshl_b32 s12, s34, 3\ns_add_u32 s12, s12, {WV}")
    if st_full:
        A(f"v_lshlrev_b32 v5, 11, v5\ns_lshl_b32 s13, {WV}, 15\ns_lshl_b32 s14, s31, 9\ns_add_u32 s13, s13, s14\ns_lshl_b32 s14, s30, 4\ns_add_u32 s13, s13, s14\ns_add_u32 s13, s13, {WS_ST}")
    else:
        A(f"v_lshlrev_b32 v5, 4, v5\ns_lshl_b32 s13, s12, 8\ns_add_u32 s13, s13, {WS_ST}")
    A(f"s_lshl_b32 s12, s12, 12\ns_add_u32 s12, s12, {WS_OP}")
    A("v_lshlrev_b32 v10, 4, v0")
    A(f"s_lshl_b32 s14, {WV}, 2\nv_mov_b32 v6, s14")
    A(f"v_lshlrev_b32 v7, 4, v3\nv_lshl_add_u32 v7, v2, 3, v7\ns_mul_i32 s14, {WV}, 272\nv_add_u32 v7, s14, v7")
    A("v_and_b32 v8, 7, v0\nv_mul_u32_u24 v8, 272, v8\nv_lshl_add_u32 v8, v2, 4, v8")
    A(f"v_bfe_u32 v12, v0, 2, 2\nv_lshl_add_u32 v12, v2, 3, v12\nv_lshlrev_b32 v12, 8, v12\nv_and_b32 v13, 3, v0\nv_lshl_add_u32 v12, v13, 3, v12\ns_lshl_b32 s14, {WV}, 5\nv_add_u32 v12, s14, v12")
    A("v_lshlrev_b32 v14, 3, v3")
    A("v_and_b32 v15, 12, v3\nv_add_u32 v15, v15, v2\nv_lshlrev_b32 v15, 4, v15\nv_lshl_add_u32 v15, v13, 10, v15")
    A(f"s_lshl_b32 s37, s30, 12\ns_lshl_b32 s14, s31, 8\ns_add_u32 s37, s37, s14\ns_add_u32 s37, s37, {WS_CX}")
    A("v_lshlrev_b32 v19, 12, v3\nv_lshl_add_u32 v19, v2, 4, v19")
    A(f"s_lshl_b32 s15, s33, 5\ns_lshl_b32 s14, {WV}, 16\ns_add_u32 s15, s15, s14\ns_add_u32 s15, s15, {WS_FA}")
    for i in range(8): A(f"v_mov_b32 v{56+i}, 0")
    A(f"v_mov_b32 v65, {TAG}\nv_mov_b32 v67, {TAG}\nv_mov_b32 v71, {TAG}")
    A("s_waitcnt vmcnt(0)\ns_barrier")
    for ks in range(4):
        for sec in range(2):
            A(f"ds_read_b64_tr_b16 v[{100+4*ks+2*sec}:{101+4*ks+2*sec}], v12 offset:{ks*8192 + sec*1024}")
    tstamp = (lambda i: None) if dbgf else stamp
    tstamp(5)
    spin_head("T_SPOLL")
    A(f"buffer_load_dwordx4 v[32:35], v5, {W}, s13 offen {LD}")
    A("s_waitcnt vmcnt(0)")
    tagchk(31, 35, True)
    spin_tail("T_SPOLL", 31)
    for t in range(4):
        A(f"buffer_load_dwordx4 v[{80+4*t}:{83+4*t}], v10, {W}, s12 offen offset:{t*1024} {LD}")
    tstamp(6)
    def wave_red(op, v, t):
        A(f"v_{op}_f32_dpp v{v}, v{v}, v{v} quad_perm:[1,0,3,2] row_mask:0xf bank_mask:0xf\ns_nop 1")
        A(f"v_{op}_f32_dpp v{v}, v{v}, v{v} quad_perm:[2,3,0,1] row_mask:0xf bank_mask:0xf")
        A(f"v_mov_b32 v{t}, v{v}\ns_nop 1\nv_permlane16_swap_b32 v{v}, v{t}\nv_{op}_f32 v{v}, v{v}, v{t}")
        A(f"v_mov_b32 v{t}, v{v}\ns_nop 1\nv_permlane32_swap_b32 v{v}, v{t}\nv_{op}_f32 v{v}, v{v}, v{t}")
    A("v_mov_b32 v36, v32\ns_nop 1")
    wave_red("max", 36, 37)
    A(f"ds_write_b32 v6, v36 offset:{L_M}")
    A("s_waitcnt lgkmcnt(0)\ns_barrier")
    A(f"ds_read_b128 v[36:39], v11 offset:{L_M}\nds_read_b128 v[40:43], v11 offset:{L_M+16}")
    A("s_waitcnt lgkmcnt(0)")
    A("v_max3_f32 v36, v36, v37, v38\nv_max3_f32 v39, v39, v40, v41\nv_max3_f32 v36, v36, v42, v43\nv_max_f32 v36, v36, v39")
    A("v_sub_f32 v36, v32, v36\nv_exp_f32 v36, v36\ns_nop 0")
    A("v_mul_f32 v37, v36, v33")
    for t in range(4):
        A(f"v_mov_b32_dpp v{40+t}, v36 quad_perm:[{t},{t},{t},{t}] row_mask:0xf bank_mask:0xf")
    A("v_cvt_pk_bf16_f32 v28, v40, v41\nv_cvt_pk_bf16_f32 v29, v42, v43")
    sel4(44, 28); sel4(48, 29)
    wave_red("add", 37, 38)
    A(f"ds_write_b32 v6, v37 offset:{L_L}")
    A("s_waitcnt vmcnt(2)")
    smf(56, 44, 80)
    A("s_waitcnt vmcnt(0)")
    smf(56, 48, 88)
    tstamp(7)
    A("s_nop 7")
    A("v_cvt_pk_bf16_f32 v56, v56, v57\nv_cvt_pk_bf16_f32 v57, v58, v59")
    A(f"s_mov_b32 exec_hi, 0\nds_write_b64 v7, v[56:57] offset:{L_PART}\ns_mov_b64 exec, -1")
    A("s_waitcnt lgkmcnt(0)\ns_barrier")
    for ks in range(4): A(f"ds_read_b128 v[{80+4*ks}:{83+4*ks}], v8 offset:{L_PART + 64*ks}")
    A(f"ds_read_b128 v[36:39], v11 offset:{L_L}\nds_read_b128 v[40:43], v11 offset:{L_L+16}")
    for ks in range(4):
        A(f"s_waitcnt lgkmcnt({5-ks})")
        A(f"v_mfma_f32_16x16x32_bf16 v[52:55], v[{80+4*ks}:{83+4*ks}], v[{100+4*ks}:{103+4*ks}], {'0' if ks==0 else 'v[52:55]'}")
    A("s_waitcnt lgkmcnt(0)")
    A("v_pk_add_f32 v[36:37], v[36:37], v[38:39]\nv_pk_add_f32 v[40:41], v[40:41], v[42:43]\nv_pk_add_f32 v[36:37], v[36:37], v[40:41]")
    A("v_add_f32 v36, v36, v37\nv_rcp_f32 v36, v36\ns_nop 2")
    A("v_add_f32 v52, v52, v53\nv_add_f32 v54, v54, v55\nv_add_f32 v52, v52, v54")
    A("v_mov_b32 v53, v52\ns_nop 1\nv_permlane16_swap_b32 v52, v53\nv_add_f32 v64, v52, v53\ns_nop 1")
    A("v_mov_b32_dpp v66, v64 quad_perm:[1,0,3,2] row_mask:0xf bank_mask:0xf")
    A("s_mov_b64 exec, 0x5555")
    A(f"buffer_store_dwordx4 v[64:67], v14, {W}, s36 offen")
    A("s_mov_b64 exec, -1")
    tstamp(2)
    A(f"s_mov_b32 s25, {SPIN}")
    A(f"s_cmp_ge_u32 {WV}, 5\ns_cbranch_scc1 T_BST")
    A(f"s_add_u32 s12, s37, {WS_CX2-WS_CX}")
    A("T_CPOLL:")
    A(f"buffer_load_dwordx4 v[32:35], v15, {W}, s12 offen {LD}")
    A("s_waitcnt vmcnt(0)")
    tagchk(31, 33, True); tagchk(31, 35, False)
    A("v_cmp_ne_u32 vcc, 0, v31\ns_cbranch_vccz T_COK")
    A(f"s_sub_u32 s25, s25, 1\ns_cmp_gt_u32 s25, {SPIN-12}\ns_cbranch_scc1 T_CPOLL")
    A(f"s_cmp_lg_u32 s25, {SPIN-12}\ns_cbranch_scc1 T_CNB")
    A(f"s_mov_b64 exec, 0x5555\nbuffer_store_dwordx4 v[64:67], v14, {W}, s35 offen {ST}\ns_mov_b64 exec, -1")
    A("T_CNB:")
    A(f"s_and_b32 s12, s25, 1\ns_cselect_b32 s12, 0, {WS_CX2-WS_CX}\ns_add_u32 s12, s12, s37")
    A("s_cmp_lg_u32 s25, 0\ns_cbranch_scc1 T_CPOLL")
    A("T_COK:")
    tstamp(3)
    for qp in ("[1,0,3,2]", "[2,3,0,1]"):
        A(f"v_add_f32_dpp v32, v32, v32 quad_perm:{qp} row_mask:0xf bank_mask:0xf\nv_add_f32_dpp v34, v34, v34 quad_perm:{qp} row_mask:0xf bank_mask:0xf\ns_nop 0")
    A("v_mul_f32 v32, v32, v36\nv_mul_f32 v34, v34, v36\nv_cvt_pk_bf16_f32 v32, v32, v34\ns_nop 1")
    for U in range(4): A(f"v_mov_b32_dpp v{28+U}, v32 row_newbcast:{4*U} row_mask:0xf bank_mask:0xf")
    for U in range(4): sel4(40+4*U, 28+U)
    for U in range(4): smf(60, 40+4*U, 120+8*U)
    A("s_nop 7")
    pack24(60, 68, 38)
    A("s_mov_b32 exec_hi, 0")
    A(f"buffer_store_dwordx4 v[68:71], v19, {W}, s15 offen {ST}")
    A("T_BST:")
    A(f"s_mov_b64 exec, 0x5555\nbuffer_store_dwordx4 v[64:67], v14, {W}, s35 offen {ST}\ns_mov_b64 exec, -1")
    A("T_DONE:")
    tstamp(8)
    finish()
    A("ATT:")
    A("s_cmp_ge_u32 s31, 8\ns_cbranch_scc1 END")
    common_loads()
    A("v_lshrrev_b32 v1, 6, v0\nv_and_b32 v0, 63, v0\ns_and_b32 s33, s2, 127")
    A(f"v_readfirstlane_b32 {WV}, v1")
    A("v_lshlrev_b32 v62, 4, v0")
    if stamps:
        for i in range(1, 10): A(f"s_mov_b64 s[{80+2*i}:{81+2*i}], 0")
    common_setup()
    A(f"s_sub_u32 s36, {WV}, 4")
    A(f"s_lshl_b32 s8, s33, 2\ns_add_u32 s8, s8, s36\ns_lshl_b32 s8, s8, 15\ns_lshl_b32 s9, s36, 15\ns_mov_b32 m0, s9\ns_mov_b32 s10, 0")
    A("s_waitcnt lgkmcnt(0)")
    srd(4, "ckv")
    def dma_loop(name, upto, win):
        A(f"{name}:")
        A("s_and_b32 s11, s10, 7\ns_lshl_b32 s11, s11, 5\ns_bitcmp1_b32 s10, 3\ns_cselect_b32 s12, 16, 0\ns_or_b32 s11, s11, s12")
        A("v_xor_b32 v63, s11, v62")
        if win: A(f"s_waitcnt vmcnt({win-1})")
        A(f"buffer_load_dwordx4 v63, s[4:7], s8 offen {NT} lds")
        A("s_add_u32 s8, s8, 1024\ns_add_u32 m0, m0, 1024\ns_add_u32 s10, s10, 1")
        A(f"s_cmp_lt_u32 s10, {upto}\ns_cbranch_scc1 {name}")
    dma_loop("DMA0", att_w0, 0)
    A(f"s_load_dword {TAG}, s[16:17], 0")
    A("v_and_b32 v2, 31, v0\nv_lshrrev_b32 v3, 5, v0")
    A("v_and_b32 v4, 7, v2\nv_bfe_u32 v5, v2, 3, 1\nv_lshl_add_u32 v4, v4, 1, v5\nv_xor_b32 v4, v4, v3\nv_lshlrev_b32 v4, 4, v4\nv_lshl_add_u32 v4, v2, 10, v4")
    A("v_add_u32 v8, s9, v4")
    for tt in range(1, 8): A(f"v_xor_b32 v{8+tt}, {tt << 5}, v8")
    for tt in range(8):
        A(f"v_xor_b32 v{16+tt}, {tt}, v0\nv_lshlrev_b32 v{16+tt}, 4, v{16+tt}\nv_add_u32 v{16+tt}, {QL + tt*1024}, v{16+tt}")
    A(f"v_lshlrev_b32 v6, 4, v2\nv_add_u32 v28, {QL+8192}, v6\ns_lshl_b32 s11, s36, 2\nv_add_u32 v29, s11, v28")
    A(f"v_lshlrev_b32 v6, 5, v2\nv_add_u32 v31, {QL+9216}, v6\nv_lshl_add_u32 v31, v3, 2, v31\ns_lshl_b32 s11, s36, 3\nv_add_u32 v31, s11, v31")
    A(f"s_lshl_b32 s11, s36, 11\ns_add_u32 s11, s11, {QL}\nv_add_u32 v32, s11, v62")
    A("v_lshrrev_b32 v4, 3, v0\nv_and_b32 v35, 7, v0\nv_and_b32 v5, 1, v4\nv_lshl_add_u32 v5, v3, 1, v5")
    A("v_mul_u32_u24 v5, 20, v5\nv_bfe_u32 v6, v4, 1, 1\nv_add_u32 v5, v5, v6\nv_mul_u32_u24 v5, 3456, v5\nv_lshl_add_u32 v33, v35, 4, v5\nv_mul_u32_u24 v34, 40, v4")
    A("s_cmp_lt_u32 s36, 2")
    A(f"s_cselect_b32 s72, s{P['wg']}, s{P['wu']}\ns_cselect_b32 s73, s{P['wg']+1}, s{P['wu']+1}\ns_cselect_b32 s37, 0, 4096")
    A(f"s_cmp_lt_u32 s33, 108\ns_cselect_b32 s74, {SZ['wg']}, 0\ns_mov_b32 s75, 0x20000")
    srd(20, "x")
    A(f"s_and_b32 s11, s33, 3\ns_lshr_b32 s12, s33, 2\ns_and_b32 s26, s36, 1")
    A(f"s_mul_i32 s13, s11, {160*3456}\ns_lshl_b32 s14, s12, 7\ns_add_u32 s13, s13, s14\ns_mul_i32 s14, s26, {10*3456}\ns_add_u32 s13, s13, s14\ns_add_u32 s14, s13, {80*3456}")
    A("s_mul_i32 s15, s11, 320\ns_mul_i32 s27, s26, 20\ns_add_u32 s15, s15, s27")
    A(f"s_lshl_b32 s12, s12, 13\ns_lshl_b32 s11, s11, 10\ns_lshl_b32 s26, s26, 9\ns_add_u32 s37, s37, s12\ns_add_u32 s37, s37, s11\ns_add_u32 s37, s37, s26\ns_add_u32 s37, s37, {WS_GP}")
    A(f"s_waitcnt lgkmcnt(0)\ns_add_u32 {TAG}, {TAG}, 1")
    A("s_barrier")
    if att_n1 > att_w0: dma_loop("DMA1", att_n1, att_w1)
    dma_loop("DMA2", trig, att_win)
    A("s_barrier")
    if trig < 32: dma_loop("DMA3", 32, att_win)
    stamp(1)
    fops = ["buffer_load_dwordx4 v[120:123], v34, s[20:23], s15 offen", "buffer_load_dword v124, v34, s[20:23], s15 offen offset:16"]
    for T in range(5):
        for hf in range(2):
            r = 80 + 8*T + 4*hf
            fops.append(f"buffer_load_dwordx4 v[{r}:{r+3}], v33, s[72:75], s{13+hf} offen {NT}" + (f"\ns_add_u32 s{13+hf}, s{13+hf}, {2*3456}" if T < 4 else ""))
    D = 4
    if apre:
        A("s_waitcnt vmcnt(0)")
        stamp(2)
        for t in range(32):
            A(f"ds_read_b128 v[{128+4*t}:{131+4*t}], v{8+(t&7)} offset:{(t>>3)*256}")
        if prio: A("s_setprio 2")
        A("s_waitcnt lgkmcnt(0)\ns_barrier")
        stamp(3)
        for t in range(D): A(f"ds_read_b128 v[{64+4*t}:{67+4*t}], v{16+t}")
        for t in range(32):
            A(f"s_waitcnt lgkmcnt({min(D-1, 31-t)})")
            if t == 31: A("s_barrier")
            a_ = 64 + 4*(t % D)
            A(f"v_mfma_f32_32x32x16_bf16 v[40:55], v[{128+4*t}:{131+4*t}], v[{a_}:{a_+3}], {'0' if t==0 else 'v[40:55]'}")
            if t + D < 32: A(f"ds_read_b128 v[{a_}:{a_+3}], v{16+((t+D)&7)} offset:{((t+D)>>3)*8192}")
            if t % 2 == 1 and fops: A(fops.pop(0))
    else:
        A("s_barrier")
        stamp(2)
        for t in range(32):
            A(f"ds_read_b128 v[{128+4*t}:{131+4*t}], v{16+(t&7)} offset:{(t>>3)*8192}")
        A("s_waitcnt vmcnt(0)")
        if prio: A("s_setprio 2")
        for t in range(D): A(f"ds_read_b128 v[{64+4*t}:{67+4*t}], v{8+t}")
        A(f"s_waitcnt lgkmcnt({D})\ns_barrier")
        stamp(3)
        for t in range(32):
            A(f"s_waitcnt lgkmcnt({min(D-1, 31-t)})")
            a_ = 64 + 4*(t % D)
            A(f"v_mfma_f32_32x32x16_bf16 v[40:55], v[{a_}:{a_+3}], v[{128+4*t}:{131+4*t}], {'0' if t==0 else 'v[40:55]'}")
            if t + D < 32: A(f"ds_read_b128 v[{a_}:{a_+3}], v{8+((t+D)&7)} offset:{((t+D)>>3)*256}")
            if t % 2 == 1 and fops: A(fops.pop(0))
    A("s_nop 11")
    stamp(4)
    A("v_max3_f32 v56, v40, v41, v42\nv_max3_f32 v57, v43, v44, v45\nv_max3_f32 v58, v46, v47, v48\nv_max3_f32 v59, v49, v50, v51")
    A("v_max3_f32 v56, v56, v52, v53\nv_max3_f32 v57, v57, v54, v55\nv_max3_f32 v56, v56, v57, v58\nv_max_f32 v56, v56, v59")
    A("v_mov_b32 v57, v56\ns_nop 1\nv_permlane32_swap_b32 v56, v57\nv_max_f32 v56, v56, v57")
    A("v_ceil_f32 v36, v56")
    A("ds_write_b32 v29, v36")
    for i in range(8): A(f"v_pk_add_f32 v[{40+2*i}:{41+2*i}], v[{40+2*i}:{41+2*i}], v[36:37] op_sel_hi:[1,0] neg_lo:[0,1] neg_hi:[0,1]")
    for r in range(4): A(f"v_exp_f32 v{40+r}, v{40+r}")
    A("s_waitcnt lgkmcnt(0)\ns_barrier")
    A("ds_read_b128 v[56:59], v28")
    for r in range(4, 16): A(f"v_exp_f32 v{40+r}, v{40+r}")
    A("s_waitcnt lgkmcnt(0)")
    A("v_max3_f32 v56, v56, v57, v58\nv_max_f32 v60, v56, v59")
    A("v_sub_f32 v36, v36, v60\nv_exp_f32 v36, v36\ns_nop 0")
    for hs in range(2):
        for i in range(4*hs, 4*hs+4): A(f"v_pk_mul_f32 v[{40+2*i}:{41+2*i}], v[{40+2*i}:{41+2*i}], v[36:37] op_sel_hi:[1,0]")
        for i in range(4*hs, 4*hs+4): A(f"v_cvt_pk_bf16_f32 v{64+i}, v{40+2*i}, v{41+2*i}")
        A(f"ds_write_b128 v32, v[{64+4*hs}:{67+4*hs}] offset:{1024*hs}")
    A("s_waitcnt lgkmcnt(0)\ns_barrier")
    if prio: A("s_setprio 0")
    stamp(5)
    for i in range(4): A(f"v_pk_add_f32 v[{40+2*i}:{41+2*i}], v[{40+2*i}:{41+2*i}], v[{48+2*i}:{49+2*i}]")
    A("v_pk_add_f32 v[40:41], v[40:41], v[44:45]\nv_pk_add_f32 v[42:43], v[42:43], v[46:47]\nv_pk_add_f32 v[40:41], v[40:41], v[42:43]\nv_add_f32 v40, v40, v41")
    A("ds_write_b32 v31, v40")
    A("s_waitcnt lgkmcnt(0)\ns_barrier")
    A("s_cmp_ge_u32 s33, 108\ns_cbranch_scc1 K_END")
    selectors(35)
    A("v_lshrrev_b32 v28, 4, v0\nv_and_b32 v29, 1, v28\nv_lshrrev_b32 v28, 1, v28\nv_lshl_add_u32 v28, v29, 1, v28\nv_lshl_add_u32 v28, v35, 2, v28\nv_lshlrev_b32 v6, 4, v28")
    A(f"v_mov_b32 v32, 0\nv_mov_b32 v33, 0\nv_mov_b32 v34, 0\nv_mov_b32 v35, 0\nv_mov_b32 v37, {TAG}\nv_mov_b32 v39, {TAG}")
    A("s_waitcnt vmcnt(10)")
    for T in range(5): sel4(40+4*T, 120+T)
    A("s_waitcnt vmcnt(0)")
    for T in range(5): smf(32, 40+4*T, 80+8*T)
    A("s_nop 7")
    A("v_permlane32_swap_b32 v32, v34\nv_permlane32_swap_b32 v33, v35\ns_nop 1")
    A("v_add_f32_dpp v36, v34, v32 row_ror:8 row_mask:0xf bank_mask:0xf")
    A("v_add_f32_dpp v38, v35, v33 row_ror:8 row_mask:0xf bank_mask:0xf")
    A("s_mov_b32 exec_lo, 0x00ff00ff\ns_mov_b32 exec_hi, 0x00ff00ff")
    A(f"buffer_store_dwordx4 v[36:39], v6, {W}, s37 offen {ST}")
    A("s_mov_b64 exec, -1")
    stamp(6)
    A("s_cmp_eq_u32 s36, 1\ns_cbranch_scc1 K_F2")
    A("s_cmp_eq_u32 s36, 0\ns_cbranch_scc1 K_FIN")
    A("K_END:")
    finish()
    A("K_F2:")
    srd(4, "wd")
    A("v_lshrrev_b32 v2, 4, v0\nv_and_b32 v3, 15, v0\nv_mul_u32_u24 v4, 1280, v2\nv_lshl_add_u32 v4, v3, 4, v4")
    A(f"s_mul_i32 s12, s33, {16*1280}")
    for tq in range(4):
        for b in range(5):
            r = 120 + 40*(tq >> 1) + 8*b + 4*(tq & 1)
            A(f"buffer_load_dwordx4 v[{r}:{r+3}], v4, s[4:7], s12 offen offset:{b*256} {NT}")
        if tq < 3: A("s_add_u32 s12, s12, 5120")
    selectors(3); pack24_consts()
    for i in range(20): A(f"v_mov_b32 v{60+i}, 0")
    A("v_lshrrev_b32 v5, 3, v0\nv_lshlrev_b32 v5, 10, v5\nv_and_b32 v6, 7, v0\nv_lshl_add_u32 v5, v6, 4, v5")
    A(f"s_lshr_b32 s12, s33, 2\ns_lshl_b32 s12, s12, 13\ns_and_b32 s13, s33, 3\ns_lshl_b32 s13, s13, 7\ns_add_u32 s12, s12, s13\ns_add_u32 s12, s12, {WS_GP}")
    spin_head("F2_POLL")
    A(f"buffer_load_dwordx4 v[32:35], v5, {W}, s12 offen {LD}\nbuffer_load_dwordx4 v[36:39], v5, {W}, s12 offen offset:512 {LD}\ns_waitcnt vmcnt(0)")
    tagchk(31, 33, True); tagchk(31, 35, False); tagchk(31, 37, False); tagchk(31, 39, False); spin_tail("F2_POLL", 31, 4)
    stamp(7)
    A("v_add_f32 v32, v32, v36\nv_add_f32 v34, v34, v38\ns_nop 1")
    A("v_add_f32_dpp v32, v32, v32 row_ror:8 row_mask:0xf bank_mask:0xf\nv_add_f32_dpp v34, v34, v34 row_ror:8 row_mask:0xf bank_mask:0xf")
    A("v_mov_b32 v33, v32\nv_mov_b32 v35, v34\ns_nop 1\nv_permlane16_swap_b32 v32, v33\nv_permlane16_swap_b32 v34, v35")
    A("v_add_f32 v32, v32, v33\nv_add_f32 v34, v34, v35")
    A("v_mov_b32 v33, v32\nv_mov_b32 v35, v34\ns_nop 1\nv_permlane32_swap_b32 v32, v33\nv_permlane32_swap_b32 v34, v35")
    for v in (32, 33, 34, 35): rnd(v)
    k1 = -2.0 * math.sqrt(2.0 / math.pi) * math.log2(math.e)
    for g in (32, 34):
        A(f"v_mul_f32 v36, v{g}, v{g}\nv_mul_f32 v36, {hex(f2u(0.044715))}, v36\nv_add_f32 v36, 1.0, v36\nv_mul_f32 v36, v36, v{g}\nv_mul_f32 v36, {hex(f2u(k1))}, v36")
        A(f"v_exp_f32 v36, v36\ns_nop 0\nv_add_f32 v36, 1.0, v36\nv_rcp_f32 v36, v36\ns_nop 0\nv_mul_f32 v{g}, v{g}, v36")
        rnd(g)
        A(f"v_mul_f32 v{g}, v{g}, v{g+1}")
    A("v_cvt_pk_bf16_f32 v32, v32, v34")
    A("v_lshlrev_b32 v5, 2, v2\nv_add_u32 v6, 16, v5")
    A("ds_bpermute_b32 v36, v5, v32\nds_bpermute_b32 v37, v6, v32\ns_waitcnt lgkmcnt(0)")
    sel4(44, 36); sel4(48, 37)
    for U in range(2):
        for b in range(5): smf(60+4*b, 44+4*U, 120+40*U+8*b)
    A("v_lshlrev_b32 v6, 12, v3\nv_lshl_add_u32 v6, v2, 4, v6")
    A(f"s_lshl_b32 s12, s33, 5\ns_add_u32 s12, s12, {WS_FB}")
    A("s_nop 4\ns_mov_b32 exec_hi, 0")
    for b in range(5):
        pack24(60+4*b, 80+4*b, 38)
        A(f"v_mov_b32 v{83+4*b}, {TAG}")
        A(f"buffer_store_dwordx4 v[{80+4*b}:{83+4*b}], v6, {W}, s12 offen {ST}")
        if b < 4: A("s_add_u32 s12, s12, 65536")
    A("s_mov_b64 exec, -1")
    stamp(8)
    finish()
    A("K_FIN:")
    A("s_cmp_ge_u32 s33, 80\ns_cbranch_scc1 K_END")
    srd(8, "gw"); srd(12, "out")
    A("v_mul_u32_u24 v5, 20, v0")
    A("buffer_load_dwordx4 v[8:11], v5, s[20:23], 0 offen\nbuffer_load_dword v12, v5, s[20:23], 0 offen offset:16")
    A("buffer_load_dwordx4 v[16:19], v5, s[8:11], 0 offen\nbuffer_load_dword v20, v5, s[8:11], 0 offen offset:16")
    A("v_mov_b32 v30, 0\ns_waitcnt vmcnt(0)")
    for i in range(5):
        A(f"v_lshlrev_b32 v24, 16, v{8+i}\nv_and_b32 v25, 0xffff0000, v{8+i}\nv_lshlrev_b32 v26, 16, v{16+i}\nv_and_b32 v27, 0xffff0000, v{16+i}")
        A("v_mul_f32 v24, v24, v26\nv_mul_f32 v25, v25, v27\nv_cvt_pk_bf16_f32 v24, v24, v25\nv_lshlrev_b32 v25, 16, v24\nv_and_b32 v24, 0xffff0000, v24")
        A("v_add_f32 v30, v30, v25\nv_add_f32 v30, v30, v24")
    A("v_mov_b32 v31, v30\ns_nop 1\nv_permlane32_swap_b32 v30, v31\nv_add_f32 v30, v30, v31")
    A("v_mov_b32 v31, v30\ns_nop 1\nv_permlane16_swap_b32 v30, v31\nv_add_f32 v30, v30, v31")
    for k in (8, 4, 2, 1): A(f"s_nop 1\nv_add_f32_dpp v30, v30, v30 row_ror:{k} row_mask:0xf bank_mask:0xf")
    rnd(30)
    A(f"v_mul_f32 v30, {hex(f2u(-math.log2(math.e)))}, v30\nv_exp_f32 v30, v30\ns_nop 0\nv_add_f32 v30, 1.0, v30\nv_rcp_f32 v30, v30\ns_nop 0")
    rnd(30)
    A("v_sub_f32 v31, 1.0, v30")
    rnd(31)
    A("s_mov_b32 s70, 0x0504000c\ns_mov_b32 s71, 0x0706010c\ns_mov_b32 s72, 0x0504020c\ns_mov_b32 s73, 0x0706030c")
    A("v_lshlrev_b32 v5, 4, v0")
    A("v_and_b32 v8, 1, v0\nv_bfe_u32 v6, v0, 4, 1\nv_lshrrev_b32 v7, 5, v0\nv_lshl_add_u32 v6, v6, 1, v7\nv_lshl_add_u32 v8, v8, 2, v6\nv_lshlrev_b32 v8, 1, v8")
    A("s_lshl_b32 s27, s33, 4")
    def fgather(name, base, nprod, dst, sleep):
        A(f"s_lshl_b32 s28, s33, 12\ns_add_u32 s28, s28, {base}")
        spin_head(name)
        for i in range(4):
            A(f"buffer_load_dwordx4 v[{40+4*i}:{43+4*i}], v5, {W}, s28 offen offset:{i*1024} {LD}")
        A("s_waitcnt vmcnt(0)")
        tagchk(38, 55, True)
        if nprod < 128:
            A(f"v_cmp_gt_u32 vcc, {2*(nprod-96)}, v0\ns_nop 1\nv_cndmask_b32 v38, 0, v38, vcc")
            for k in range(3): A(f"v_cndmask_b32 v{52+k}, 0, v{52+k}, vcc")
        for i in range(3): tagchk(38, 43+4*i, False)
        spin_tail(name, 38, sleep)
        for i in range(4):
            d = 40 + 4*i; o = 60 + 4*i
            A(f"v_perm_b32 v{o}, v{d}, v{d+2}, s70\nv_perm_b32 v{o+1}, v{d}, v{d+2}, s71\nv_perm_b32 v{o+2}, v{d+1}, v{d+2}, s72\nv_perm_b32 v{o+3}, v{d+1}, v{d+2}, s73")
        for i in range(4): A(f"v_pk_add_f32 v[{60+2*i}:{61+2*i}], v[{60+2*i}:{61+2*i}], v[{68+2*i}:{69+2*i}]")
        for i in range(2): A(f"v_pk_add_f32 v[{60+2*i}:{61+2*i}], v[{60+2*i}:{61+2*i}], v[{64+2*i}:{65+2*i}]")
        A("s_nop 1\nv_permlane32_swap_b32 v60, v61\nv_permlane32_swap_b32 v62, v63\nv_add_f32 v60, v60, v61\nv_add_f32 v62, v62, v63")
        A(f"s_nop 1\nv_permlane16_swap_b32 v60, v62\nv_add_f32 v{dst}, v60, v62")
        for k in (8, 4, 2): A(f"s_nop 1\nv_add_f32_dpp v{dst}, v{dst}, v{dst} row_ror:{k} row_mask:0xf bank_mask:0xf")
    fgather("F_B", WS_FB, 108, 33, 8)
    rnd(33); A("v_mul_f32 v33, v33, v31"); rnd(33)
    stamp(7)
    fgather("F_A", WS_FA, 128, 32, fa_sleep)
    rnd(32); A("v_mul_f32 v32, v32, v30"); rnd(32)
    A("v_add_f32 v32, v32, v33\nv_cvt_pk_bf16_f32 v32, v32, v32")
    A("s_mov_b32 exec_lo, 0x00030003\ns_mov_b32 exec_hi, 0x00030003")
    A("buffer_store_short v32, v8, s[12:15], s27 offen")
    stamp(8)
    A("s_cmp_lg_u32 s33, 0\ns_cbranch_scc1 F_NOE")
    A(f"s_mov_b64 exec, 1\nv_mov_b32 v5, 0\nv_mov_b32 v6, {TAG}\nbuffer_store_dword v6, v5, {W}, 0 offen")
    if amp is not None:
        A(f"s_memrealtime s[76:77]\ns_waitcnt lgkmcnt(0)\ns_sub_u32 s78, s{80+2*amp}, s80\ns_lshl_b32 s78, s78, 3\ns_min_u32 s78, s78, 100000")
        A("AMPL:\ns_memrealtime s[74:75]\ns_waitcnt lgkmcnt(0)\ns_sub_u32 s79, s74, s76\ns_cmp_lt_u32 s79, s78\ns_cbranch_scc1 AMPL")
    A("F_NOE:\ns_mov_b64 exec, -1")
    finish()
    A("SIDE:")
    A("v_lshlrev_b32 v62, 4, v0")
    A(f"s_lshl_b32 s9, {WV}, 12\ns_add_u32 s9, s9, {WS_QA}\ns_add_u32 s10, s9, 16384\ns_add_u32 s11, s9, 32768")
    A("v_and_b32 v2, 31, v0\nv_lshrrev_b32 v3, 5, v0\nv_and_b32 v5, 7, v0\nv_xor_b32 v4, v3, v5\nv_lshlrev_b32 v4, 4, v4\nv_lshl_add_u32 v4, v2, 10, v4")
    A(f"s_lshl_b32 s8, {WV}, 7\ns_add_u32 s8, s8, {QL}\nv_add_u32 v4, s8, v4")
    for q_ in range(1, 4): A(f"v_xor_b32 v{4+q_}, {q_ << 5}, v4")
    A("v_bfe_u32 v8, v0, 2, 3\nv_bfe_u32 v9, v0, 1, 1\nv_lshlrev_b32 v10, 1, v8\nv_xor_b32 v9, v9, v10\nv_lshlrev_b32 v9, 4, v9")
    A("v_lshl_add_u32 v8, v3, 4, v8\nv_lshl_add_u32 v9, v8, 10, v9\nv_and_b32 v10, 1, v0\nv_lshl_add_u32 v9, v10, 3, v9")
    A(f"s_lshl_b32 s12, {WV}, 8\nv_add_u32 v24, s12, v9\nv_add_u32 v25, 0x10000, v24")
    A(f"v_lshlrev_b32 v8, 4, v2\nv_add_u32 v36, {QL+8192}, v8\nv_lshlrev_b32 v8, 5, v2\nv_add_u32 v37, {QL+9216}, v8")
    A(f"v_and_b32 v8, 15, v0\nv_bfe_u32 v9, v0, 4, 1\nv_lshl_add_u32 v9, v9, 5, v8\nv_lshl_add_u32 v9, v3, 6, v9\nv_lshlrev_b32 v9, 4, v9\nv_add_u32 v33, {QL}, v9")
    A("v_lshrrev_b32 v9, 4, v0\nv_lshlrev_b32 v9, 19, v9\nv_lshl_add_u32 v34, v8, 4, v9")
    A(f"s_lshl_b32 s13, {WV}, 15\ns_lshl_b32 s12, s33, 8\ns_add_u32 s13, s13, s12\ns_add_u32 s13, s13, {WS_OP}")
    if st_full:
        A(f"v_lshlrev_b32 v35, 4, v2\ns_lshl_b32 s14, {WV}, 9\ns_lshl_b32 s12, s33, 11\ns_add_u32 s14, s14, s12\ns_add_u32 s14, s14, {WS_ST}")
    else:
        A(f"v_lshlrev_b32 v35, 13, v2\ns_lshl_b32 s14, {WV}, 11\ns_lshl_b32 s12, s33, 4\ns_add_u32 s14, s14, s12\ns_add_u32 s14, s14, {WS_ST}")
    A("s_waitcnt vmcnt(0)")
    A("s_barrier")
    if not dbgf: stamp(2)
    A(f"s_mov_b32 s25, {SPIN}")
    def qld(q_):
        for ty in range(3):
            r = 200 + 12*q_ + 4*ty
            A(f"buffer_load_dwordx4 v[{r}:{r+3}], v62, {W}, s{9+ty} offen offset:{q_*1024} {LD}")
    def qwr(q_, base):
        for ty in range(3):
            r = 200 + 12*q_ + 4*ty
            if base is not None: A(f"s_waitcnt vmcnt({base - ty})")
            tagchk(28+q_, r+3, ty == 0)
            if ty < 2: A(f"ds_write_b96 v{4+q_}, v[{r}:{r+2}] offset:{ty*512}")
            else: A(f"ds_write2_b32 v{4+q_}, v{r}, v{r+1} offset0:3 offset1:131")
    for q_ in range(4): qld(q_)
    for q_ in range(4): qwr(q_, 11 - 3*q_)
    A("S_QRT:")
    A("v_or3_b32 v27, v28, v29, v30\nv_or_b32 v27, v27, v31\nv_cmp_ne_u32 vcc, 0, v27\ns_cbranch_vccz S_QOK")
    A("s_waitcnt lgkmcnt(0)")
    for q_ in range(4):
        A(f"v_cmp_ne_u32 vcc, 0, v{28+q_}\ns_cbranch_vccz S_QA{q_}")
        qld(q_)
        A(f"S_QA{q_}:")
    A("s_waitcnt vmcnt(0)")
    for q_ in range(4):
        A(f"v_cmp_ne_u32 vcc, 0, v{28+q_}\ns_cbranch_vccz S_QB{q_}")
        qwr(q_, None)
        A(f"S_QB{q_}:")
    A("s_sub_u32 s25, s25, 1\ns_cmp_lg_u32 s25, 0\ns_cbranch_scc1 S_QRT")
    A("S_QOK:")
    A("s_waitcnt lgkmcnt(0)")
    if stamps: A(f"s_sub_u32 s82, {SPIN+1}, s25\ns_add_u32 s82, s82, s80")
    stamp(3)
    A("s_barrier")
    if not apre: A("s_barrier")
    for f in range(32):
        if apre and f == 22: A("s_barrier")
        hi, T, lo = f >> 4, (f >> 1) & 7, f & 1
        if lo == 0: A(f"v_xor_b32 v26, {(2*T) << 4}, v{24+hi}\nv_xor_b32 v27, {((2*T) ^ 1) << 4}, v{24+hi}")
        for sec in range(2):
            d = 128 + 4*f + 2*sec
            A(f"ds_read_b64_tr_b16 v[{d}:{d+1}], v{26+sec} offset:{sec*8192 + lo*32768}")
    stamp(4)
    A("s_barrier")
    A("ds_read_b128 v[56:59], v36")
    A(f"v_mov_b32 v62, 0\nv_mov_b32 v63, {TAG}")
    A("s_waitcnt lgkmcnt(0)")
    A("v_max3_f32 v56, v56, v57, v58\nv_max_f32 v60, v56, v59")
    if prio: A("s_setprio 2")
    A("s_barrier")
    stamp(5)
    for hh in range(2):
        for ks in range(4):
            r = 64 + 16*hh + 4*ks
            A(f"ds_read_b128 v[{r}:{r+3}], v33 offset:{ks*2048 + hh*256}")
    def oreg(hh, T):
        if hh == 0: return 96 + 4*T
        return 8 + 4*T if T < 4 else 64 + 4*(T-4)
    def store_ops(hh):
        ops = []
        for r in range(4):
            d = 48 + 4*(r & 1) if hh == 0 else 96 + 4*r
            for k in range(4): ops.append(f"v_cvt_pk_bf16_f32 v{d+k}, v{oreg(hh,2*k)+r}, v{oreg(hh,2*k+1)+r}")
            ops.append(f"s_add_u32 s11, s13, {(16*hh + r)*131072}")
            ops.append(f"buffer_store_dwordx4 v[{d}:{d+3}], v34, {W}, s11 offen {ST}")
        return ops
    for hh in range(2):
        ops = store_ops(0) if hh == 1 else []
        n_ = 0
        for T in range(8):
            for ks in range(4):
                if hh == 0 and T == 0: A(f"s_waitcnt lgkmcnt({7-ks})")
                if hh == 1 and T == 0 and ks == 0:
                    A("s_waitcnt lgkmcnt(0)\ns_barrier")
                    A("ds_read_b128 v[40:43], v37\nds_read_b128 v[44:47], v37 offset:16")
                f = ((ks >> 1) << 4) | (T << 1) | (ks & 1)
                o = oreg(hh, T); a = 64 + 16*hh + 4*ks
                A(f"v_mfma_f32_16x16x32_bf16 v[{o}:{o+3}], v[{a}:{a+3}], v[{128+4*f}:{131+4*f}], {'0' if ks==0 else 'v[%d:%d]'%(o,o+3)}")
                n_ += 1
                if n_ >= 6 and ops: A(ops.pop(0))
        for o_ in ops: A(o_)
    stamp(6)
    A("s_waitcnt lgkmcnt(0)")
    A("v_pk_add_f32 v[40:41], v[40:41], v[42:43]\nv_pk_add_f32 v[44:45], v[44:45], v[46:47]\nv_pk_add_f32 v[40:41], v[40:41], v[44:45]\nv_add_f32 v61, v40, v41")
    for o_ in store_ops(1): A(o_)
    stamp(7)
    A("s_mov_b32 exec_hi, 0\ns_waitcnt vmcnt(0)")
    A(f"buffer_store_dwordx4 v[60:63], v35, {W}, s14 offen {ST}")
    A("s_mov_b64 exec, -1")
    stamp(8)
    finish()
    if stamps:
        A("DUMP:\ns_waitcnt vmcnt(0)")
        stamp(9)
        A("s_waitcnt lgkmcnt(0)")
        for i in range(10): A(f"v_mov_b32 v{8+i}, s{80+2*i}")
        A(f"s_lshl_b32 s8, s2, 3\ns_add_u32 s8, s8, {WV}\ns_lshl_b32 s8, s8, 6\ns_add_u32 s8, s8, {WS_DBG}")
        A("v_mov_b32 v5, 0\ns_mov_b64 exec, 1")
        A(f"buffer_store_dwordx4 v[8:11], v5, {W}, s8 offen\nbuffer_store_dwordx4 v[12:15], v5, {W}, s8 offen offset:16\nbuffer_store_dwordx2 v[16:17], v5, {W}, s8 offen offset:32")
    A("END:\ns_endpgm")
    hdr = open("gated_mix__compressed_kv_cla__geglu_ffn__decode.s.ref").read().split("; Override")[0]
    return hdr + "; @launch grid=(256,1,1) block=(512,1,1) lds=163840\n" + '.amdgcn_target "amdgcn-amd-amdhsa--gfx950"\n.text\n' + A.text() \
        + ".fill 2048, 4, 0xbf810000\n" + '.section .rodata,"a"\n.p2align 6\n' + kdesc(KN, 256)

if __name__ == "__main__":
    kw = eval("dict(%s)" % (sys.argv[2] if len(sys.argv) > 2 else ""))
    open(sys.argv[1], "w").write(gen(**kw))
```

```python
import sys, math
from asmlib import *
KN = "gated_mix__compressed_kv_cla__geglu_ffn__decode_kernel"
WS_CX = 0x1000; WS_CX2 = 0x600000; WS_QP = 0x180000; WS_QP2 = 0x1c0000; WS_QA = 0x40000; WS_ST = 0x50000; WS_FA = 0x90000; WS_FB = 0xE0000; WS_GP = 0x140000; WS_OP = 0x200000
WS_SIZE = 0x640000; WS_DBG = 0x700000
SZ = dict(x=1280, ckv=16384*1024, wq=640*8192, wuk=512*8192, wuv=512*8192, wo=32*128*1280, wg=640*3456, wu=640*3456, wd=1728*1280, gw=1280, out=1280)
P = dict(x=40, ckv=42, wq=44, wuk=46, wuv=48, wo=50, wg=54, wu=56, wd=58, gw=60, out=62)
QSCALE = (128 ** -0.5) * math.log2(math.e)
QL = 131072
SPIN = 200000
WV = "s3"; TAG = "s24"; W = "s[16:19]"
L_OUT = 32768; L_PART = 53248; L_Q = 55808; L_QA = 56064; L_M = 56320; L_L = 56352; L_QP = 57344

def gen(NT="nt", stamps=False, att_win=8, att_w0=3, att_n0=8, trig=32, tail_win=0, tail_win0=1, tail_n0=3, prefetch=True, poll_sleep=2, amp=None, NTW=None,
        cyc=False, prio=True, st_full=True, fa_sleep=1, uk_wait=3, uk_early=6, dbgf=False, cks=False, st_mode=2, fa_mode=1, apre=True, att_w1=4, att_n1=6, dual=True):
    LD = "sc1"; ST = "sc1"
    if NTW is None: NTW = NT
    A = Asm()
    def stamp(i):
        if stamps: A(f"{'s_memtime' if cyc else 's_memrealtime'} s[{80+2*i}:{81+2*i}]")
    def finish():
        A("s_branch DUMP" if stamps else "s_endpgm")
    def srd(d, name):
        A(f"s_mov_b32 s{d}, s{P[name]}\ns_mov_b32 s{d+1}, s{P[name]+1}\ns_mov_b32 s{d+2}, {SZ[name]}\ns_mov_b32 s{d+3}, 0x20000")
    def spin_head(name):
        A(f"s_mov_b32 s25, {SPIN}\n{name}:")
    def spin_tail(name, acc, sleep=poll_sleep):
        done = A.label("OK")
        A(f"v_cmp_ne_u32 vcc, 0, v{acc}\ns_cbranch_vccz {done}")
        if sleep: A(f"s_sleep {sleep}")
        A(f"s_sub_u32 s25, s25, 1\ns_cmp_lg_u32 s25, 0\ns_cbranch_scc1 {name}\n{done}:")
    def tagchk(acc, v, first):
        if first: A(f"v_xor_b32 v{acc}, {TAG}, v{v}")
        else: A(f"v_bitop3_b32 v{acc}, v{v}, {TAG}, v{acc} bitop3:0xbe")
    def selectors(ve):
        A(f"v_and_b32 v25, 1, v{ve}")
        A("v_cmp_eq_u32 vcc, 1, v25")
        A("v_mov_b32 v26, 0x0c0c0100\nv_mov_b32 v25, 0x01000c0c")
        A("v_cndmask_b32 v26, v26, v25, vcc")
        A("v_mov_b32 v27, 0x0c0c0302\nv_mov_b32 v25, 0x03020c0c")
        A("v_cndmask_b32 v27, v27, v25, vcc")
        A(f"v_lshrrev_b32 v25, 2, v{ve}")
        for k in range(2):
            A(f"v_cmp_eq_u32 vcc, {k}, v25")
            A(f"v_mov_b32 v{20+k}, 0x0c0c0c0c\nv_mov_b32 v{22+k}, 0x0c0c0c0c")
            A(f"v_cndmask_b32 v{20+k}, v{20+k}, v26, vcc\nv_cndmask_b32 v{22+k}, v{22+k}, v27, vcc")
        A(f"v_and_b32 v25, 2, v{ve}")
        A("v_cmp_eq_u32 vcc, 2, v25")
        A("v_mov_b32 v24, 0x4444\nv_mov_b32 v25, 0xeeee")
        A("v_cndmask_b32 v24, v24, v25, vcc")
    def sel4(dst, src):
        for k in range(4): A(f"v_perm_b32 v{dst+k}, v{src}, v{src}, v{20+k}")
    def smf(d, a, b): A(f"v_smfmac_f32_16x16x64_bf16 v[{d}:{d+3}], v[{a}:{a+3}], v[{b}:{b+7}], v24")
    def pack24(v, d, t):
        A(f"v_perm_b32 v{d}, v{v+1}, v{v}, s70\nv_perm_b32 v{d+1}, v{v+3}, v{v+2}, s70")
        A(f"v_perm_b32 v{t}, v{v+1}, v{v}, s71\nv_perm_b32 v{d+2}, v{v+3}, v{v+2}, s72\nv_or_b32 v{d+2}, v{d+2}, v{t}")
    def pack24_consts(): A("s_mov_b32 s70, 0x07060302\ns_mov_b32 s71, 0x0c0c0501\ns_mov_b32 s72, 0x05010c0c")
    def rnd(v): A(f"v_cvt_pk_bf16_f32 v{v}, v{v}, v{v}\nv_lshlrev_b32 v{v}, 16, v{v}")
    def common_loads():
        A("s_load_dwordx16 s[40:55], s[0:1], 0")
        A("s_load_dwordx8 s[56:63], s[0:1], 64")
    def common_setup():
        A(f"s_mov_b32 s18, {(WS_DBG + 0x40000) if stamps else WS_SIZE}\ns_mov_b32 s19, 0x20000")
    def code_prefetch(wave):
        if not prefetch: return
        l = A.label("NOPF")
        A(f"s_cmp_lg_u32 {WV}, {wave}\ns_cbranch_scc1 {l}")
        A(f"s_getpc_b64 s[26:27]\nPFB{wave}:\ns_sub_u32 s26, s26, PFB{wave}-{KN}\ns_subb_u32 s27, s27, 0")
        A("s_bfe_u32 s28, s2, 0x30003\ns_lshl_b32 s28, s28, 11")
        A("v_lshlrev_b32 v254, 7, v0\nv_add_u32 v254, s28, v254")
        A("s_mov_b64 exec, 0xffff\nglobal_load_dword v255, v254, s[26:27]\ns_mov_b64 exec, -1")
        A(f"{l}:")

    A(f".globl {KN}\n.p2align 8\n.type {KN},@function\n{KN}:")
    stamp(0)
    A("s_load_dwordx8 s[64:71], s[0:1], 0")
    A("s_load_dwordx2 s[16:17], s[0:1], 104")
    A("v_cmp_gt_u32 vcc, 256, v0\ns_lshr_b32 s31, s2, 5\ns_and_b32 s30, s2, 31\ns_lshl_b32 s8, s30, 8")
    A("v_lshlrev_b32 v1, 9, v0\nv_and_b32 v1, 0xffffe000, v1\nv_and_b32 v3, 15, v0\nv_lshl_or_b32 v1, v3, 4, v1")
    A("s_cbranch_vccnz LO\ns_cmp_ge_u32 s31, 4\ns_cbranch_scc1 ATT\ns_branch HI\nLO:")
    A(f"s_mul_i32 s9, s31, {80*8192}\ns_add_u32 s9, s9, s8\nv_add_u32 v4, s9, v1\ns_mov_b32 s10, 0x20000")
    A("s_cmp_ge_u32 s31, 8\ns_cbranch_scc1 END")
    A("s_waitcnt lgkmcnt(0)")
    for i in range(5):
        A(f"global_load_dwordx4 v[{120+4*i}:{123+4*i}], v4, s[68:69] {NT}")
        if i < 4: A("v_add_u32 v4, s10, v4")
    A("v_lshrrev_b32 v5, 6, v0\nv_bfe_u32 v7, v0, 4, 1\nv_lshlrev_b32 v7, 2, v7\nv_lshl_add_u32 v7, v5, 3, v7\ns_mul_i32 s11, s31, 160\nv_add_u32 v7, s11, v7")
    A("v_bfe_u32 v6, v0, 5, 1\nv_lshl_add_u32 v6, v6, 5, v7")
    A("global_load_dword v8, v6, s[64:65]\nglobal_load_dword v9, v6, s[64:65] offset:64\nglobal_load_dword v10, v7, s[64:65] offset:128")
    A(f"s_load_dword {TAG}, s[16:17], 0")
    A(f"s_lshl_b32 s9, s30, 13\ns_add_u32 s9, s9, {WS_QP}\ns_lshl_b32 s11, s31, 10\ns_add_u32 s11, s11, s9")
    if dual:
        A(f"v_lshrrev_b32 v6, 5, v0\nv_lshlrev_b32 v6, 7, v6\nv_add_u32 v6, s11, v6\nv_add_u32 v6, {WS_QP2-WS_QP}, v6")
        A(f"global_load_dword v31, v6, s[16:17] {LD}")
    common_loads()
    A(f"v_readfirstlane_b32 {WV}, v5")
    A("v_and_b32 v0, 63, v0\nv_lshrrev_b32 v2, 4, v0")
    if stamps:
        for i in range(1, 10): A(f"s_mov_b64 s[{80+2*i}:{81+2*i}], 0")
    stamp(1)
    common_setup()
    if prefetch:
        A(f"s_getpc_b64 s[26:27]\nPFB:\ns_and_b32 s28, s2, 0xf8\ns_lshl_b32 s28, s28, 6\ns_sub_u32 s28, s28, PFB-{KN}\ns_lshl_b32 s29, {WV}, 7\ns_add_u32 s28, s28, s29\ns_ashr_i32 s29, s28, 31")
        A("s_add_u32 s26, s26, s28\ns_addc_u32 s27, s27, s29\ns_load_dword s28, s[26:27], 0\ns_load_dword s29, s[26:27], 64")
    A("s_and_b32 s33, s2, 127")
    selectors(3)
    for i in range(4): A(f"v_mov_b32 v{140+i}, 0\nv_mov_b32 v{32+i}, 0")
    A(f"v_lshlrev_b32 v11, 5, v3\nv_lshl_add_u32 v11, v2, 4, v11\ns_lshl_b32 s12, {WV}, 9\ns_add_u32 s12, s12, {QL}\nv_add_u32 v11, s12, v11")
    A(f"v_lshlrev_b32 v5, 4, v0\nv_lshlrev_b32 v17, 2, v0\nv_lshlrev_b32 v18, 3, v0\nv_add_u32 v18, {QL}, v18")
    A(f"s_waitcnt lgkmcnt(0)\ns_add_u32 {TAG}, {TAG}, 1")
    A(f"v_mov_b32 v37, {TAG}\nv_mov_b32 v39, {TAG}")
    A("s_waitcnt vmcnt(0)")
    if dbgf: stamp(6)
    for U in range(3): sel4(40+4*U, 8+U)
    A("s_nop 0")
    for U in range(3): smf(32, 40+4*U, 120+8*U)
    A("s_nop 6")
    A("s_mov_b32 exec_hi, 0\nds_write_b128 v11, v[32:35]\ns_mov_b64 exec, -1")
    A("s_waitcnt lgkmcnt(0)\ns_barrier")
    A(f"s_cmp_lg_u32 {WV}, 0\ns_cbranch_scc1 Q_DONE")
    for w in range(4): A(f"ds_read_b64 v[{60+2*w}:{61+2*w}], v18 offset:{512*w}")
    A("s_waitcnt lgkmcnt(2)\nv_pk_add_f32 v[60:61], v[60:61], v[62:63]")
    A("s_waitcnt lgkmcnt(0)\nv_pk_add_f32 v[64:65], v[64:65], v[66:67]")
    A("v_add_f32 v36, v60, v64\nv_add_f32 v38, v61, v65")
    if dual: A(f"s_add_u32 s12, s11, {WS_QP2-WS_QP}\nbuffer_store_dwordx4 v[36:39], v5, {W}, s12 offen")
    A(f"buffer_store_dwordx4 v[36:39], v5, {W}, s11 offen {ST}")
    stamp(2)
    A("Q_DONE:")
    A("s_cmp_ge_u32 s31, 4\ns_cbranch_scc1 SIDE")
    A(f"s_cmp_lg_u32 {WV}, 1\ns_cbranch_scc1 T_NOG")
    A("v_lshrrev_b32 v12, 3, v0\nv_and_b32 v13, 7, v0\nv_lshlrev_b32 v14, 5, v13")
    A("v_cmp_eq_u32 vcc, 2, v12\nv_lshlrev_b32 v15, 4, v12\ns_nop 0")
    A("v_cndmask_b32 v15, v15, 12, vcc\nv_add_u32 v15, v15, v14\nv_cndmask_b32 v16, 4, 16, vcc\nv_add_u32 v16, v16, v15")
    A("v_lshlrev_b32 v12, 14, v12\nv_lshl_add_u32 v12, v13, 4, v12")
    A(f"s_lshl_b32 s10, s30, 9\ns_lshl_b32 s12, s31, 7\ns_add_u32 s10, s10, s12\ns_add_u32 s10, s10, {WS_QA}")
    A(f"v_mov_b32 v55, {TAG}")
    spin_head("T_QPOLL")
    if dual: A(f"s_and_b32 s12, s25, 3\ns_cmp_eq_u32 s12, 1\ns_cselect_b32 s12, 0, {WS_QP2-WS_QP}\ns_add_u32 s12, s12, s9")
    else: A("s_mov_b32 s12, s9")
    A("s_add_u32 s13, s12, 4096")
    for e in range(8):
        A(f"buffer_load_dwordx4 v[{60+4*e}:{63+4*e}], v5, {W}, s{12+(e>>2)} offen offset:{(e&3)*1024} {LD}")
    for e in range(8):
        A(f"s_waitcnt vmcnt({7-e})")
        tagchk(31, 61+4*e, e == 0); tagchk(31, 63+4*e, False)
        if e & 1: A(f"v_add_f32 v{56+4*e}, v{56+4*e}, v{60+4*e}\nv_add_f32 v{58+4*e}, v{58+4*e}, v{62+4*e}")
    spin_tail("T_QPOLL", 31, 0)
    stamp(3)
    if dbgf: A(f"s_waitcnt lgkmcnt(0)\ns_sub_u32 s96, {SPIN+1}, s25\ns_add_u32 s96, s96, s80")
    A("v_add_f32 v60, v60, v68\nv_add_f32 v62, v62, v70\nv_add_f32 v76, v76, v84\nv_add_f32 v78, v78, v86")
    A("v_add_f32 v60, v60, v76\nv_add_f32 v62, v62, v78")
    A("v_cvt_pk_bf16_f32 v60, v60, v62")
    A(f"ds_write_b32 v17, v60 offset:{L_Q}")
    A("s_waitcnt lgkmcnt(0)\ns_barrier\ns_barrier")
    A(f"ds_read_b32 v52, v15 offset:{L_QA}\nds_read_b32 v53, v16 offset:{L_QA}\nds_read_b32 v54, v15 offset:{L_QA+8}")
    A("s_mov_b64 exec, 0xffffff")
    A("s_waitcnt lgkmcnt(0)")
    A(f"buffer_store_dwordx4 v[52:55], v12, {W}, s10 offen {ST}")
    A("s_mov_b64 exec, -1")
    stamp(4)
    A("s_branch T_NOP")
    A("T_NOG:\ns_barrier\ns_barrier\ns_branch T_NOP")
    A(".p2align 7")
    A("HI:")
    A("s_lshl_b32 s9, s31, 20\ns_add_u32 s9, s9, s8\ns_sub_u32 s9, s9, 0x20000\nv_add_u32 v19, s9, v1\ns_mov_b32 s10, 0x20000")
    A("s_waitcnt lgkmcnt(0)")
    def wuk(t):
        A(f"global_load_dwordx4 v[{200+4*t}:{203+4*t}], v19, s[70:71] {NT}")
        if t < 7: A("v_add_u32 v19, s10, v19")
    for t in range(uk_early): wuk(t)
    A("s_barrier")
    for t in range(uk_early, 8): wuk(t)
    A(f"s_load_dword {TAG}, s[16:17], 0")
    common_loads()
    A("v_lshrrev_b32 v5, 6, v0\nv_and_b32 v0, 63, v0\nv_lshrrev_b32 v2, 4, v0")
    A(f"v_readfirstlane_b32 {WV}, v5")
    if stamps:
        for i in range(1, 10): A(f"s_mov_b64 s[{80+2*i}:{81+2*i}], 0")
    stamp(1)
    common_setup()
    A("s_and_b32 s33, s2, 127")
    selectors(3)
    A("v_lshrrev_b32 v6, 3, v3\nv_bfe_u32 v7, v3, 2, 1\nv_lshl_add_u32 v6, v7, 1, v6\nv_bfe_u32 v7, v3, 1, 1\nv_lshl_add_u32 v6, v7, 2, v6\nv_lshl_add_u32 v6, v6, 4, v2")
    A(f"s_lshl_b32 s9, {WV}, 2\ns_sub_u32 s9, s9, 16\nv_add_u32 v6, s9, v6\nv_lshlrev_b32 v6, 1, v6")
    A("v_cmp_ne_u32 vcc, 0, v7\nv_lshlrev_b32 v7, 4, v3")
    for t in range(8): A(f"v_mov_b32 v{56+t}, 0")
    A(f"s_waitcnt lgkmcnt(0)\ns_add_u32 {TAG}, {TAG}, 1")
    A("s_waitcnt vmcnt(0)")
    if dbgf: stamp(7)
    A("s_barrier")
    A(f"ds_read_b128 v[32:35], v7 offset:{L_Q}")
    A("s_waitcnt lgkmcnt(0)")
    for k in range(4):
        for t in range(8):
            A(f"v_dot2c_f32_bf16 v{56+t}, v{200+4*t+k}, v{32+k}")
    for p_ in range(4): A(f"v_add_f32_dpp v{56+2*p_}, v{56+2*p_}, v{56+2*p_} row_ror:8 row_mask:0xf bank_mask:0x3")
    for p_ in range(4): A(f"v_add_f32_dpp v{56+2*p_}, v{57+2*p_}, v{57+2*p_} row_ror:8 row_mask:0xf bank_mask:0xc")
    A("v_add_f32_dpp v56, v56, v56 row_half_mirror row_mask:0xf bank_mask:0x5")
    A("v_add_f32_dpp v60, v60, v60 row_half_mirror row_mask:0xf bank_mask:0x5")
    A("v_add_f32_dpp v56, v58, v58 row_half_mirror row_mask:0xf bank_mask:0xa")
    A("v_add_f32_dpp v60, v62, v62 row_half_mirror row_mask:0xf bank_mask:0xa")
    A("s_nop 0")
    A("v_add_f32_dpp v56, v56, v56 quad_perm:[2,3,0,1] row_mask:0xf bank_mask:0xf")
    A("v_add_f32_dpp v60, v60, v60 quad_perm:[2,3,0,1] row_mask:0xf bank_mask:0xf")
    A("v_cndmask_b32 v56, v56, v60, vcc\ns_nop 1")
    A("v_add_f32_dpp v56, v56, v56 quad_perm:[1,0,3,2] row_mask:0xf bank_mask:0xf")
    A(f"v_mul_f32 v56, {hex(f2u(QSCALE))}, v56")
    A("v_cvt_pk_bf16_f32 v56, v56, v56")
    A(f"ds_write_b16 v6, v56 offset:{L_QA}")
    A("s_waitcnt lgkmcnt(0)\ns_barrier")
    A("T_NOP:")
    pack24_consts()
    srd(4, "wuv"); srd(8, "wo")
    A("v_lshlrev_b32 v4, 17, v2\nv_lshl_add_u32 v4, v3, 4, v4")
    A(f"s_lshl_b32 s12, s31, 6\ns_add_u32 s12, s12, {WV}\ns_lshl_b32 s12, s12, 14\ns_lshl_b32 s13, s30, 8\ns_add_u32 s12, s12, s13")
    A("v_mul_u32_u24 v9, 1280, v2\nv_lshl_add_u32 v9, v3, 4, v9")
    A(f"s_lshl_b32 s34, s30, 2\ns_add_u32 s34, s34, s31")
    A(f"s_mul_i32 s13, s34, {32*1280}\ns_lshl_b32 s14, {WV}, 8\ns_add_u32 s13, s13, s14")
    A(f"s_lshl_b32 s35, s34, 10\ns_lshl_b32 s14, {WV}, 7\ns_add_u32 s35, s35, s14\ns_add_u32 s35, s35, {WS_CX}")
    A(f"s_add_u32 s36, s35, {WS_CX2-WS_CX}\nv_mov_b32 v11, 0")
    A(f"s_lshl_b32 s15, {WV}, 12")
    if tail_n0: A(f"s_cmp_eq_u32 {WV}, 7\ns_cbranch_scc1 T_TRK\ns_barrier\nT_TRK:")
    for t in range(4):
        A(f"s_add_u32 m0, s15, {t*1024}")
        A(f"s_add_u32 s14, s12, {(64*(t&1) + (t>>1))*8192}")
        A(f"buffer_load_dwordx4 v4, s[4:7], s14 offen {NT} lds")
        if t < tail_n0:
            l_ = A.label("TRK")
            A(f"s_cmp_lg_u32 {WV}, 7\ns_cbranch_scc1 {l_}\ns_waitcnt vmcnt(0)")
            if t == tail_n0 - 1: A("s_barrier")
            A(f"{l_}:")
    A(f"buffer_load_dword v31, v11, {W}, s36 offen {LD}")
    A(f"s_cmp_ge_u32 {WV}, 5\ns_cbranch_scc1 T_NOWO")
    for t in range(8):
        A(f"buffer_load_dwordx4 v[{120+4*t}:{123+4*t}], v9, s[8:11], s13 offen {NT}")
        if t < 7: A("s_add_u32 s13, s13, 5120")
    A("T_NOWO:")
    A("v_bfe_u32 v5, v0, 1, 1\nv_lshlrev_b32 v5, 3, v5\nv_lshl_add_u32 v5, v2, 1, v5\nv_and_b32 v6, 1, v0\nv_add_u32 v5, v5, v6")
    A(f"s_lshl_b32 s12, s34, 3\ns_add_u32 s12, s12, {WV}")
    if st_mode == 2:
        A(f"v_lshlrev_b32 v5, 11, v5\ns_lshl_b32 s13, {WV}, 15\ns_lshl_b32 s14, s31, 6\ns_add_u32 s13, s13, s14\ns_and_b32 s14, s30, 7\ns_lshl_b32 s14, s14, 8\ns_add_u32 s13, s13, s14")
        A(f"s_lshr_b32 s14, s30, 3\ns_lshl_b32 s14, s14, 4\ns_add_u32 s13, s13, s14\ns_add_u32 s13, s13, {WS_ST}")
    elif st_mode == 1:
        A(f"v_lshlrev_b32 v5, 11, v5\ns_lshl_b32 s13, {WV}, 15\ns_lshl_b32 s14, s31, 9\ns_add_u32 s13, s13, s14\ns_lshl_b32 s14, s30, 4\ns_add_u32 s13, s13, s14\ns_add_u32 s13, s13, {WS_ST}")
    else:
        A(f"v_lshlrev_b32 v5, 4, v5\ns_lshl_b32 s13, s12, 8\ns_add_u32 s13, s13, {WS_ST}")
    A(f"s_lshl_b32 s12, s12, 12\ns_add_u32 s12, s12, {WS_OP}")
    A("v_lshlrev_b32 v10, 4, v0")
    A(f"s_lshl_b32 s14, {WV}, 2\nv_mov_b32 v6, s14")
    A(f"v_lshlrev_b32 v7, 4, v3\nv_lshl_add_u32 v7, v2, 3, v7\ns_mul_i32 s14, {WV}, 272\nv_add_u32 v7, s14, v7")
    A("v_and_b32 v8, 7, v0\nv_mul_u32_u24 v8, 272, v8\nv_lshl_add_u32 v8, v2, 4, v8")
    A(f"v_bfe_u32 v12, v0, 2, 2\nv_lshl_add_u32 v12, v2, 3, v12\nv_lshlrev_b32 v12, 8, v12\nv_and_b32 v13, 3, v0\nv_lshl_add_u32 v12, v13, 3, v12\ns_lshl_b32 s14, {WV}, 5\nv_add_u32 v12, s14, v12")
    A("v_lshlrev_b32 v14, 3, v3")
    A("v_and_b32 v15, 12, v3\nv_add_u32 v15, v15, v2\nv_lshlrev_b32 v15, 4, v15\nv_lshl_add_u32 v15, v13, 10, v15")
    A(f"s_lshl_b32 s37, s30, 12\ns_lshl_b32 s14, s31, 8\ns_add_u32 s37, s37, s14\ns_add_u32 s37, s37, {WS_CX}")
    if fa_mode == 1:
        A("v_lshlrev_b32 v19, 12, v3\nv_lshl_add_u32 v19, v2, 4, v19")
        A(f"s_lshl_b32 s15, s33, 5\ns_lshl_b32 s14, {WV}, 16\ns_add_u32 s15, s15, s14\ns_add_u32 s15, s15, {WS_FA}")
    else:
        A("v_lshlrev_b32 v19, 5, v3\nv_lshl_add_u32 v19, v2, 4, v19")
        A(f"s_mul_i32 s15, s33, 2560\ns_lshl_b32 s14, {WV}, 9\ns_add_u32 s15, s15, s14\ns_add_u32 s15, s15, {WS_FA}")
    if cks:
        A(f"v_add_u32 v16, {TAG}, v3\ns_mov_b32 s14, 0x9e3779b1\nv_mul_lo_u32 v16, v16, s14")
        A("v_lshrrev_b32 v17, 3, v3\nv_lshrrev_b32 v18, 1, v2\nv_lshl_add_u32 v17, v17, 1, v18\nv_lshlrev_b32 v17, 4, v17")
        A("v_bfe_u32 v18, v3, 2, 1\nv_lshl_add_u32 v17, v18, 1, v17\nv_and_b32 v18, 1, v2\nv_add_u32 v17, v17, v18\nv_lshlrev_b32 v17, 2, v17")
    for i in range(8): A(f"v_mov_b32 v{56+i}, 0")
    A(f"v_mov_b32 v65, {TAG}\nv_mov_b32 v67, {TAG}\nv_mov_b32 v71, {TAG}")
    A("s_waitcnt vmcnt(0)\ns_barrier")
    for ks in range(4):
        for sec in range(2):
            A(f"ds_read_b64_tr_b16 v[{100+4*ks+2*sec}:{101+4*ks+2*sec}], v12 offset:{ks*8192 + sec*1024}")
    tstamp = (lambda i: None) if dbgf else stamp
    tstamp(5)
    spin_head("T_SPOLL")
    A(f"buffer_load_dwordx4 v[32:35], v5, {W}, s13 offen {LD}")
    A("s_waitcnt vmcnt(0)")
    tagchk(31, 35, True)
    spin_tail("T_SPOLL", 31)
    for t in range(4):
        A(f"buffer_load_dwordx4 v[{80+4*t}:{83+4*t}], v10, {W}, s12 offen offset:{t*1024} {LD}")
    tstamp(6)
    def wave_red(op, v, t):
        A(f"v_{op}_f32_dpp v{v}, v{v}, v{v} quad_perm:[1,0,3,2] row_mask:0xf bank_mask:0xf\ns_nop 1")
        A(f"v_{op}_f32_dpp v{v}, v{v}, v{v} quad_perm:[2,3,0,1] row_mask:0xf bank_mask:0xf")
        A(f"v_mov_b32 v{t}, v{v}\ns_nop 1\nv_permlane16_swap_b32 v{v}, v{t}\nv_{op}_f32 v{v}, v{v}, v{t}")
        A(f"v_mov_b32 v{t}, v{v}\ns_nop 1\nv_permlane32_swap_b32 v{v}, v{t}\nv_{op}_f32 v{v}, v{v}, v{t}")
    A("v_mov_b32 v36, v32\ns_nop 1")
    wave_red("max", 36, 37)
    A(f"ds_write_b32 v6, v36 offset:{L_M}")
    A("s_waitcnt lgkmcnt(0)\ns_barrier")
    A(f"ds_read_b128 v[36:39], v11 offset:{L_M}\nds_read_b128 v[40:43], v11 offset:{L_M+16}")
    A("s_waitcnt lgkmcnt(0)")
    A("v_max3_f32 v36, v36, v37, v38\nv_max3_f32 v39, v39, v40, v41\nv_max3_f32 v36, v36, v42, v43\nv_max_f32 v36, v36, v39")
    A("v_sub_f32 v36, v32, v36\nv_exp_f32 v36, v36\ns_nop 0")
    A("v_mul_f32 v37, v36, v33")
    for t in range(4):
        A(f"v_mov_b32_dpp v{40+t}, v36 quad_perm:[{t},{t},{t},{t}] row_mask:0xf bank_mask:0xf")
    A("v_cvt_pk_bf16_f32 v28, v40, v41\nv_cvt_pk_bf16_f32 v29, v42, v43")
    sel4(44, 28); sel4(48, 29)
    wave_red("add", 37, 38)
    A(f"ds_write_b32 v6, v37 offset:{L_L}")
    if cks:
        A("ds_bpermute_b32 v30, v17, v34")
        A(f"s_mov_b32 s25, {SPIN}")
        A("T_CK:")
        for t in range(4):
            A(f"s_waitcnt vmcnt({3-t})")
            r = 80 + 4*t
            A(f"v_add3_u32 v{72+t}, v{r}, v{r+1}, v{r+2}\nv_add_u32 v{72+t}, v{72+t}, v{r+3}")
            for k in range(4): A(f"v_xor_b32 v{r+k}, v16, v{r+k}")
            if t == 2: smf(56, 44, 80)
        A("v_add_u32_dpp v72, v72, v72 row_ror:8 row_mask:0xf bank_mask:0x3\nv_add_u32_dpp v74, v74, v74 row_ror:8 row_mask:0xf bank_mask:0x3")
        smf(56, 48, 88)
        tstamp(7)
        A("v_add_u32_dpp v72, v73, v73 row_ror:8 row_mask:0xf bank_mask:0xc\nv_add_u32_dpp v74, v75, v75 row_ror:8 row_mask:0xf bank_mask:0xc\ns_nop 0")
        A("v_add_u32_dpp v72, v72, v72 row_half_mirror row_mask:0xf bank_mask:0x5\nv_add_u32_dpp v72, v74, v74 row_half_mirror row_mask:0xf bank_mask:0xa\ns_nop 1")
        A("v_add_u32_dpp v72, v72, v72 quad_perm:[1,0,3,2] row_mask:0xf bank_mask:0xf\ns_waitcnt lgkmcnt(0)\ns_nop 0")
        A("v_add_u32_dpp v72, v72, v72 quad_perm:[2,3,0,1] row_mask:0xf bank_mask:0xf")
        A("v_cmp_ne_u32 vcc, v72, v30\ns_cbranch_vccz T_CKOK")
        for t in range(4):
            A(f"buffer_load_dwordx4 v[{80+4*t}:{83+4*t}], v10, {W}, s12 offen offset:{t*1024} {LD}")
        for i in range(4): A(f"v_mov_b32 v{56+i}, 0")
        A("s_sub_u32 s25, s25, 1\ns_cmp_lg_u32 s25, 0\ns_cbranch_scc1 T_CK")
        A("T_CKOK:")
        if stamps and not dbgf: A(f"s_sub_u32 s82, {SPIN+1}, s25\ns_add_u32 s82, s82, s80")
    else:
        A("s_waitcnt vmcnt(2)")
        smf(56, 44, 80)
        A("s_waitcnt vmcnt(0)")
        smf(56, 48, 88)
        tstamp(7)
        A("s_nop 7")
    A("v_cvt_pk_bf16_f32 v56, v56, v57\nv_cvt_pk_bf16_f32 v57, v58, v59")
    A(f"s_mov_b32 exec_hi, 0\nds_write_b64 v7, v[56:57] offset:{L_PART}\ns_mov_b64 exec, -1")
    A("s_waitcnt lgkmcnt(0)\ns_barrier")
    for ks in range(4): A(f"ds_read_b128 v[{80+4*ks}:{83+4*ks}], v8 offset:{L_PART + 64*ks}")
    A(f"ds_read_b128 v[36:39], v11 offset:{L_L}\nds_read_b128 v[40:43], v11 offset:{L_L+16}")
    for ks in range(4):
        A(f"s_waitcnt lgkmcnt({5-ks})")
        A(f"v_mfma_f32_16x16x32_bf16 v[52:55], v[{80+4*ks}:{83+4*ks}], v[{100+4*ks}:{103+4*ks}], {'0' if ks==0 else 'v[52:55]'}")
    A("s_waitcnt lgkmcnt(0)")
    A("v_pk_add_f32 v[36:37], v[36:37], v[38:39]\nv_pk_add_f32 v[40:41], v[40:41], v[42:43]\nv_pk_add_f32 v[36:37], v[36:37], v[40:41]")
    A("v_add_f32 v36, v36, v37\nv_rcp_f32 v36, v36\ns_nop 2")
    A("v_add_f32 v52, v52, v53\nv_add_f32 v54, v54, v55\nv_add_f32 v52, v52, v54")
    A("v_mov_b32 v53, v52\ns_nop 1\nv_permlane16_swap_b32 v52, v53\nv_add_f32 v64, v52, v53\ns_nop 1")
    A("v_mov_b32_dpp v66, v64 quad_perm:[1,0,3,2] row_mask:0xf bank_mask:0xf")
    A("s_mov_b64 exec, 0x5555")
    A(f"buffer_store_dwordx4 v[64:67], v14, {W}, s36 offen")
    A("s_mov_b64 exec, -1")
    tstamp(2)
    A(f"s_mov_b32 s25, {SPIN}")
    A(f"s_cmp_ge_u32 {WV}, 5\ns_cbranch_scc1 T_BST")
    A(f"s_add_u32 s12, s37, {WS_CX2-WS_CX}")
    A("T_CPOLL:")
    A(f"buffer_load_dwordx4 v[32:35], v15, {W}, s12 offen {LD}")
    A("s_waitcnt vmcnt(0)")
    tagchk(31, 33, True); tagchk(31, 35, False)
    A("v_cmp_ne_u32 vcc, 0, v31\ns_cbranch_vccz T_COK")
    A(f"s_sub_u32 s25, s25, 1\ns_cmp_gt_u32 s25, {SPIN-12}\ns_cbranch_scc1 T_CPOLL")
    A(f"s_cmp_lg_u32 s25, {SPIN-12}\ns_cbranch_scc1 T_CNB")
    A(f"s_mov_b64 exec, 0x5555\nbuffer_store_dwordx4 v[64:67], v14, {W}, s35 offen {ST}\ns_mov_b64 exec, -1")
    A("T_CNB:")
    A(f"s_and_b32 s12, s25, 1\ns_cselect_b32 s12, 0, {WS_CX2-WS_CX}\ns_add_u32 s12, s12, s37")
    A("s_cmp_lg_u32 s25, 0\ns_cbranch_scc1 T_CPOLL")
    A("T_COK:")
    tstamp(3)
    for qp in ("[1,0,3,2]", "[2,3,0,1]"):
        A(f"v_add_f32_dpp v32, v32, v32 quad_perm:{qp} row_mask:0xf bank_mask:0xf\nv_add_f32_dpp v34, v34, v34 quad_perm:{qp} row_mask:0xf bank_mask:0xf\ns_nop 0")
    A("v_mul_f32 v32, v32, v36\nv_mul_f32 v34, v34, v36\nv_cvt_pk_bf16_f32 v32, v32, v34\ns_nop 1")
    for U in range(4): A(f"v_mov_b32_dpp v{28+U}, v32 row_newbcast:{4*U} row_mask:0xf bank_mask:0xf")
    for U in range(4): sel4(40+4*U, 28+U)
    for U in range(4): smf(60, 40+4*U, 120+8*U)
    A("s_nop 7")
    pack24(60, 68, 38)
    A("s_mov_b32 exec_hi, 0")
    A(f"buffer_store_dwordx4 v[68:71], v19, {W}, s15 offen {ST}")
    A("T_BST:")
    A(f"s_mov_b64 exec, 0x5555\nbuffer_store_dwordx4 v[64:67], v14, {W}, s35 offen {ST}\ns_mov_b64 exec, -1")
    A("T_DONE:")
    tstamp(8)
    finish()
    A(".p2align 7")
    A("ATT:")
    A("s_cmp_ge_u32 s31, 8\ns_cbranch_scc1 END")
    A("v_lshrrev_b32 v1, 6, v0\nv_and_b32 v0, 63, v0\ns_lshl_b32 s8, s2, 2")
    A(f"v_readfirstlane_b32 {WV}, v1")
    A("v_lshlrev_b32 v62, 4, v0\ns_mov_b32 s10, 0")
    A(f"s_sub_u32 s36, {WV}, 4\ns_add_u32 s8, s8, s36\ns_lshl_b32 s9, s36, 15\ns_bitset0_b32 s8, 9\ns_lshl_b32 s8, s8, 15\ns_mov_b32 m0, s9")
    A("s_waitcnt lgkmcnt(0)")
    A("s_add_u32 s66, s66, s8\ns_addc_u32 s67, s67, 0")
    def dma_loop(name, upto, win, bar=None):
        A(f"{name}:")
        A("s_lshl_b32 s11, s10, 5\ns_and_b32 s12, s10, 8\ns_and_b32 s11, s11, 0xe0\ns_lshl1_add_u32 s11, s12, s11")
        A("v_xor_b32 v63, s11, v62")
        if win: A(f"s_waitcnt vmcnt({win-1})")
        if bar is not None: A(f"s_cmp_lg_u32 s10, {bar}\ns_cbranch_scc1 {name}_NB\ns_barrier\n{name}_NB:")
        A(f"global_load_lds_dwordx4 v63, s[66:67] {NT}")
        A("v_add_u32 v62, 0x400, v62\ns_add_u32 m0, m0, 0x400\ns_add_u32 s10, s10, 1")
        A(f"s_cmp_lt_u32 s10, {upto}\ns_cbranch_scc1 {name}")
    if dbgf: stamp(6)
    dma_loop("DMA0", att_w0 + att_win, att_win, bar=att_w0)
    if dbgf: stamp(8)
    common_loads()
    A(f"s_load_dword {TAG}, s[16:17], 0")
    A("s_and_b32 s33, s2, 127")
    if stamps:
        for i in range(1, 6 if dbgf else 10): A(f"s_mov_b64 s[{80+2*i}:{81+2*i}], 0")
    common_setup()
    A("v_and_b32 v2, 31, v0\nv_lshrrev_b32 v3, 5, v0")
    A("v_and_b32 v4, 7, v2\nv_bfe_u32 v5, v2, 3, 1\nv_lshl_add_u32 v4, v4, 1, v5\nv_xor_b32 v4, v4, v3\nv_lshlrev_b32 v4, 4, v4\nv_lshl_add_u32 v4, v2, 10, v4")
    A("v_add_u32 v8, s9, v4")
    for tt in range(1, 8): A(f"v_xor_b32 v{8+tt}, {tt << 5}, v8")
    for tt in range(8):
        A(f"v_xor_b32 v{16+tt}, {tt}, v0\nv_lshlrev_b32 v{16+tt}, 4, v{16+tt}\nv_add_u32 v{16+tt}, {QL + tt*1024}, v{16+tt}")
    A(f"v_lshlrev_b32 v6, 4, v2\nv_add_u32 v28, {QL+8192}, v6\ns_lshl_b32 s11, s36, 2\nv_add_u32 v29, s11, v28")
    A(f"v_lshlrev_b32 v6, 5, v2\nv_add_u32 v31, {QL+9216}, v6\nv_lshl_add_u32 v31, v3, 2, v31\ns_lshl_b32 s11, s36, 3\nv_add_u32 v31, s11, v31")
    A(f"s_lshl_b32 s11, s36, 11\ns_add_u32 s11, s11, {QL}\nv_lshlrev_b32 v32, 4, v0\nv_add_u32 v32, s11, v32")
    A("v_lshrrev_b32 v4, 3, v0\nv_and_b32 v35, 7, v0\nv_and_b32 v5, 1, v4\nv_lshl_add_u32 v5, v3, 1, v5")
    A("v_mul_u32_u24 v5, 20, v5\nv_bfe_u32 v6, v4, 1, 1\nv_add_u32 v5, v5, v6\nv_mul_u32_u24 v5, 3456, v5\nv_lshl_add_u32 v33, v35, 4, v5\nv_mul_u32_u24 v34, 40, v4")
    A("s_waitcnt lgkmcnt(0)")
    A("s_cmp_lt_u32 s36, 2")
    A(f"s_cselect_b32 s72, s{P['wg']}, s{P['wu']}\ns_cselect_b32 s73, s{P['wg']+1}, s{P['wu']+1}\ns_cselect_b32 s37, 0, 4096")
    A(f"s_cmp_lt_u32 s33, 108\ns_cselect_b32 s74, {SZ['wg']}, 0\ns_mov_b32 s75, 0x20000")
    srd(20, "x")
    A(f"s_and_b32 s11, s33, 3\ns_lshr_b32 s12, s33, 2\ns_and_b32 s26, s36, 1")
    A(f"s_mul_i32 s13, s11, {160*3456}\ns_lshl_b32 s14, s12, 7\ns_add_u32 s13, s13, s14\ns_mul_i32 s14, s26, {10*3456}\ns_add_u32 s13, s13, s14\ns_add_u32 s14, s13, {80*3456}")
    A("s_mul_i32 s15, s11, 320\ns_mul_i32 s27, s26, 20\ns_add_u32 s15, s15, s27")
    A(f"s_lshl_b32 s12, s12, 13\ns_lshl_b32 s11, s11, 10\ns_lshl_b32 s26, s26, 9\ns_add_u32 s37, s37, s12\ns_add_u32 s37, s37, s11\ns_add_u32 s37, s37, s26\ns_add_u32 s37, s37, {WS_GP}")
    A(f"s_waitcnt lgkmcnt(0)\ns_add_u32 {TAG}, {TAG}, 1")
    if dbgf: stamp(7)
    dma_loop("DMA2", trig, att_win)
    A("s_barrier")
    if trig < 32: dma_loop("DMA3", 32, att_win)
    stamp(1)
    fops = ["buffer_load_dwordx4 v[120:123], v34, s[20:23], s15 offen", "buffer_load_dword v124, v34, s[20:23], s15 offen offset:16"]
    for T in range(5):
        for hf in range(2):
            r = 80 + 8*T + 4*hf
            fops.append(f"buffer_load_dwordx4 v[{r}:{r+3}], v33, s[72:75], s{13+hf} offen {NT}" + (f"\ns_add_u32 s{13+hf}, s{13+hf}, {2*3456}" if T < 4 else ""))
    D = 4
    if apre:
        A("s_waitcnt vmcnt(0)")
        stamp(2)
        for t in range(32):
            A(f"ds_read_b128 v[{128+4*t}:{131+4*t}], v{8+(t&7)} offset:{(t>>3)*256}")
        if prio: A("s_setprio 2")
        A("s_waitcnt lgkmcnt(0)\ns_barrier")
        stamp(3)
        for t in range(D): A(f"ds_read_b128 v[{64+4*t}:{67+4*t}], v{16+t}")
        for t in range(32):
            A(f"s_waitcnt lgkmcnt({min(D-1, 31-t)})")
            if t == 31: A("s_barrier")
            a_ = 64 + 4*(t % D)
            A(f"v_mfma_f32_32x32x16_bf16 v[40:55], v[{128+4*t}:{131+4*t}], v[{a_}:{a_+3}], {'0' if t==0 else 'v[40:55]'}")
            if t + D < 32: A(f"ds_read_b128 v[{a_}:{a_+3}], v{16+((t+D)&7)} offset:{((t+D)>>3)*8192}")
            if t % 2 == 1 and fops: A(fops.pop(0))
    else:
        A("s_barrier")
        stamp(2)
        for t in range(32):
            A(f"ds_read_b128 v[{128+4*t}:{131+4*t}], v{16+(t&7)} offset:{(t>>3)*8192}")
        A("s_waitcnt vmcnt(0)")
        if prio: A("s_setprio 2")
        for t in range(D): A(f"ds_read_b128 v[{64+4*t}:{67+4*t}], v{8+t}")
        A(f"s_waitcnt lgkmcnt({D})\ns_barrier")
        stamp(3)
        for t in range(32):
            A(f"s_waitcnt lgkmcnt({min(D-1, 31-t)})")
            a_ = 64 + 4*(t % D)
            A(f"v_mfma_f32_32x32x16_bf16 v[40:55], v[{a_}:{a_+3}], v[{128+4*t}:{131+4*t}], {'0' if t==0 else 'v[40:55]'}")
            if t + D < 32: A(f"ds_read_b128 v[{a_}:{a_+3}], v{8+((t+D)&7)} offset:{((t+D)>>3)*256}")
            if t % 2 == 1 and fops: A(fops.pop(0))
    A("s_nop 11")
    stamp(4)
    A("v_max3_f32 v56, v40, v41, v42\nv_max3_f32 v57, v43, v44, v45\nv_max3_f32 v58, v46, v47, v48\nv_max3_f32 v59, v49, v50, v51")
    A("v_max3_f32 v56, v56, v52, v53\nv_max3_f32 v57, v57, v54, v55\nv_max3_f32 v56, v56, v57, v58\nv_max_f32 v56, v56, v59")
    A("v_mov_b32 v57, v56\ns_nop 1\nv_permlane32_swap_b32 v56, v57\nv_max_f32 v56, v56, v57")
    A("v_ceil_f32 v36, v56")
    A("ds_write_b32 v29, v36")
    for i in range(8): A(f"v_pk_add_f32 v[{40+2*i}:{41+2*i}], v[{40+2*i}:{41+2*i}], v[36:37] op_sel_hi:[1,0] neg_lo:[0,1] neg_hi:[0,1]")
    for r in range(4): A(f"v_exp_f32 v{40+r}, v{40+r}")
    A("s_waitcnt lgkmcnt(0)\ns_barrier")
    A("ds_read_b128 v[56:59], v28")
    for r in range(4, 16): A(f"v_exp_f32 v{40+r}, v{40+r}")
    A("s_waitcnt lgkmcnt(0)")
    A("v_max3_f32 v56, v56, v57, v58\nv_max_f32 v60, v56, v59")
    A("v_sub_f32 v36, v36, v60\nv_exp_f32 v36, v36\ns_nop 0")
    for hs in range(2):
        for i in range(4*hs, 4*hs+4): A(f"v_pk_mul_f32 v[{40+2*i}:{41+2*i}], v[{40+2*i}:{41+2*i}], v[36:37] op_sel_hi:[1,0]")
        for i in range(4*hs, 4*hs+4): A(f"v_cvt_pk_bf16_f32 v{64+i}, v{40+2*i}, v{41+2*i}")
        A(f"ds_write_b128 v32, v[{64+4*hs}:{67+4*hs}] offset:{1024*hs}")
    A("s_waitcnt lgkmcnt(0)\ns_barrier")
    if prio: A("s_setprio 0")
    stamp(5)
    for i in range(4): A(f"v_pk_add_f32 v[{40+2*i}:{41+2*i}], v[{40+2*i}:{41+2*i}], v[{48+2*i}:{49+2*i}]")
    A("v_pk_add_f32 v[40:41], v[40:41], v[44:45]\nv_pk_add_f32 v[42:43], v[42:43], v[46:47]\nv_pk_add_f32 v[40:41], v[40:41], v[42:43]\nv_add_f32 v40, v40, v41")
    A("ds_write_b32 v31, v40")
    A("s_waitcnt lgkmcnt(0)\ns_barrier")
    A("s_cmp_ge_u32 s33, 108\ns_cbranch_scc1 K_END")
    selectors(35)
    A("v_lshrrev_b32 v28, 4, v0\nv_and_b32 v29, 1, v28\nv_lshrrev_b32 v28, 1, v28\nv_lshl_add_u32 v28, v29, 1, v28\nv_lshl_add_u32 v28, v35, 2, v28\nv_lshlrev_b32 v6, 4, v28")
    A(f"v_mov_b32 v32, 0\nv_mov_b32 v33, 0\nv_mov_b32 v34, 0\nv_mov_b32 v35, 0\nv_mov_b32 v37, {TAG}\nv_mov_b32 v39, {TAG}")
    A("s_waitcnt vmcnt(10)")
    for T in range(5): sel4(40+4*T, 120+T)
    A("s_waitcnt vmcnt(0)")
    for T in range(5): smf(32, 40+4*T, 80+8*T)
    A("s_nop 7")
    A("v_permlane32_swap_b32 v32, v34\nv_permlane32_swap_b32 v33, v35\ns_nop 1")
    A("v_add_f32_dpp v36, v34, v32 row_ror:8 row_mask:0xf bank_mask:0xf")
    A("v_add_f32_dpp v38, v35, v33 row_ror:8 row_mask:0xf bank_mask:0xf")
    A("s_mov_b32 exec_lo, 0x00ff00ff\ns_mov_b32 exec_hi, 0x00ff00ff")
    A(f"buffer_store_dwordx4 v[36:39], v6, {W}, s37 offen {ST}")
    A("s_mov_b64 exec, -1")
    tstamp(6)
    A("s_cmp_eq_u32 s36, 1\ns_cbranch_scc1 K_F2")
    A("s_cmp_eq_u32 s36, 0\ns_cbranch_scc1 K_FIN")
    A("K_END:")
    finish()
    A("K_F2:")
    srd(4, "wd")
    A("v_lshrrev_b32 v2, 4, v0\nv_and_b32 v3, 15, v0\nv_mul_u32_u24 v4, 1280, v2\nv_lshl_add_u32 v4, v3, 4, v4")
    A(f"s_mul_i32 s12, s33, {16*1280}")
    for tq in range(4):
        for b in range(5):
            r = 120 + 40*(tq >> 1) + 8*b + 4*(tq & 1)
            A(f"buffer_load_dwordx4 v[{r}:{r+3}], v4, s[4:7], s12 offen offset:{b*256} {NT}")
        if tq < 3: A("s_add_u32 s12, s12, 5120")
    selectors(3); pack24_consts()
    for i in range(20): A(f"v_mov_b32 v{60+i}, 0")
    A("v_lshrrev_b32 v5, 3, v0\nv_lshlrev_b32 v5, 10, v5\nv_and_b32 v6, 7, v0\nv_lshl_add_u32 v5, v6, 4, v5")
    A(f"s_lshr_b32 s12, s33, 2\ns_lshl_b32 s12, s12, 13\ns_and_b32 s13, s33, 3\ns_lshl_b32 s13, s13, 7\ns_add_u32 s12, s12, s13\ns_add_u32 s12, s12, {WS_GP}")
    spin_head("F2_POLL")
    A(f"buffer_load_dwordx4 v[32:35], v5, {W}, s12 offen {LD}\nbuffer_load_dwordx4 v[36:39], v5, {W}, s12 offen offset:512 {LD}\ns_waitcnt vmcnt(0)")
    tagchk(31, 33, True); tagchk(31, 35, False); tagchk(31, 37, False); tagchk(31, 39, False); spin_tail("F2_POLL", 31, 4)
    tstamp(7)
    A("v_add_f32 v32, v32, v36\nv_add_f32 v34, v34, v38\ns_nop 1")
    A("v_add_f32_dpp v32, v32, v32 row_ror:8 row_mask:0xf bank_mask:0xf\nv_add_f32_dpp v34, v34, v34 row_ror:8 row_mask:0xf bank_mask:0xf")
    A("v_mov_b32 v33, v32\nv_mov_b32 v35, v34\ns_nop 1\nv_permlane16_swap_b32 v32, v33\nv_permlane16_swap_b32 v34, v35")
    A("v_add_f32 v32, v32, v33\nv_add_f32 v34, v34, v35")
    A("v_mov_b32 v33, v32\nv_mov_b32 v35, v34\ns_nop 1\nv_permlane32_swap_b32 v32, v33\nv_permlane32_swap_b32 v34, v35")
    for v in (32, 33, 34, 35): rnd(v)
    k1 = -2.0 * math.sqrt(2.0 / math.pi) * math.log2(math.e)
    for g in (32, 34):
        A(f"v_mul_f32 v36, v{g}, v{g}\nv_mul_f32 v36, {hex(f2u(0.044715))}, v36\nv_add_f32 v36, 1.0, v36\nv_mul_f32 v36, v36, v{g}\nv_mul_f32 v36, {hex(f2u(k1))}, v36")
        A(f"v_exp_f32 v36, v36\ns_nop 0\nv_add_f32 v36, 1.0, v36\nv_rcp_f32 v36, v36\ns_nop 0\nv_mul_f32 v{g}, v{g}, v36")
        rnd(g)
        A(f"v_mul_f32 v{g}, v{g}, v{g+1}")
    A("v_cvt_pk_bf16_f32 v32, v32, v34")
    A("v_lshlrev_b32 v5, 2, v2\nv_add_u32 v6, 16, v5")
    A("ds_bpermute_b32 v36, v5, v32\nds_bpermute_b32 v37, v6, v32\ns_waitcnt lgkmcnt(0)")
    sel4(44, 36); sel4(48, 37)
    for U in range(2):
        for b in range(5): smf(60+4*b, 44+4*U, 120+40*U+8*b)
    A("v_lshlrev_b32 v6, 12, v3\nv_lshl_add_u32 v6, v2, 4, v6")
    A(f"s_lshl_b32 s12, s33, 5\ns_add_u32 s12, s12, {WS_FB}")
    A("s_nop 4\ns_mov_b32 exec_hi, 0")
    for b in range(5):
        pack24(60+4*b, 80+4*b, 38)
        A(f"v_mov_b32 v{83+4*b}, {TAG}")
        A(f"buffer_store_dwordx4 v[{80+4*b}:{83+4*b}], v6, {W}, s12 offen {ST}")
        if b < 4: A("s_add_u32 s12, s12, 65536")
    A("s_mov_b64 exec, -1")
    tstamp(8)
    finish()
    A("K_FIN:")
    A("s_cmp_ge_u32 s33, 80\ns_cbranch_scc1 K_END")
    srd(8, "gw"); srd(12, "out")
    A("v_mul_u32_u24 v5, 20, v0")
    A("buffer_load_dwordx4 v[8:11], v5, s[20:23], 0 offen\nbuffer_load_dword v12, v5, s[20:23], 0 offen offset:16")
    A("buffer_load_dwordx4 v[16:19], v5, s[8:11], 0 offen\nbuffer_load_dword v20, v5, s[8:11], 0 offen offset:16")
    A("v_mov_b32 v30, 0\ns_waitcnt vmcnt(0)")
    for i in range(5):
        A(f"v_lshlrev_b32 v24, 16, v{8+i}\nv_and_b32 v25, 0xffff0000, v{8+i}\nv_lshlrev_b32 v26, 16, v{16+i}\nv_and_b32 v27, 0xffff0000, v{16+i}")
        A("v_mul_f32 v24, v24, v26\nv_mul_f32 v25, v25, v27\nv_cvt_pk_bf16_f32 v24, v24, v25\nv_lshlrev_b32 v25, 16, v24\nv_and_b32 v24, 0xffff0000, v24")
        A("v_add_f32 v30, v30, v25\nv_add_f32 v30, v30, v24")
    A("v_mov_b32 v31, v30\ns_nop 1\nv_permlane32_swap_b32 v30, v31\nv_add_f32 v30, v30, v31")
    A("v_mov_b32 v31, v30\ns_nop 1\nv_permlane16_swap_b32 v30, v31\nv_add_f32 v30, v30, v31")
    for k in (8, 4, 2, 1): A(f"s_nop 1\nv_add_f32_dpp v30, v30, v30 row_ror:{k} row_mask:0xf bank_mask:0xf")
    rnd(30)
    A(f"v_mul_f32 v30, {hex(f2u(-math.log2(math.e)))}, v30\nv_exp_f32 v30, v30\ns_nop 0\nv_add_f32 v30, 1.0, v30\nv_rcp_f32 v30, v30\ns_nop 0")
    rnd(30)
    A("v_sub_f32 v31, 1.0, v30")
    rnd(31)
    A("s_mov_b32 s70, 0x0504000c\ns_mov_b32 s71, 0x0706010c\ns_mov_b32 s72, 0x0504020c\ns_mov_b32 s73, 0x0706030c")
    A("v_lshlrev_b32 v5, 4, v0")
    A("v_and_b32 v8, 1, v0\nv_bfe_u32 v6, v0, 4, 1\nv_lshrrev_b32 v7, 5, v0\nv_lshl_add_u32 v6, v6, 1, v7\nv_lshl_add_u32 v8, v8, 2, v6\nv_lshlrev_b32 v8, 1, v8")
    A("s_lshl_b32 s27, s33, 4")
    def fgather(name, base, nprod, dst, sleep):
        if name == "F_A" and fa_mode == 2:
            A("v_lshrrev_b32 v6, 1, v0\nv_mul_u32_u24 v6, 2560, v6\nv_and_b32 v7, 1, v0\nv_lshl_add_u32 v6, v7, 4, v6")
            A(f"s_lshl_b32 s4, s33, 5\ns_add_u32 s4, s4, {base}\ns_add_u32 s5, s4, {32*2560}\ns_add_u32 s6, s4, {64*2560}\ns_add_u32 s7, s4, {96*2560}")
            spin_head(name)
            for i in range(4):
                A(f"buffer_load_dwordx4 v[{40+4*i}:{43+4*i}], v6, {W}, s{4+i} offen {LD}")
        else:
          A(f"s_lshl_b32 s28, s33, 12\ns_add_u32 s28, s28, {base}")
          spin_head(name)
          for i in range(4):
            A(f"buffer_load_dwordx4 v[{40+4*i}:{43+4*i}], v5, {W}, s28 offen offset:{i*1024} {LD}")
        A("s_waitcnt vmcnt(0)")
        tagchk(38, 55, True)
        if nprod < 128:
            A(f"v_cmp_gt_u32 vcc, {2*(nprod-96)}, v0\ns_nop 1\nv_cndmask_b32 v38, 0, v38, vcc")
            for k in range(3): A(f"v_cndmask_b32 v{52+k}, 0, v{52+k}, vcc")
        for i in range(3): tagchk(38, 43+4*i, False)
        spin_tail(name, 38, sleep)
        if name == "F_A":
            tstamp(6)
            if stamps: A(f"s_sub_u32 s82, {SPIN+1}, s25\ns_add_u32 s82, s82, s80")
        for i in range(4):
            d = 40 + 4*i; o = 60 + 4*i
            A(f"v_perm_b32 v{o}, v{d}, v{d+2}, s70\nv_perm_b32 v{o+1}, v{d}, v{d+2}, s71\nv_perm_b32 v{o+2}, v{d+1}, v{d+2}, s72\nv_perm_b32 v{o+3}, v{d+1}, v{d+2}, s73")
        for i in range(4): A(f"v_pk_add_f32 v[{60+2*i}:{61+2*i}], v[{60+2*i}:{61+2*i}], v[{68+2*i}:{69+2*i}]")
        for i in range(2): A(f"v_pk_add_f32 v[{60+2*i}:{61+2*i}], v[{60+2*i}:{61+2*i}], v[{64+2*i}:{65+2*i}]")
        A("s_nop 1\nv_permlane32_swap_b32 v60, v61\nv_permlane32_swap_b32 v62, v63\nv_add_f32 v60, v60, v61\nv_add_f32 v62, v62, v63")
        A(f"s_nop 1\nv_permlane16_swap_b32 v60, v62\nv_add_f32 v{dst}, v60, v62")
        for k in (8, 4, 2): A(f"s_nop 1\nv_add_f32_dpp v{dst}, v{dst}, v{dst} row_ror:{k} row_mask:0xf bank_mask:0xf")
    fgather("F_B", WS_FB, 108, 33, 8)
    rnd(33); A("v_mul_f32 v33, v33, v31"); rnd(33)
    tstamp(7)
    fgather("F_A", WS_FA, 128, 32, fa_sleep)
    rnd(32); A("v_mul_f32 v32, v32, v30"); rnd(32)
    A("v_add_f32 v32, v32, v33\nv_cvt_pk_bf16_f32 v32, v32, v32")
    A("s_mov_b32 exec_lo, 0x00030003\ns_mov_b32 exec_hi, 0x00030003")
    A("buffer_store_short v32, v8, s[12:15], s27 offen")
    tstamp(8)
    A("s_cmp_lg_u32 s33, 0\ns_cbranch_scc1 F_NOE")
    A(f"s_mov_b64 exec, 1\nv_mov_b32 v5, 0\nv_mov_b32 v6, {TAG}\nbuffer_store_dword v6, v5, {W}, 0 offen")
    if amp is not None:
        A(f"s_memrealtime s[76:77]\ns_waitcnt lgkmcnt(0)\ns_sub_u32 s78, s{80+2*amp}, s80\ns_lshl_b32 s78, s78, 3\ns_min_u32 s78, s78, 100000")
        A("AMPL:\ns_memrealtime s[74:75]\ns_waitcnt lgkmcnt(0)\ns_sub_u32 s79, s74, s76\ns_cmp_lt_u32 s79, s78\ns_cbranch_scc1 AMPL")
    A("F_NOE:\ns_mov_b64 exec, -1")
    finish()
    A("SIDE:")
    A("v_lshlrev_b32 v62, 4, v0")
    A(f"s_lshl_b32 s9, {WV}, 12\ns_add_u32 s9, s9, {WS_QA}\ns_add_u32 s10, s9, 16384\ns_add_u32 s11, s9, 32768")
    A("v_and_b32 v2, 31, v0\nv_lshrrev_b32 v3, 5, v0\nv_and_b32 v5, 7, v0\nv_xor_b32 v4, v3, v5\nv_lshlrev_b32 v4, 4, v4\nv_lshl_add_u32 v4, v2, 10, v4")
    A(f"s_lshl_b32 s8, {WV}, 7\ns_add_u32 s8, s8, {QL}\nv_add_u32 v4, s8, v4")
    for q_ in range(1, 4): A(f"v_xor_b32 v{4+q_}, {q_ << 5}, v4")
    A("v_bfe_u32 v8, v0, 2, 3\nv_bfe_u32 v9, v0, 1, 1\nv_lshlrev_b32 v10, 1, v8\nv_xor_b32 v9, v9, v10\nv_lshlrev_b32 v9, 4, v9")
    A("v_lshl_add_u32 v8, v3, 4, v8\nv_lshl_add_u32 v9, v8, 10, v9\nv_and_b32 v10, 1, v0\nv_lshl_add_u32 v9, v10, 3, v9")
    A(f"s_lshl_b32 s12, {WV}, 8\nv_add_u32 v24, s12, v9\nv_add_u32 v25, 0x10000, v24")
    if cks:
        A("v_bfe_u32 v2, v0, 3, 1\nv_bfe_u32 v8, v0, 2, 1\nv_lshl_add_u32 v2, v8, 1, v2\nv_lshrrev_b32 v8, 4, v0\nv_lshl_add_u32 v2, v8, 2, v2\nv_bfe_u32 v8, v0, 1, 1\nv_lshl_add_u32 v2, v8, 4, v2")
        A("v_cmp_ne_u32 s[38:39], 0, v8")
        A(f"v_and_b32 v8, 15, v0\nv_add_u32 v38, {TAG}, v8\ns_mov_b32 s12, 0x9e3779b1\nv_mul_lo_u32 v38, v38, s12")
    A(f"v_lshlrev_b32 v8, 4, v2\nv_add_u32 v36, {QL+8192}, v8\nv_lshlrev_b32 v8, 5, v2\nv_add_u32 v37, {QL+9216}, v8")
    A(f"v_and_b32 v8, 15, v0\nv_bfe_u32 v9, v0, 4, 1\nv_lshl_add_u32 v9, v9, 5, v8\nv_lshl_add_u32 v9, v3, 6, v9\nv_lshlrev_b32 v9, 4, v9\nv_add_u32 v33, {QL}, v9")
    A("v_lshrrev_b32 v9, 4, v0\nv_lshlrev_b32 v9, 19, v9\nv_lshl_add_u32 v34, v8, 4, v9")
    A(f"s_lshl_b32 s13, {WV}, 15\ns_lshl_b32 s12, s33, 8\ns_add_u32 s13, s13, s12\ns_add_u32 s13, s13, {WS_OP}")
    if st_mode == 2:
        A(f"v_and_b32 v35, 7, v2\nv_lshlrev_b32 v35, 8, v35\nv_lshrrev_b32 v9, 3, v2\nv_lshl_add_u32 v35, v9, 4, v35\ns_lshl_b32 s14, {WV}, 6\ns_lshl_b32 s12, s33, 11\ns_add_u32 s14, s14, s12\ns_add_u32 s14, s14, {WS_ST}")
    elif st_mode == 1:
        A(f"v_lshlrev_b32 v35, 4, v2\ns_lshl_b32 s14, {WV}, 9\ns_lshl_b32 s12, s33, 11\ns_add_u32 s14, s14, s12\ns_add_u32 s14, s14, {WS_ST}")
    else:
        A(f"v_lshlrev_b32 v35, 13, v2\ns_lshl_b32 s14, {WV}, 11\ns_lshl_b32 s12, s33, 4\ns_add_u32 s14, s14, s12\ns_add_u32 s14, s14, {WS_ST}")
    A("s_waitcnt vmcnt(0)")
    A("s_barrier")
    if not dbgf: stamp(2)
    A(f"s_mov_b32 s25, {SPIN}")
    def qld(q_):
        for ty in range(3):
            r = 200 + 12*q_ + 4*ty
            A(f"buffer_load_dwordx4 v[{r}:{r+3}], v62, {W}, s{9+ty} offen offset:{q_*1024} {LD}")
    def qwr(q_, base):
        for ty in range(3):
            r = 200 + 12*q_ + 4*ty
            if base is not None: A(f"s_waitcnt vmcnt({base - ty})")
            tagchk(28+q_, r+3, ty == 0)
            if ty < 2: A(f"ds_write_b96 v{4+q_}, v[{r}:{r+2}] offset:{ty*512}")
            else: A(f"ds_write2_b32 v{4+q_}, v{r}, v{r+1} offset0:3 offset1:131")
    for q_ in range(4): qld(q_)
    for q_ in range(4): qwr(q_, 11 - 3*q_)
    A("S_QRT:")
    A("v_or3_b32 v27, v28, v29, v30\nv_or_b32 v27, v27, v31\nv_cmp_ne_u32 vcc, 0, v27\ns_cbranch_vccz S_QOK")
    A("s_waitcnt lgkmcnt(0)")
    for q_ in range(4):
        A(f"v_cmp_ne_u32 vcc, 0, v{28+q_}\ns_cbranch_vccz S_QA{q_}")
        qld(q_)
        A(f"S_QA{q_}:")
    A("s_waitcnt vmcnt(0)")
    for q_ in range(4):
        A(f"v_cmp_ne_u32 vcc, 0, v{28+q_}\ns_cbranch_vccz S_QB{q_}")
        qwr(q_, None)
        A(f"S_QB{q_}:")
    A("s_sub_u32 s25, s25, 1\ns_cmp_lg_u32 s25, 0\ns_cbranch_scc1 S_QRT")
    A("S_QOK:")
    A("s_waitcnt lgkmcnt(0)")
    if stamps: A(f"s_sub_u32 s82, {SPIN+1}, s25\ns_add_u32 s82, s82, s80")
    stamp(3)
    A("s_barrier")
    if not apre: A("s_barrier")
    for f in range(32):
        if apre and f == 22: A("s_barrier")
        hi, T, lo = f >> 4, (f >> 1) & 7, f & 1
        if lo == 0: A(f"v_xor_b32 v26, {(2*T) << 4}, v{24+hi}\nv_xor_b32 v27, {((2*T) ^ 1) << 4}, v{24+hi}")
        for sec in range(2):
            d = 128 + 4*f + 2*sec
            A(f"ds_read_b64_tr_b16 v[{d}:{d+1}], v{26+sec} offset:{sec*8192 + lo*32768}")
    stamp(4)
    A("s_barrier")
    A("ds_read_b128 v[56:59], v36")
    A(f"v_mov_b32 v62, 0\nv_mov_b32 v63, {TAG}")
    A("s_waitcnt lgkmcnt(0)")
    A("v_max3_f32 v56, v56, v57, v58\nv_max_f32 v60, v56, v59")
    if prio: A("s_setprio 2")
    A("s_barrier")
    stamp(5)
    for hh in range(2):
        for ks in range(4):
            r = 64 + 16*hh + 4*ks
            A(f"ds_read_b128 v[{r}:{r+3}], v33 offset:{ks*2048 + hh*256}")
    def oreg(hh, T):
        if hh == 0: return 96 + 4*T
        return 8 + 4*T if T < 4 else 64 + 4*(T-4)
    def store_ops(hh):
        ops = []
        for r in range(4):
            d = 48 + 4*(r & 1) if hh == 0 else 96 + 4*r
            for k in range(4): ops.append(f"v_cvt_pk_bf16_f32 v{d+k}, v{oreg(hh,2*k)+r}, v{oreg(hh,2*k+1)+r}")
            if cks:
                for k in range(4): ops.append(f"v_xor_b32 v{d+k}, v38, v{d+k}")
            ops.append(f"s_add_u32 s11, s13, {(16*hh + r)*131072}\nbuffer_store_dwordx4 v[{d}:{d+3}], v34, {W}, s11 offen {ST}")
            if cks and hh == 0:
                ops.append(f"v_add3_u32 v{4+r}, v{d}, v{d+1}, v{d+2}"); ops.append(f"v_add_u32 v{4+r}, v{4+r}, v{d+3}")
        return ops
    for hh in range(2):
        ops = store_ops(0) if hh == 1 else []
        n_ = 0
        for T in range(8):
            for ks in range(4):
                if hh == 0 and T == 0: A(f"s_waitcnt lgkmcnt({7-ks})")
                if hh == 1 and T == 0 and ks == 0:
                    A("s_waitcnt lgkmcnt(0)\ns_barrier")
                    A("ds_read_b128 v[40:43], v37\nds_read_b128 v[44:47], v37 offset:16")
                f = ((ks >> 1) << 4) | (T << 1) | (ks & 1)
                o = oreg(hh, T); a = 64 + 16*hh + 4*ks
                A(f"v_mfma_f32_16x16x32_bf16 v[{o}:{o+3}], v[{a}:{a+3}], v[{128+4*f}:{131+4*f}], {'0' if ks==0 else 'v[%d:%d]'%(o,o+3)}")
                n_ += 1
                if n_ >= 6 and ops:
                    A(ops.pop(0))
                    if cks and ops: A(ops.pop(0))
        for o_ in ops: A(o_)
    stamp(6)
    A("s_waitcnt lgkmcnt(0)")
    A("v_pk_add_f32 v[40:41], v[40:41], v[42:43]\nv_pk_add_f32 v[44:45], v[44:45], v[46:47]\nv_pk_add_f32 v[40:41], v[40:41], v[44:45]\nv_add_f32 v61, v40, v41")
    for o_ in store_ops(1): A(o_)
    stamp(7)
    if cks:
        for r in range(4): A(f"v_add3_u32 v{28+r}, v{96+4*r}, v{97+4*r}, v{98+4*r}")
        for r in range(4): A(f"v_add_u32 v{28+r}, v{28+r}, v{99+4*r}")
        for b_ in (4, 6, 28, 30): A(f"v_add_u32_dpp v{b_}, v{b_}, v{b_} row_ror:8 row_mask:0xf bank_mask:0x3")
        for b_ in (4, 6, 28, 30): A(f"v_add_u32_dpp v{b_}, v{b_+1}, v{b_+1} row_ror:8 row_mask:0xf bank_mask:0xc")
        A("v_add_u32_dpp v4, v4, v4 row_half_mirror row_mask:0xf bank_mask:0x5\nv_add_u32_dpp v28, v28, v28 row_half_mirror row_mask:0xf bank_mask:0x5")
        A("v_add_u32_dpp v4, v6, v6 row_half_mirror row_mask:0xf bank_mask:0xa\nv_add_u32_dpp v28, v30, v30 row_half_mirror row_mask:0xf bank_mask:0xa\ns_nop 0")
        A("v_add_u32_dpp v4, v4, v4 quad_perm:[2,3,0,1] row_mask:0xf bank_mask:0xf\nv_add_u32_dpp v28, v28, v28 quad_perm:[2,3,0,1] row_mask:0xf bank_mask:0xf")
        A("v_cndmask_b32 v4, v4, v28, s[38:39]\ns_nop 1")
        A("v_add_u32_dpp v62, v4, v4 quad_perm:[1,0,3,2] row_mask:0xf bank_mask:0xf")
        A("s_mov_b32 exec_lo, 0x55555555\ns_mov_b32 exec_hi, 0x55555555")
    else:
        A("s_mov_b32 exec_hi, 0\ns_waitcnt vmcnt(0)")
    A(f"buffer_store_dwordx4 v[60:63], v35, {W}, s14 offen {ST}")
    A("s_mov_b64 exec, -1")
    stamp(8)
    finish()
    if stamps:
        A("DUMP:\ns_waitcnt vmcnt(0)")
        stamp(9)
        A("s_waitcnt lgkmcnt(0)")
        for i in range(10): A(f"v_mov_b32 v{8+i}, s{80+2*i}")
        A(f"s_lshl_b32 s8, s2, 3\ns_add_u32 s8, s8, {WV}\ns_lshl_b32 s8, s8, 6\ns_add_u32 s8, s8, {WS_DBG}")
        A("v_mov_b32 v5, 0\ns_mov_b64 exec, 1")
        A(f"buffer_store_dwordx4 v[8:11], v5, {W}, s8 offen\nbuffer_store_dwordx4 v[12:15], v5, {W}, s8 offen offset:16\nbuffer_store_dwordx2 v[16:17], v5, {W}, s8 offen offset:32")
    A("END:\ns_endpgm")
    hdr = open("gated_mix__compressed_kv_cla__geglu_ffn__decode.s.ref").read().split("; Override")[0]
    return hdr + "; @launch grid=(256,1,1) block=(512,1,1) lds=163840\n" + '.amdgcn_target "amdgcn-amd-amdhsa--gfx950"\n.text\n' + A.text() \
        + ".fill 2048, 4, 0xbf810000\n" + '.section .rodata,"a"\n.p2align 6\n' + kdesc(KN, 256)

if __name__ == "__main__":
    kw = eval("dict(%s)" % (sys.argv[2] if len(sys.argv) > 2 else ""))
    open(sys.argv[1], "w").write(gen(**kw))
```

```python
import sys, math
from asmlib import *
KN = "gated_mix__compressed_kv_cla__geglu_ffn__decode_kernel"
WS_GP2 = 0x640000; WS_CX = 0x1000; WS_CX2 = 0x600000; WS_QP = 0x180000; WS_QP2 = 0x1c0000; WS_QA = 0x40000; WS_ST = 0x50000; WS_FA = 0x90000; WS_FB = 0xE0000; WS_GP = 0x140000; WS_OP = 0x200000
WS_SIZE = 0x690000; WS_DBG = 0x700000
SZ = dict(x=1280, ckv=16384*1024, wq=640*8192, wuk=512*8192, wuv=512*8192, wo=32*128*1280, wg=640*3456, wu=640*3456, wd=1728*1280, gw=1280, out=1280)
P = dict(x=40, ckv=42, wq=44, wuk=46, wuv=48, wo=50, wg=54, wu=56, wd=58, gw=60, out=62)
QSCALE = (128 ** -0.5) * math.log2(math.e)
QL = 131072
SPIN = 200000
WV = "s3"; TAG = "s24"; W = "s[16:19]"
L_OUT = 32768; L_PART = 53248; L_Q = 55808; L_QA = 56064; L_M = 56320; L_L = 56352; L_QP = 57344

def gen(NT="nt", stamps=False, att_win=8, att_w0=3, att_n0=8, trig=32, tail_win=0, tail_win0=1, tail_n0=3, prefetch=True, poll_sleep=2, amp=None, NTW=None,
        cyc=False, prio=True, st_full=True, fa_sleep=1, uk_wait=3, uk_early=6, dbgf=False, cks=True, st_mode=2, fa_mode=2, thr=48, tpre=False, fpre=True, gdual=True, pre_sleep=4, ffn_late=False, hmap=0, opx=False, b6late=True, apre=True, att_w1=4, att_n1=6, dual=True):
    LD = "sc1"; ST = "sc1"
    if NTW is None: NTW = NT
    A = Asm()
    def stamp(i):
        if stamps: A(f"{'s_memtime' if cyc else 's_memrealtime'} s[{80+2*i}:{81+2*i}]")
    def finish():
        A("s_branch DUMP" if stamps else "s_endpgm")
    def srd(d, name):
        A(f"s_mov_b32 s{d}, s{P[name]}\ns_mov_b32 s{d+1}, s{P[name]+1}\ns_mov_b32 s{d+2}, {SZ[name]}\ns_mov_b32 s{d+3}, 0x20000")
    def spin_head(name):
        A(f"s_mov_b32 s25, {SPIN}\n{name}:")
    def spin_tail(name, acc, sleep=poll_sleep):
        done = A.label("OK")
        A(f"v_cmp_ne_u32 vcc, 0, v{acc}\ns_cbranch_vccz {done}")
        if sleep: A(f"s_sleep {sleep}")
        A(f"s_sub_u32 s25, s25, 1\ns_cmp_lg_u32 s25, 0\ns_cbranch_scc1 {name}\n{done}:")
    def tagchk(acc, v, first):
        if first: A(f"v_xor_b32 v{acc}, {TAG}, v{v}")
        else: A(f"v_bitop3_b32 v{acc}, v{v}, {TAG}, v{acc} bitop3:0xbe")
    def selectors(ve):
        A(f"v_and_b32 v25, 1, v{ve}")
        A("v_cmp_eq_u32 vcc, 1, v25")
        A("v_mov_b32 v26, 0x0c0c0100\nv_mov_b32 v25, 0x01000c0c")
        A("v_cndmask_b32 v26, v26, v25, vcc")
        A("v_mov_b32 v27, 0x0c0c0302\nv_mov_b32 v25, 0x03020c0c")
        A("v_cndmask_b32 v27, v27, v25, vcc")
        A(f"v_lshrrev_b32 v25, 2, v{ve}")
        for k in range(2):
            A(f"v_cmp_eq_u32 vcc, {k}, v25")
            A(f"v_mov_b32 v{20+k}, 0x0c0c0c0c\nv_mov_b32 v{22+k}, 0x0c0c0c0c")
            A(f"v_cndmask_b32 v{20+k}, v{20+k}, v26, vcc\nv_cndmask_b32 v{22+k}, v{22+k}, v27, vcc")
        A(f"v_and_b32 v25, 2, v{ve}")
        A("v_cmp_eq_u32 vcc, 2, v25")
        A("v_mov_b32 v24, 0x4444\nv_mov_b32 v25, 0xeeee")
        A("v_cndmask_b32 v24, v24, v25, vcc")
    def sel4(dst, src):
        for k in range(4): A(f"v_perm_b32 v{dst+k}, v{src}, v{src}, v{20+k}")
    def smf(d, a, b): A(f"v_smfmac_f32_16x16x64_bf16 v[{d}:{d+3}], v[{a}:{a+3}], v[{b}:{b+7}], v24")
    def pack24(v, d, t):
        A(f"v_perm_b32 v{d}, v{v+1}, v{v}, s70\nv_perm_b32 v{d+1}, v{v+3}, v{v+2}, s70")
        A(f"v_perm_b32 v{t}, v{v+1}, v{v}, s71\nv_perm_b32 v{d+2}, v{v+3}, v{v+2}, s72\nv_or_b32 v{d+2}, v{d+2}, v{t}")
    def pack24_consts(): A("s_mov_b32 s70, 0x07060302\ns_mov_b32 s71, 0x0c0c0501\ns_mov_b32 s72, 0x05010c0c")
    def rnd(v): A(f"v_cvt_pk_bf16_f32 v{v}, v{v}, v{v}\nv_lshlrev_b32 v{v}, 16, v{v}")
    def common_loads():
        A("s_load_dwordx16 s[40:55], s[0:1], 0")
        A("s_load_dwordx8 s[56:63], s[0:1], 64")
    def common_setup():
        A(f"s_mov_b32 s18, {(WS_DBG + 0x40000) if stamps else WS_SIZE}\ns_mov_b32 s19, 0x20000")
    def code_prefetch(wave):
        if not prefetch: return
        l = A.label("NOPF")
        A(f"s_cmp_lg_u32 {WV}, {wave}\ns_cbranch_scc1 {l}")
        A(f"s_getpc_b64 s[26:27]\nPFB{wave}:\ns_sub_u32 s26, s26, PFB{wave}-{KN}\ns_subb_u32 s27, s27, 0")
        A("s_bfe_u32 s28, s2, 0x30003\ns_lshl_b32 s28, s28, 11")
        A("v_lshlrev_b32 v254, 7, v0\nv_add_u32 v254, s28, v254")
        A("s_mov_b64 exec, 0xffff\nglobal_load_dword v255, v254, s[26:27]\ns_mov_b64 exec, -1")
        A(f"{l}:")

    A(f".globl {KN}\n.p2align 8\n.type {KN},@function\n{KN}:")
    stamp(0)
    A("s_load_dwordx8 s[64:71], s[0:1], 0")
    A("s_load_dwordx2 s[16:17], s[0:1], 104")
    A("v_cmp_gt_u32 vcc, 256, v0\ns_lshr_b32 s31, s2, 5")
    if hmap == 0: A("s_and_b32 s30, s2, 31")
    else: A("s_and_b32 s30, s2, 7\ns_bfe_u32 s8, s2, 0x20003\ns_lshl2_add_u32 s30, s30, s8")
    A("s_lshl_b32 s8, s30, 8")
    A("v_lshlrev_b32 v1, 9, v0\nv_and_b32 v1, 0xffffe000, v1\nv_and_b32 v3, 15, v0\nv_lshl_or_b32 v1, v3, 4, v1")
    A("s_cbranch_vccnz LO\ns_cmp_ge_u32 s31, 4\ns_cbranch_scc1 ATT\ns_branch HI\nLO:")
    A(f"s_mul_i32 s9, s31, {80*8192}\ns_add_u32 s9, s9, s8\nv_add_u32 v4, s9, v1\ns_mov_b32 s10, 0x20000")
    A("s_cmp_ge_u32 s31, 8\ns_cbranch_scc1 END")
    A("s_waitcnt lgkmcnt(0)")
    for i in range(5):
        A(f"global_load_dwordx4 v[{120+4*i}:{123+4*i}], v4, s[68:69] {NT}")
        if i < 4: A("v_add_u32 v4, s10, v4")
    A("v_lshrrev_b32 v5, 6, v0\nv_bfe_u32 v7, v0, 4, 1\nv_lshlrev_b32 v7, 2, v7\nv_lshl_add_u32 v7, v5, 3, v7\ns_mul_i32 s11, s31, 160\nv_add_u32 v7, s11, v7")
    A("v_bfe_u32 v6, v0, 5, 1\nv_lshl_add_u32 v6, v6, 5, v7")
    A("global_load_dword v8, v6, s[64:65]\nglobal_load_dword v9, v6, s[64:65] offset:64\nglobal_load_dword v10, v7, s[64:65] offset:128")
    A(f"s_load_dword {TAG}, s[16:17], 0")
    A(f"s_lshl_b32 s9, s30, 13\ns_add_u32 s9, s9, {WS_QP}\ns_lshl_b32 s11, s31, 10\ns_add_u32 s11, s11, s9")
    if dual:
        A(f"v_lshrrev_b32 v6, 5, v0\nv_lshlrev_b32 v6, 7, v6\nv_add_u32 v6, s11, v6\nv_add_u32 v6, {WS_QP2-WS_QP}, v6")
        A(f"global_load_dword v31, v6, s[16:17] {LD}")
    common_loads()
    A(f"v_readfirstlane_b32 {WV}, v5")
    A("v_and_b32 v0, 63, v0\nv_lshrrev_b32 v2, 4, v0")
    if stamps:
        for i in range(1, 10): A(f"s_mov_b64 s[{80+2*i}:{81+2*i}], 0")
    stamp(1)
    common_setup()
    if prefetch:
        A(f"s_getpc_b64 s[26:27]\nPFB:\ns_and_b32 s28, s2, 0xf8\ns_lshl_b32 s28, s28, 6\ns_sub_u32 s28, s28, PFB-{KN}\ns_lshl_b32 s29, {WV}, 7\ns_add_u32 s28, s28, s29\ns_ashr_i32 s29, s28, 31")
        A("s_add_u32 s26, s26, s28\ns_addc_u32 s27, s27, s29\ns_load_dword s28, s[26:27], 0\ns_load_dword s29, s[26:27], 64")
    A("s_and_b32 s33, s2, 127")
    selectors(3)
    for i in range(4): A(f"v_mov_b32 v{140+i}, 0\nv_mov_b32 v{32+i}, 0")
    A(f"v_lshlrev_b32 v11, 5, v3\nv_lshl_add_u32 v11, v2, 4, v11\ns_lshl_b32 s12, {WV}, 9\ns_add_u32 s12, s12, {QL}\nv_add_u32 v11, s12, v11")
    A(f"v_lshlrev_b32 v5, 4, v0\nv_lshlrev_b32 v17, 2, v0\nv_lshlrev_b32 v18, 3, v0\nv_add_u32 v18, {QL}, v18")
    A(f"s_waitcnt lgkmcnt(0)\ns_add_u32 {TAG}, {TAG}, 1")
    A(f"v_mov_b32 v37, {TAG}\nv_mov_b32 v39, {TAG}")
    A("s_waitcnt vmcnt(0)")
    if dbgf: stamp(6)
    for U in range(3): sel4(40+4*U, 8+U)
    A("s_nop 0")
    for U in range(3): smf(32, 40+4*U, 120+8*U)
    A("s_nop 6")
    A("s_mov_b32 exec_hi, 0\nds_write_b128 v11, v[32:35]\ns_mov_b64 exec, -1")
    A("s_waitcnt lgkmcnt(0)\ns_barrier")
    A(f"s_cmp_lg_u32 {WV}, 0\ns_cbranch_scc1 Q_DONE")
    for w in range(4): A(f"ds_read_b64 v[{60+2*w}:{61+2*w}], v18 offset:{512*w}")
    A("s_waitcnt lgkmcnt(2)\nv_pk_add_f32 v[60:61], v[60:61], v[62:63]")
    A("s_waitcnt lgkmcnt(0)\nv_pk_add_f32 v[64:65], v[64:65], v[66:67]")
    A("v_add_f32 v36, v60, v64\nv_add_f32 v38, v61, v65")
    if dual: A(f"s_add_u32 s12, s11, {WS_QP2-WS_QP}\nbuffer_store_dwordx4 v[36:39], v5, {W}, s12 offen")
    A(f"buffer_store_dwordx4 v[36:39], v5, {W}, s11 offen {ST}")
    stamp(2)
    A("Q_DONE:")
    A("s_cmp_ge_u32 s31, 4\ns_cbranch_scc1 SIDE")
    A(f"s_cmp_lg_u32 {WV}, 1\ns_cbranch_scc1 T_NOG")
    A("v_lshrrev_b32 v12, 3, v0\nv_and_b32 v13, 7, v0\nv_lshlrev_b32 v14, 5, v13")
    A("v_cmp_eq_u32 vcc, 2, v12\nv_lshlrev_b32 v15, 4, v12\ns_nop 0")
    A("v_cndmask_b32 v15, v15, 12, vcc\nv_add_u32 v15, v15, v14\nv_cndmask_b32 v16, 4, 16, vcc\nv_add_u32 v16, v16, v15")
    A("v_lshlrev_b32 v12, 14, v12\nv_lshl_add_u32 v12, v13, 4, v12")
    A(f"s_lshl_b32 s10, s30, 9\ns_lshl_b32 s12, s31, 7\ns_add_u32 s10, s10, s12\ns_add_u32 s10, s10, {WS_QA}")
    A(f"v_mov_b32 v55, {TAG}")
    spin_head("T_QPOLL")
    if dual: A(f"s_and_b32 s12, s25, 3\ns_cmp_eq_u32 s12, 1\ns_cselect_b32 s12, 0, {WS_QP2-WS_QP}\ns_add_u32 s12, s12, s9")
    else: A("s_mov_b32 s12, s9")
    A("s_add_u32 s13, s12, 4096")
    for e in range(8):
        A(f"buffer_load_dwordx4 v[{60+4*e}:{63+4*e}], v5, {W}, s{12+(e>>2)} offen offset:{(e&3)*1024} {LD}")
    for e in range(8):
        A(f"s_waitcnt vmcnt({7-e})")
        tagchk(31, 61+4*e, e == 0); tagchk(31, 63+4*e, False)
        if e & 1: A(f"v_add_f32 v{56+4*e}, v{56+4*e}, v{60+4*e}\nv_add_f32 v{58+4*e}, v{58+4*e}, v{62+4*e}")
    spin_tail("T_QPOLL", 31, 0)
    stamp(3)
    if dbgf: A(f"s_waitcnt lgkmcnt(0)\ns_sub_u32 s96, {SPIN+1}, s25\ns_add_u32 s96, s96, s80")
    A("v_add_f32 v60, v60, v68\nv_add_f32 v62, v62, v70\nv_add_f32 v76, v76, v84\nv_add_f32 v78, v78, v86")
    A("v_add_f32 v60, v60, v76\nv_add_f32 v62, v62, v78")
    A("v_cvt_pk_bf16_f32 v60, v60, v62")
    A(f"ds_write_b32 v17, v60 offset:{L_Q}")
    A("s_waitcnt lgkmcnt(0)\ns_barrier\ns_barrier")
    A(f"ds_read_b32 v52, v15 offset:{L_QA}\nds_read_b32 v53, v16 offset:{L_QA}\nds_read_b32 v54, v15 offset:{L_QA+8}")
    A("s_mov_b64 exec, 0xffffff")
    A("s_waitcnt lgkmcnt(0)")
    A(f"buffer_store_dwordx4 v[52:55], v12, {W}, s10 offen {ST}")
    A("s_mov_b64 exec, -1")
    stamp(4)
    A("s_branch T_NOP")
    A("T_NOG:\ns_barrier\ns_barrier\ns_branch T_NOP")
    A(".p2align 7")
    A("HI:")
    A("s_lshl_b32 s9, s31, 20\ns_add_u32 s9, s9, s8\ns_sub_u32 s9, s9, 0x20000\nv_add_u32 v19, s9, v1\ns_mov_b32 s10, 0x20000")
    A("s_waitcnt lgkmcnt(0)")
    def wuk(t):
        A(f"global_load_dwordx4 v[{200+4*t}:{203+4*t}], v19, s[70:71] {NT}")
        if t < 7: A("v_add_u32 v19, s10, v19")
    for t in range(uk_early): wuk(t)
    A("s_barrier")
    for t in range(uk_early, 8): wuk(t)
    A(f"s_load_dword {TAG}, s[16:17], 0")
    common_loads()
    A("v_lshrrev_b32 v5, 6, v0\nv_and_b32 v0, 63, v0\nv_lshrrev_b32 v2, 4, v0")
    A(f"v_readfirstlane_b32 {WV}, v5")
    if stamps:
        for i in range(1, 10): A(f"s_mov_b64 s[{80+2*i}:{81+2*i}], 0")
    stamp(1)
    common_setup()
    A("s_and_b32 s33, s2, 127")
    selectors(3)
    A("v_lshrrev_b32 v6, 3, v3\nv_bfe_u32 v7, v3, 2, 1\nv_lshl_add_u32 v6, v7, 1, v6\nv_bfe_u32 v7, v3, 1, 1\nv_lshl_add_u32 v6, v7, 2, v6\nv_lshl_add_u32 v6, v6, 4, v2")
    A(f"s_lshl_b32 s9, {WV}, 2\ns_sub_u32 s9, s9, 16\nv_add_u32 v6, s9, v6\nv_lshlrev_b32 v6, 1, v6")
    A("v_cmp_ne_u32 vcc, 0, v7\nv_lshlrev_b32 v7, 4, v3")
    for t in range(8): A(f"v_mov_b32 v{56+t}, 0")
    A(f"s_waitcnt lgkmcnt(0)\ns_add_u32 {TAG}, {TAG}, 1")
    A("s_waitcnt vmcnt(0)")
    if dbgf: stamp(7)
    A("s_barrier")
    A(f"ds_read_b128 v[32:35], v7 offset:{L_Q}")
    A("s_waitcnt lgkmcnt(0)")
    for k in range(4):
        for t in range(8):
            A(f"v_dot2c_f32_bf16 v{56+t}, v{200+4*t+k}, v{32+k}")
    for p_ in range(4): A(f"v_add_f32_dpp v{56+2*p_}, v{56+2*p_}, v{56+2*p_} row_ror:8 row_mask:0xf bank_mask:0x3")
    for p_ in range(4): A(f"v_add_f32_dpp v{56+2*p_}, v{57+2*p_}, v{57+2*p_} row_ror:8 row_mask:0xf bank_mask:0xc")
    A("v_add_f32_dpp v56, v56, v56 row_half_mirror row_mask:0xf bank_mask:0x5")
    A("v_add_f32_dpp v60, v60, v60 row_half_mirror row_mask:0xf bank_mask:0x5")
    A("v_add_f32_dpp v56, v58, v58 row_half_mirror row_mask:0xf bank_mask:0xa")
    A("v_add_f32_dpp v60, v62, v62 row_half_mirror row_mask:0xf bank_mask:0xa")
    A("s_nop 0")
    A("v_add_f32_dpp v56, v56, v56 quad_perm:[2,3,0,1] row_mask:0xf bank_mask:0xf")
    A("v_add_f32_dpp v60, v60, v60 quad_perm:[2,3,0,1] row_mask:0xf bank_mask:0xf")
    A("v_cndmask_b32 v56, v56, v60, vcc\ns_nop 1")
    A("v_add_f32_dpp v56, v56, v56 quad_perm:[1,0,3,2] row_mask:0xf bank_mask:0xf")
    A(f"v_mul_f32 v56, {hex(f2u(QSCALE))}, v56")
    A("v_cvt_pk_bf16_f32 v56, v56, v56")
    A(f"ds_write_b16 v6, v56 offset:{L_QA}")
    A("s_waitcnt lgkmcnt(0)\ns_barrier")
    A("T_NOP:")
    pack24_consts()
    srd(4, "wuv"); srd(8, "wo")
    A("v_lshlrev_b32 v4, 17, v2\nv_lshl_add_u32 v4, v3, 4, v4")
    A(f"s_lshl_b32 s12, s31, 6\ns_add_u32 s12, s12, {WV}\ns_lshl_b32 s12, s12, 14\ns_lshl_b32 s13, s30, 8\ns_add_u32 s12, s12, s13")
    A("v_mul_u32_u24 v9, 1280, v2\nv_lshl_add_u32 v9, v3, 4, v9")
    A(f"s_lshl_b32 s34, s30, 2\ns_add_u32 s34, s34, s31")
    A(f"s_mul_i32 s13, s34, {32*1280}\ns_lshl_b32 s14, {WV}, 8\ns_add_u32 s13, s13, s14")
    A(f"s_lshl_b32 s35, s34, 10\ns_lshl_b32 s14, {WV}, 7\ns_add_u32 s35, s35, s14\ns_add_u32 s35, s35, {WS_CX}")
    A(f"s_add_u32 s36, s35, {WS_CX2-WS_CX}\nv_mov_b32 v11, 0")
    A(f"s_lshl_b32 s15, {WV}, 12")
    if tail_n0: A(f"s_cmp_eq_u32 {WV}, 7\ns_cbranch_scc1 T_TRK\ns_barrier\nT_TRK:")
    for t in range(4):
        A(f"s_add_u32 m0, s15, {t*1024}")
        A(f"s_add_u32 s14, s12, {(64*(t&1) + (t>>1))*8192}")
        A(f"buffer_load_dwordx4 v4, s[4:7], s14 offen {NT} lds")
        if t < tail_n0:
            l_ = A.label("TRK")
            A(f"s_cmp_lg_u32 {WV}, 7\ns_cbranch_scc1 {l_}\ns_waitcnt vmcnt(0)")
            if t == tail_n0 - 1: A("s_barrier")
            A(f"{l_}:")
    A(f"buffer_load_dword v31, v11, {W}, s36 offen {LD}")
    A(f"s_cmp_ge_u32 {WV}, 5\ns_cbranch_scc1 T_NOWO")
    for t in range(8):
        A(f"buffer_load_dwordx4 v[{120+4*t}:{123+4*t}], v9, s[8:11], s13 offen {NT}")
        if t < 7: A("s_add_u32 s13, s13, 5120")
    A("T_NOWO:")
    A("v_bfe_u32 v5, v0, 1, 1\nv_lshlrev_b32 v5, 3, v5\nv_lshl_add_u32 v5, v2, 1, v5\nv_and_b32 v6, 1, v0\nv_add_u32 v5, v5, v6")
    if opx: A("s_and_b32 s14, s30, 7\nv_xor_b32 v5, s14, v5")
    A(f"s_lshl_b32 s12, s34, 3\ns_add_u32 s12, s12, {WV}")
    if st_mode == 2:
        A(f"v_lshlrev_b32 v5, 11, v5\ns_lshl_b32 s13, {WV}, 15\ns_lshl_b32 s14, s31, 6\ns_add_u32 s13, s13, s14\n{'s_and_b32 s14, s30, 7' if hmap == 0 else 's_lshr_b32 s14, s30, 2'}\ns_lshl_b32 s14, s14, 8\ns_add_u32 s13, s13, s14")
        A(f"{'s_lshr_b32 s14, s30, 3' if hmap == 0 else 's_and_b32 s14, s30, 3'}\ns_lshl_b32 s14, s14, 4\ns_add_u32 s13, s13, s14\ns_add_u32 s13, s13, {WS_ST}")
    elif st_mode == 1:
        A(f"v_lshlrev_b32 v5, 11, v5\ns_lshl_b32 s13, {WV}, 15\ns_lshl_b32 s14, s31, 9\ns_add_u32 s13, s13, s14\ns_lshl_b32 s14, s30, 4\ns_add_u32 s13, s13, s14\ns_add_u32 s13, s13, {WS_ST}")
    else:
        A(f"v_lshlrev_b32 v5, 4, v5\ns_lshl_b32 s13, s12, 8\ns_add_u32 s13, s13, {WS_ST}")
    A(f"s_lshl_b32 s12, s12, 12\ns_add_u32 s12, s12, {WS_OP}")
    A("v_lshlrev_b32 v10, 4, v0")
    A(f"s_lshl_b32 s14, {WV}, 2\ns_add_u32 s14, s14, {L_M}\nv_mov_b32 v6, s14")
    A(f"v_lshlrev_b32 v7, 4, v3\nv_lshl_add_u32 v7, v2, 3, v7\ns_mul_i32 s14, {WV}, 272\nv_add_u32 v7, s14, v7")
    A("v_and_b32 v8, 7, v0\nv_mul_u32_u24 v8, 272, v8\nv_lshl_add_u32 v8, v2, 4, v8")
    A(f"v_bfe_u32 v12, v0, 2, 2\nv_lshl_add_u32 v12, v2, 3, v12\nv_lshlrev_b32 v12, 8, v12\nv_and_b32 v13, 3, v0\nv_lshl_add_u32 v12, v13, 3, v12\ns_lshl_b32 s14, {WV}, 5\nv_add_u32 v12, s14, v12")
    A("v_lshlrev_b32 v14, 3, v3")
    A("v_and_b32 v15, 12, v3\nv_add_u32 v15, v15, v2\nv_lshlrev_b32 v15, 4, v15\nv_lshl_add_u32 v15, v13, 10, v15")
    A(f"s_lshl_b32 s37, s30, 12\ns_lshl_b32 s14, s31, 8\ns_add_u32 s37, s37, s14\ns_add_u32 s37, s37, {WS_CX}")
    if fa_mode == 1:
        A("v_lshlrev_b32 v19, 12, v3\nv_lshl_add_u32 v19, v2, 4, v19")
        A(f"s_lshl_b32 s15, s33, 5\ns_lshl_b32 s14, {WV}, 16\ns_add_u32 s15, s15, s14\ns_add_u32 s15, s15, {WS_FA}")
    else:
        A("v_lshlrev_b32 v19, 5, v3\nv_lshl_add_u32 v19, v2, 4, v19")
        A(f"s_mul_i32 s15, s33, 2560\ns_lshl_b32 s14, {WV}, 9\ns_add_u32 s15, s15, s14\ns_add_u32 s15, s15, {WS_FA}")
    if cks:
        A(f"v_add_u32 v16, {TAG}, v3\ns_mov_b32 s14, 0x9e3779b1\nv_mul_lo_u32 v16, v16, s14")
        A("v_lshrrev_b32 v17, 3, v3\nv_lshrrev_b32 v18, 1, v2\nv_lshl_add_u32 v17, v17, 1, v18\nv_lshlrev_b32 v17, 4, v17")
        A("v_bfe_u32 v18, v3, 2, 1\nv_lshl_add_u32 v17, v18, 1, v17\nv_and_b32 v18, 1, v2\nv_add_u32 v17, v17, v18\nv_lshlrev_b32 v17, 2, v17")
    A(f"v_and_b32 v18, 1, v2\nv_lshlrev_b32 v18, 4, v18\nv_add_u32 v18, {L_M}, v18\nv_xor_b32 v13, 16, v18")
    for i in range(8): A(f"v_mov_b32 v{56+i}, 0")
    A(f"v_mov_b32 v65, {TAG}\nv_mov_b32 v67, {TAG}\nv_mov_b32 v71, {TAG}")
    A("s_waitcnt vmcnt(0)\ns_barrier")
    for ks in range(4):
        for sec in range(2):
            A(f"ds_read_b64_tr_b16 v[{100+4*ks+2*sec}:{101+4*ks+2*sec}], v12 offset:{ks*8192 + sec*1024}")
    tstamp = (lambda i: None) if dbgf else stamp
    tstamp(5)
    def wave_red(op, v, t):
        A(f"v_{op}_f32_dpp v{v}, v{v}, v{v} quad_perm:[1,0,3,2] row_mask:0xf bank_mask:0xf\ns_nop 1")
        A(f"v_{op}_f32_dpp v{v}, v{v}, v{v} quad_perm:[2,3,0,1] row_mask:0xf bank_mask:0xf")
        A(f"v_mov_b32 v{t}, v{v}\ns_nop 1\nv_permlane16_swap_b32 v{v}, v{t}\nv_{op}_f32 v{v}, v{v}, v{t}")
        A(f"v_mov_b32 v{t}, v{v}\ns_nop 1\nv_permlane32_swap_b32 v{v}, v{t}\nv_{op}_f32 v{v}, v{v}, v{t}")
    A(f"v_not_b32 v35, {TAG}")
    if not tpre: A("s_branch T_PRE2")
    A("s_mov_b64 exec, 1")
    spin_head("T_PRE")
    A(f"buffer_load_dwordx4 v[32:35], v5, {W}, s13 offen {LD}")
    A("s_waitcnt vmcnt(0)")
    A(f"v_cmp_ne_u32 vcc, {TAG}, v35\ns_cbranch_vccz T_PRE2")
    A(f"s_sleep {pre_sleep}\ns_sub_u32 s25, s25, 1\ns_cmp_lg_u32 s25, 0\ns_cbranch_scc1 T_PRE")
    A("T_PRE2:\ns_mov_b64 exec, -1")
    tstamp(6)
    A(f"s_mov_b32 s25, {SPIN}\ns_mov_b32 s26, 15")
    A("T_CK:")
    A("s_sub_u32 s25, s25, 1\ns_cmp_eq_u32 s25, 0\ns_cbranch_scc1 T_CKOK")
    A(f"v_cmp_ne_u32 vcc, {TAG}, v35\ns_cbranch_vccz T_NOST")
    A(f"s_mov_b64 exec, vcc\nbuffer_load_dwordx4 v[32:35], v5, {W}, s13 offen {LD}\ns_mov_b64 exec, -1")
    A("T_NOST:")
    A(f"s_bcnt1_i32_b64 s14, vcc\ns_cmp_le_u32 s14, {64-thr}\ns_cselect_b64 s[28:29], 0, vcc\ns_mov_b32 s27, 0")
    for t in range(4):
        A(f"s_bitcmp1_b32 s26, {t}\ns_cbranch_scc0 T_NL{t}")
        A(f"s_and_b32 s14, s{28+(t&1)}, {'0x33333333' if t < 2 else '0xcccccccc'}\ns_cbranch_scc1 T_NL{t}")
        A(f"buffer_load_dwordx4 v[{80+4*t}:{83+4*t}], v10, {W}, s12 offen offset:{t*1024} {LD}\ns_bitset1_b32 s27, {t}")
        A(f"T_NL{t}:")
    A("s_waitcnt vmcnt(0)")
    A(f"s_cmp_lg_u32 s27, 0\ns_cbranch_scc1 T_VER\ns_sleep {poll_sleep}\ns_branch T_CK")
    A("T_VER:")
    A("ds_bpermute_b32 v30, v17, v34\nds_bpermute_b32 v31, v17, v35")
    for t in range(4): A(f"v_add3_u32 v{72+t}, v{80+4*t}, v{81+4*t}, v{82+4*t}")
    for t in range(4): A(f"v_add_u32 v{72+t}, v{72+t}, v{83+4*t}")
    A("v_mov_b32 v76, v32")
    A("v_add_u32_dpp v72, v72, v72 row_ror:8 row_mask:0xf bank_mask:0x3\nv_add_u32_dpp v74, v74, v74 row_ror:8 row_mask:0xf bank_mask:0x3")
    A("v_max_f32_dpp v76, v76, v76 quad_perm:[1,0,3,2] row_mask:0xf bank_mask:0xf")
    A("v_add_u32_dpp v72, v73, v73 row_ror:8 row_mask:0xf bank_mask:0xc\nv_add_u32_dpp v74, v75, v75 row_ror:8 row_mask:0xf bank_mask:0xc")
    A("v_max_f32_dpp v76, v76, v76 quad_perm:[2,3,0,1] row_mask:0xf bank_mask:0xf")
    A("v_add_u32_dpp v72, v72, v72 row_half_mirror row_mask:0xf bank_mask:0x5\nv_add_u32_dpp v72, v74, v74 row_half_mirror row_mask:0xf bank_mask:0xa")
    A("v_mov_b32 v77, v76\ns_nop 0")
    A("v_add_u32_dpp v72, v72, v72 quad_perm:[1,0,3,2] row_mask:0xf bank_mask:0xf")
    A("v_permlane16_swap_b32 v76, v77\nv_max_f32 v76, v76, v77")
    A("v_add_u32_dpp v72, v72, v72 quad_perm:[2,3,0,1] row_mask:0xf bank_mask:0xf")
    A("v_mov_b32 v77, v76\ns_waitcnt lgkmcnt(0)")
    A(f"v_xor_b32 v72, v72, v30\nv_bitop3_b32 v72, v31, {TAG}, v72 bitop3:0xbe\nv_cmp_ne_u32 vcc, 0, v72")
    A("v_permlane32_swap_b32 v76, v77\nv_max_f32 v76, v76, v77")
    A("s_or_b32 s14, vcc_lo, vcc_hi\ns_lshr_b32 s28, s14, 16\ns_or_b32 s14, s14, s28")
    for t, nb in enumerate((0, 8, 4, 12)):
        A(f"s_bitcmp1_b32 s14, {nb}\ns_cselect_b32 s28, 0, {1 << t}\ns_and_b32 s28, s28, s27\ns_andn2_b32 s26, s26, s28")
    A("s_cbranch_scc1 T_CK")
    A("T_CKOK:")
    A("v_sub_f32 v36, v32, v76\nv_exp_f32 v36, v36")
    for k in range(8): A(f"v_xor_b32 v{80+k}, v16, v{80+k}")
    A("v_mul_f32 v77, v36, v33")
    for t in range(4):
        A(f"v_mov_b32_dpp v{40+t}, v36 quad_perm:[{t},{t},{t},{t}] row_mask:0xf bank_mask:0xf")
    A("v_cvt_pk_bf16_f32 v28, v40, v41\nv_cvt_pk_bf16_f32 v29, v42, v43")
    sel4(44, 28); sel4(48, 29)
    smf(56, 44, 80)
    for k in range(8, 16): A(f"v_xor_b32 v{80+k}, v16, v{80+k}")
    A("v_add_f32_dpp v77, v77, v77 quad_perm:[1,0,3,2] row_mask:0xf bank_mask:0xf\ns_nop 0")
    smf(56, 48, 88)
    A("v_add_f32_dpp v77, v77, v77 quad_perm:[2,3,0,1] row_mask:0xf bank_mask:0xf")
    A("v_mov_b32 v78, v77\ns_nop 1\nv_permlane16_swap_b32 v77, v78\nv_add_f32 v77, v77, v78")
    A("v_mov_b32 v78, v77\ns_nop 1\nv_permlane32_swap_b32 v77, v78\nv_add_f32 v77, v77, v78")
    tstamp(7)
    if stamps and not dbgf: A(f"s_sub_u32 s82, {SPIN}, s25\ns_add_u32 s82, s82, s80")
    A("v_cvt_pk_bf16_f32 v56, v56, v57\nv_cvt_pk_bf16_f32 v57, v58, v59")
    A(f"s_mov_b32 exec_hi, 0\nds_write_b64 v7, v[56:57] offset:{L_PART}\ns_mov_b64 exec, -1")
    A(f"ds_write2_b32 v6, v76, v77 offset0:0 offset1:8")
    A("s_waitcnt lgkmcnt(0)\ns_barrier")
    for ks in range(4): A(f"ds_read_b128 v[{80+4*ks}:{83+4*ks}], v8 offset:{L_PART + 64*ks}")
    A(f"ds_read_b128 v[36:39], v18\nds_read_b128 v[40:43], v13\nds_read_b128 v[44:47], v18 offset:32")
    for ks in range(4):
        A(f"s_waitcnt lgkmcnt({6-ks})")
        A(f"v_mfma_f32_16x16x32_bf16 v[52:55], v[{80+4*ks}:{83+4*ks}], v[{100+4*ks}:{103+4*ks}], {'0' if ks==0 else 'v[52:55]'}")
    A("s_waitcnt lgkmcnt(1)")
    A("v_max3_f32 v40, v40, v41, v42\nv_max3_f32 v41, v36, v37, v38\nv_max3_f32 v40, v40, v43, v39\nv_max_f32 v40, v40, v41")
    for r in range(4): A(f"v_sub_f32 v{36+r}, v{36+r}, v40")
    for r in range(4): A(f"v_exp_f32 v{36+r}, v{36+r}")
    A("s_waitcnt lgkmcnt(0)")
    A("v_mul_f32 v52, v52, v36\nv_mul_f32 v44, v44, v36")
    for r in range(1, 4): A(f"v_fmac_f32 v52, v{52+r}, v{36+r}\nv_fmac_f32 v44, v{44+r}, v{36+r}")
    A("v_mov_b32 v53, v52\nv_mov_b32 v45, v44\ns_nop 0\nv_permlane16_swap_b32 v52, v53\nv_permlane16_swap_b32 v44, v45\nv_add_f32 v64, v52, v53\nv_add_f32 v36, v44, v45\nv_rcp_f32 v36, v36")
    A("v_mov_b32_dpp v66, v64 quad_perm:[1,0,3,2] row_mask:0xf bank_mask:0xf")
    A("s_mov_b64 exec, 0x5555")
    A(f"buffer_store_dwordx4 v[64:67], v14, {W}, s36 offen")
    A("s_mov_b64 exec, -1")
    tstamp(2)
    A(f"s_mov_b32 s25, {SPIN}")
    A(f"s_cmp_ge_u32 {WV}, 5\ns_cbranch_scc1 T_BST")
    A(f"s_add_u32 s12, s37, {WS_CX2-WS_CX}")
    A("T_CPOLL:")
    A(f"buffer_load_dwordx4 v[32:35], v15, {W}, s12 offen {LD}")
    A("s_waitcnt vmcnt(0)")
    tagchk(31, 33, True); tagchk(31, 35, False)
    A("v_cmp_ne_u32 vcc, 0, v31\ns_cbranch_vccz T_COK")
    A(f"s_sub_u32 s25, s25, 1\ns_cmp_gt_u32 s25, {SPIN-12}\ns_cbranch_scc1 T_CPOLL")
    A(f"s_cmp_lg_u32 s25, {SPIN-12}\ns_cbranch_scc1 T_CNB")
    A(f"s_mov_b64 exec, 0x5555\nbuffer_store_dwordx4 v[64:67], v14, {W}, s35 offen {ST}\ns_mov_b64 exec, -1")
    A("T_CNB:")
    A(f"s_and_b32 s12, s25, 1\ns_cselect_b32 s12, 0, {WS_CX2-WS_CX}\ns_add_u32 s12, s12, s37")
    A("s_cmp_lg_u32 s25, 0\ns_cbranch_scc1 T_CPOLL")
    A("T_COK:")
    tstamp(3)
    for qp in ("[1,0,3,2]", "[2,3,0,1]"):
        A(f"v_add_f32_dpp v32, v32, v32 quad_perm:{qp} row_mask:0xf bank_mask:0xf\nv_add_f32_dpp v34, v34, v34 quad_perm:{qp} row_mask:0xf bank_mask:0xf\ns_nop 0")
    A("v_mul_f32 v32, v32, v36\nv_mul_f32 v34, v34, v36\nv_cvt_pk_bf16_f32 v32, v32, v34\ns_nop 1")
    for U in range(4): A(f"v_mov_b32_dpp v{28+U}, v32 row_newbcast:{4*U} row_mask:0xf bank_mask:0xf")
    for U in range(4): sel4(40+4*U, 28+U)
    for U in range(4): smf(60, 40+4*U, 120+8*U)
    A("s_nop 7")
    pack24(60, 68, 38)
    A("s_mov_b32 exec_hi, 0")
    A(f"buffer_store_dwordx4 v[68:71], v19, {W}, s15 offen {ST}")
    A("T_BST:")
    A(f"s_mov_b64 exec, 0x5555\nbuffer_store_dwordx4 v[64:67], v14, {W}, s35 offen {ST}\ns_mov_b64 exec, -1")
    A("T_DONE:")
    tstamp(8)
    finish()
    A(".p2align 7")
    A("ATT:")
    A("s_cmp_ge_u32 s31, 8\ns_cbranch_scc1 END")
    A("v_lshrrev_b32 v1, 6, v0\nv_and_b32 v0, 63, v0\ns_lshl_b32 s8, s2, 2")
    A(f"v_readfirstlane_b32 {WV}, v1")
    A("v_lshlrev_b32 v62, 4, v0\ns_mov_b32 s10, 0")
    A(f"s_sub_u32 s36, {WV}, 4\ns_add_u32 s8, s8, s36\ns_lshl_b32 s9, s36, 15\ns_bitset0_b32 s8, 9\ns_lshl_b32 s8, s8, 15\ns_mov_b32 m0, s9")
    A("s_waitcnt lgkmcnt(0)")
    A("s_add_u32 s66, s66, s8\ns_addc_u32 s67, s67, 0")
    def dma_loop(name, upto, win, bar=None):
        A(f"{name}:")
        A("s_lshl_b32 s11, s10, 5\ns_and_b32 s12, s10, 8\ns_and_b32 s11, s11, 0xe0\ns_lshl1_add_u32 s11, s12, s11")
        A("v_xor_b32 v63, s11, v62")
        if win: A(f"s_waitcnt vmcnt({win-1})")
        if bar is not None: A(f"s_cmp_lg_u32 s10, {bar}\ns_cbranch_scc1 {name}_NB\ns_barrier\n{name}_NB:")
        A(f"global_load_lds_dwordx4 v63, s[66:67] {NT}")
        A("v_add_u32 v62, 0x400, v62\ns_add_u32 m0, m0, 0x400\ns_add_u32 s10, s10, 1")
        A(f"s_cmp_lt_u32 s10, {upto}\ns_cbranch_scc1 {name}")
    if dbgf: stamp(6)
    dma_loop("DMA0", att_w0 + att_win, att_win, bar=att_w0)
    if dbgf: stamp(8)
    common_loads()
    A(f"s_load_dword {TAG}, s[16:17], 0")
    A("s_and_b32 s33, s2, 127")
    if stamps:
        for i in range(1, 6 if dbgf else 10): A(f"s_mov_b64 s[{80+2*i}:{81+2*i}], 0")
    common_setup()
    A("v_and_b32 v2, 31, v0\nv_lshrrev_b32 v3, 5, v0")
    A("v_and_b32 v4, 7, v2\nv_bfe_u32 v5, v2, 3, 1\nv_lshl_add_u32 v4, v4, 1, v5\nv_xor_b32 v4, v4, v3\nv_lshlrev_b32 v4, 4, v4\nv_lshl_add_u32 v4, v2, 10, v4")
    A("v_add_u32 v8, s9, v4")
    for tt in range(1, 8): A(f"v_xor_b32 v{8+tt}, {tt << 5}, v8")
    for tt in range(8):
        A(f"v_xor_b32 v{16+tt}, {tt}, v0\nv_lshlrev_b32 v{16+tt}, 4, v{16+tt}\nv_add_u32 v{16+tt}, {QL + tt*1024}, v{16+tt}")
    A(f"v_lshlrev_b32 v6, 4, v2\nv_add_u32 v28, {QL+8192}, v6\ns_lshl_b32 s11, s36, 2\nv_add_u32 v29, s11, v28")
    A(f"v_lshlrev_b32 v6, 5, v2\nv_add_u32 v31, {QL+9216}, v6\nv_lshl_add_u32 v31, v3, 2, v31\ns_lshl_b32 s11, s36, 3\nv_add_u32 v31, s11, v31")
    A(f"s_lshl_b32 s11, s36, 11\ns_add_u32 s11, s11, {QL}\nv_lshlrev_b32 v32, 4, v0\nv_add_u32 v32, s11, v32")
    A("v_and_b32 v30, 3, v0\nv_lshlrev_b32 v30, 7, v30")
    A("v_lshrrev_b32 v4, 3, v0\nv_and_b32 v35, 7, v0\nv_and_b32 v5, 1, v4\nv_lshl_add_u32 v5, v3, 1, v5")
    A("v_mul_u32_u24 v5, 20, v5\nv_bfe_u32 v6, v4, 1, 1\nv_add_u32 v5, v5, v6\nv_mul_u32_u24 v5, 3456, v5\nv_lshl_add_u32 v33, v35, 4, v5\nv_mul_u32_u24 v34, 40, v4")
    A("s_and_b32 s34, s33, 7\ns_lshr_b32 s35, s33, 5\ns_lshl3_add_u32 s34, s35, s34\ns_bfe_u32 s35, s33, 0x20003\ns_lshl2_add_u32 s34, s34, s35")
    A("s_waitcnt lgkmcnt(0)")
    A("s_cmp_lt_u32 s36, 2")
    A(f"s_cselect_b32 s72, s{P['wg']}, s{P['wu']}\ns_cselect_b32 s73, s{P['wg']+1}, s{P['wu']+1}\ns_cselect_b32 s37, 0, 4096")
    A(f"s_cmp_lt_u32 s34, 108\ns_cselect_b32 s74, {SZ['wg']}, 0\ns_mov_b32 s75, 0x20000")
    srd(20, "x")
    A(f"s_and_b32 s11, s34, 3\ns_lshr_b32 s12, s34, 2\ns_and_b32 s26, s36, 1")
    A(f"s_mul_i32 s13, s11, {160*3456}\ns_lshl_b32 s14, s12, 7\ns_add_u32 s13, s13, s14\ns_mul_i32 s14, s26, {10*3456}\ns_add_u32 s13, s13, s14\ns_add_u32 s14, s13, {80*3456}")
    A("s_mul_i32 s15, s11, 320\ns_mul_i32 s27, s26, 20\ns_add_u32 s15, s15, s27")
    A(f"s_lshl_b32 s12, s12, 13\ns_lshl_b32 s11, s11, 10\ns_lshl_b32 s26, s26, 9\ns_add_u32 s37, s37, s12\ns_add_u32 s37, s37, s11\ns_add_u32 s37, s37, s26\ns_add_u32 s37, s37, {WS_GP}")
    A(f"s_waitcnt lgkmcnt(0)\ns_add_u32 {TAG}, {TAG}, 1")
    if dbgf: stamp(7)
    dma_loop("DMA2", trig, att_win)
    A("s_barrier")
    if trig < 32: dma_loop("DMA3", 32, att_win)
    stamp(1)
    fops = ["buffer_load_dwordx4 v[120:123], v34, s[20:23], s15 offen", "buffer_load_dword v124, v34, s[20:23], s15 offen offset:16"]
    for T in range(5):
        for hf in range(2):
            r = 80 + 8*T + 4*hf
            fops.append(f"buffer_load_dwordx4 v[{r}:{r+3}], v33, s[72:75], s{13+hf} offen {NT}" + (f"\ns_add_u32 s{13+hf}, s{13+hf}, {2*3456}" if T < 4 else ""))
    if gdual: fops.insert(0, f"s_add_u32 s35, s37, {WS_GP2-WS_GP}\nbuffer_load_dword v125, v30, {W}, s35 offen {LD}")
    D = 4
    lops = []
    if ffn_late: lops, fops = fops, []
    if apre:
        A("s_waitcnt vmcnt(0)")
        stamp(2)
        for t in range(32):
            A(f"ds_read_b128 v[{128+4*t}:{131+4*t}], v{8+(t&7)} offset:{(t>>3)*256}")
        if prio: A("s_setprio 2")
        A("s_waitcnt lgkmcnt(0)\ns_barrier")
        stamp(3)
        for t in range(D): A(f"ds_read_b128 v[{64+4*t}:{67+4*t}], v{16+t}")
        for t in range(32):
            A(f"s_waitcnt lgkmcnt({min(D-1, 31-t)})")
            if t == 31: A("s_barrier")
            a_ = 64 + 4*(t % D)
            A(f"v_mfma_f32_32x32x16_bf16 v[40:55], v[{128+4*t}:{131+4*t}], v[{a_}:{a_+3}], {'0' if t==0 else 'v[40:55]'}")
            if t + D < 32: A(f"ds_read_b128 v[{a_}:{a_+3}], v{16+((t+D)&7)} offset:{((t+D)>>3)*8192}")
            if t % 2 == 1 and fops: A(fops.pop(0))
    else:
        A("s_barrier")
        stamp(2)
        for t in range(32):
            A(f"ds_read_b128 v[{128+4*t}:{131+4*t}], v{16+(t&7)} offset:{(t>>3)*8192}")
        A("s_waitcnt vmcnt(0)")
        if prio: A("s_setprio 2")
        for t in range(D): A(f"ds_read_b128 v[{64+4*t}:{67+4*t}], v{8+t}")
        A(f"s_waitcnt lgkmcnt({D})\ns_barrier")
        stamp(3)
        for t in range(32):
            A(f"s_waitcnt lgkmcnt({min(D-1, 31-t)})")
            a_ = 64 + 4*(t % D)
            A(f"v_mfma_f32_32x32x16_bf16 v[40:55], v[{a_}:{a_+3}], v[{128+4*t}:{131+4*t}], {'0' if t==0 else 'v[40:55]'}")
            if t + D < 32: A(f"ds_read_b128 v[{a_}:{a_+3}], v{8+((t+D)&7)} offset:{((t+D)>>3)*256}")
            if t % 2 == 1 and fops: A(fops.pop(0))
    A("s_nop 11")
    stamp(4)
    A("v_max3_f32 v56, v40, v41, v42\nv_max3_f32 v57, v43, v44, v45\nv_max3_f32 v58, v46, v47, v48\nv_max3_f32 v59, v49, v50, v51")
    A("v_max3_f32 v56, v56, v52, v53\nv_max3_f32 v57, v57, v54, v55\nv_max3_f32 v56, v56, v57, v58\nv_max_f32 v56, v56, v59")
    A("v_mov_b32 v57, v56\ns_nop 1\nv_permlane32_swap_b32 v56, v57\nv_max_f32 v56, v56, v57")
    A("v_ceil_f32 v36, v56")
    A("ds_write_b32 v29, v36")
    for i in range(8): A(f"v_pk_add_f32 v[{40+2*i}:{41+2*i}], v[{40+2*i}:{41+2*i}], v[36:37] op_sel_hi:[1,0] neg_lo:[0,1] neg_hi:[0,1]")
    for r in range(4): A(f"v_exp_f32 v{40+r}, v{40+r}")
    A("s_waitcnt lgkmcnt(0)\ns_barrier")
    A("ds_read_b128 v[56:59], v28")
    for r in range(4, 16): A(f"v_exp_f32 v{40+r}, v{40+r}")
    A("s_waitcnt lgkmcnt(0)")
    A("v_max3_f32 v56, v56, v57, v58\nv_max_f32 v60, v56, v59")
    A("v_sub_f32 v36, v36, v60\nv_exp_f32 v36, v36\ns_nop 0")
    for hs in range(2):
        for i in range(4*hs, 4*hs+4): A(f"v_pk_mul_f32 v[{40+2*i}:{41+2*i}], v[{40+2*i}:{41+2*i}], v[36:37] op_sel_hi:[1,0]")
        for i in range(4*hs, 4*hs+4): A(f"v_cvt_pk_bf16_f32 v{64+i}, v{40+2*i}, v{41+2*i}")
        A(f"ds_write_b128 v32, v[{64+4*hs}:{67+4*hs}] offset:{1024*hs}")
    A("s_waitcnt lgkmcnt(0)\ns_barrier")
    if prio: A("s_setprio 0")
    stamp(5)
    for i in range(4): A(f"v_pk_add_f32 v[{40+2*i}:{41+2*i}], v[{40+2*i}:{41+2*i}], v[{48+2*i}:{49+2*i}]")
    A("v_pk_add_f32 v[40:41], v[40:41], v[44:45]\nv_pk_add_f32 v[42:43], v[42:43], v[46:47]\nv_pk_add_f32 v[40:41], v[40:41], v[42:43]\nv_add_f32 v40, v40, v41")
    A("ds_write_b32 v31, v40")
    A("s_waitcnt lgkmcnt(0)\ns_barrier")
    A("s_cmp_ge_u32 s34, 108\ns_cbranch_scc1 K_END")
    if ffn_late:
        A("s_barrier")
        for o_ in lops: A(o_)
    selectors(35)
    A("v_lshrrev_b32 v28, 4, v0\nv_and_b32 v29, 1, v28\nv_lshrrev_b32 v28, 1, v28\nv_lshl_add_u32 v28, v29, 1, v28\nv_lshl_add_u32 v28, v35, 2, v28\nv_lshlrev_b32 v6, 4, v28")
    A(f"v_mov_b32 v32, 0\nv_mov_b32 v33, 0\nv_mov_b32 v34, 0\nv_mov_b32 v35, 0\nv_mov_b32 v37, {TAG}\nv_mov_b32 v39, {TAG}")
    A("s_waitcnt vmcnt(10)")
    for T in range(5): sel4(40+4*T, 120+T)
    A("s_waitcnt vmcnt(0)")
    for T in range(5): smf(32, 40+4*T, 80+8*T)
    A("s_nop 7")
    A("v_permlane32_swap_b32 v32, v34\nv_permlane32_swap_b32 v33, v35\ns_nop 1")
    A("v_add_f32_dpp v36, v34, v32 row_ror:8 row_mask:0xf bank_mask:0xf")
    A("v_add_f32_dpp v38, v35, v33 row_ror:8 row_mask:0xf bank_mask:0xf")
    A("s_mov_b32 exec_lo, 0x00ff00ff\ns_mov_b32 exec_hi, 0x00ff00ff")
    if gdual: A(f"buffer_store_dwordx4 v[36:39], v6, {W}, s35 offen")
    A(f"buffer_store_dwordx4 v[36:39], v6, {W}, s37 offen {ST}")
    A("s_mov_b64 exec, -1")
    tstamp(6)
    A("s_cmp_eq_u32 s36, 1\ns_cbranch_scc1 K_F2")
    A("s_cmp_eq_u32 s36, 0\ns_cbranch_scc1 K_FIN")
    A("K_END:")
    finish()
    A("K_F2:")
    srd(4, "wd")
    A("v_lshrrev_b32 v2, 4, v0\nv_and_b32 v3, 15, v0\nv_mul_u32_u24 v4, 1280, v2\nv_lshl_add_u32 v4, v3, 4, v4")
    A(f"s_mul_i32 s12, s34, {16*1280}")
    for tq in range(4):
        for b in range(5):
            r = 120 + 40*(tq >> 1) + 8*b + 4*(tq & 1)
            A(f"buffer_load_dwordx4 v[{r}:{r+3}], v4, s[4:7], s12 offen offset:{b*256} {NT}")
        if tq < 3: A("s_add_u32 s12, s12, 5120")
    selectors(3); pack24_consts()
    for i in range(20): A(f"v_mov_b32 v{60+i}, 0")
    A("v_lshrrev_b32 v5, 3, v0\nv_lshlrev_b32 v5, 10, v5\nv_and_b32 v6, 7, v0\nv_lshl_add_u32 v5, v6, 4, v5")
    A(f"s_lshr_b32 s12, s34, 2\ns_lshl_b32 s12, s12, 13\ns_and_b32 s13, s34, 3\ns_lshl_b32 s13, s13, 7\ns_add_u32 s12, s12, s13\ns_add_u32 s12, s12, {WS_GP}")
    spin_head("F2_POLL")
    if gdual: A(f"s_and_b32 s13, s25, 3\ns_cmp_eq_u32 s13, 1\ns_cselect_b32 s13, 0, {WS_GP2-WS_GP}\ns_add_u32 s13, s13, s12")
    else: A("s_mov_b32 s13, s12")
    A(f"buffer_load_dwordx4 v[32:35], v5, {W}, s13 offen {LD}\nbuffer_load_dwordx4 v[36:39], v5, {W}, s13 offen offset:512 {LD}\ns_waitcnt vmcnt(0)")
    tagchk(31, 33, True); tagchk(31, 35, False); tagchk(31, 37, False); tagchk(31, 39, False); spin_tail("F2_POLL", 31, 4)
    tstamp(7)
    A("v_add_f32 v32, v32, v36\nv_add_f32 v34, v34, v38\ns_nop 1")
    A("v_add_f32_dpp v32, v32, v32 row_ror:8 row_mask:0xf bank_mask:0xf\nv_add_f32_dpp v34, v34, v34 row_ror:8 row_mask:0xf bank_mask:0xf")
    A("v_mov_b32 v33, v32\nv_mov_b32 v35, v34\ns_nop 1\nv_permlane16_swap_b32 v32, v33\nv_permlane16_swap_b32 v34, v35")
    A("v_add_f32 v32, v32, v33\nv_add_f32 v34, v34, v35")
    A("v_mov_b32 v33, v32\nv_mov_b32 v35, v34\ns_nop 1\nv_permlane32_swap_b32 v32, v33\nv_permlane32_swap_b32 v34, v35")
    for v in (32, 33, 34, 35): rnd(v)
    k1 = -2.0 * math.sqrt(2.0 / math.pi) * math.log2(math.e)
    for g in (32, 34):
        A(f"v_mul_f32 v36, v{g}, v{g}\nv_mul_f32 v36, {hex(f2u(0.044715))}, v36\nv_add_f32 v36, 1.0, v36\nv_mul_f32 v36, v36, v{g}\nv_mul_f32 v36, {hex(f2u(k1))}, v36")
        A(f"v_exp_f32 v36, v36\ns_nop 0\nv_add_f32 v36, 1.0, v36\nv_rcp_f32 v36, v36\ns_nop 0\nv_mul_f32 v{g}, v{g}, v36")
        rnd(g)
        A(f"v_mul_f32 v{g}, v{g}, v{g+1}")
    A("v_cvt_pk_bf16_f32 v32, v32, v34")
    A("v_lshlrev_b32 v5, 2, v2\nv_add_u32 v6, 16, v5")
    A("ds_bpermute_b32 v36, v5, v32\nds_bpermute_b32 v37, v6, v32\ns_waitcnt lgkmcnt(0)")
    sel4(44, 36); sel4(48, 37)
    for U in range(2):
        for b in range(5): smf(60+4*b, 44+4*U, 120+40*U+8*b)
    A("v_lshlrev_b32 v6, 5, v3\nv_lshl_add_u32 v6, v2, 4, v6")
    A(f"s_mul_i32 s12, s34, 2560\ns_add_u32 s12, s12, {WS_FB}")
    A("s_nop 4\ns_mov_b32 exec_hi, 0")
    for b in range(5):
        pack24(60+4*b, 80+4*b, 38)
        A(f"v_mov_b32 v{83+4*b}, {TAG}")
        A(f"buffer_store_dwordx4 v[{80+4*b}:{83+4*b}], v6, {W}, s12 offen offset:{512*b} {ST}")
    A("s_mov_b64 exec, -1")
    tstamp(8)
    finish()
    A("K_FIN:")
    A("s_cmp_ge_u32 s34, 80\ns_cbranch_scc1 K_END")
    srd(8, "gw"); srd(12, "out")
    A("v_mul_u32_u24 v5, 20, v0")
    A("buffer_load_dwordx4 v[8:11], v5, s[20:23], 0 offen\nbuffer_load_dword v12, v5, s[20:23], 0 offen offset:16")
    A("buffer_load_dwordx4 v[16:19], v5, s[8:11], 0 offen\nbuffer_load_dword v20, v5, s[8:11], 0 offen offset:16")
    A("v_mov_b32 v30, 0\ns_waitcnt vmcnt(0)")
    for i in range(5):
        A(f"v_lshlrev_b32 v24, 16, v{8+i}\nv_and_b32 v25, 0xffff0000, v{8+i}\nv_lshlrev_b32 v26, 16, v{16+i}\nv_and_b32 v27, 0xffff0000, v{16+i}")
        A("v_mul_f32 v24, v24, v26\nv_mul_f32 v25, v25, v27\nv_cvt_pk_bf16_f32 v24, v24, v25\nv_lshlrev_b32 v25, 16, v24\nv_and_b32 v24, 0xffff0000, v24")
        A("v_add_f32 v30, v30, v25\nv_add_f32 v30, v30, v24")
    A("v_mov_b32 v31, v30\ns_nop 1\nv_permlane32_swap_b32 v30, v31\nv_add_f32 v30, v30, v31")
    A("v_mov_b32 v31, v30\ns_nop 1\nv_permlane16_swap_b32 v30, v31\nv_add_f32 v30, v30, v31")
    for k in (8, 4, 2, 1): A(f"s_nop 1\nv_add_f32_dpp v30, v30, v30 row_ror:{k} row_mask:0xf bank_mask:0xf")
    rnd(30)
    A(f"v_mul_f32 v30, {hex(f2u(-math.log2(math.e)))}, v30\nv_exp_f32 v30, v30\ns_nop 0\nv_add_f32 v30, 1.0, v30\nv_rcp_f32 v30, v30\ns_nop 0")
    rnd(30)
    A("v_sub_f32 v31, 1.0, v30")
    rnd(31)
    A("s_mov_b32 s70, 0x0504000c\ns_mov_b32 s71, 0x0706010c\ns_mov_b32 s72, 0x0504020c\ns_mov_b32 s73, 0x0706030c")
    A("v_lshlrev_b32 v5, 4, v0")
    A("v_and_b32 v8, 1, v0\nv_bfe_u32 v6, v0, 4, 1\nv_lshrrev_b32 v7, 5, v0\nv_lshl_add_u32 v6, v6, 1, v7\nv_lshl_add_u32 v8, v8, 2, v6\nv_lshlrev_b32 v8, 1, v8")
    A("s_lshl_b32 s27, s34, 4")
    A("v_lshrrev_b32 v6, 1, v0\nv_mul_u32_u24 v6, 2560, v6\nv_and_b32 v7, 1, v0\nv_lshl_add_u32 v6, v7, 4, v6")
    A(f"s_lshl_b32 s4, s34, 5\ns_add_u32 s4, s4, {WS_FB}")
    A("v_mov_b32 v33, 0\nv_mov_b32 v9, v31\ns_mov_b32 s36, 0\nv_cmp_gt_u32 s[38:39], 24, v0")
    A("s_and_b32 s40, s33, 31\ns_lshl_b32 s40, s40, 1\ns_lshl_b64 s[40:41], 3, s40")
    A("F_LOOP:")
    A(f"s_add_u32 s5, s4, {32*2560}\ns_add_u32 s6, s4, {64*2560}\ns_add_u32 s7, s4, {96*2560}")
    A(f"v_not_b32 v43, {TAG}\nv_mov_b32 v47, v43\nv_mov_b32 v51, v43\nv_mov_b32 v10, {TAG}\nv_cndmask_b32 v55, v10, v43, s[38:39]")
    if not fpre: A("s_cmp_lg_u32 s36, 0\ns_cbranch_scc1 F_PRE2")
    A("s_mov_b64 exec, s[40:41]")
    spin_head("F_PRE")
    A(f"buffer_load_dwordx4 v[40:43], v6, {W}, s4 offen {LD}\ns_waitcnt vmcnt(0)")
    A(f"v_cmp_ne_u32 vcc, {TAG}, v43\ns_cbranch_vccz F_PRE2")
    A(f"s_sleep {pre_sleep}\ns_sub_u32 s25, s25, 1\ns_cmp_lg_u32 s25, 0\ns_cbranch_scc1 F_PRE")
    A("F_PRE2:\ns_mov_b64 exec, -1")
    spin_head("F_POLL")
    for i in range(4):
        A(f"v_cmp_ne_u32 vcc, {TAG}, v{43+4*i}\ns_cbranch_vccz F_SK{i}")
        A(f"s_mov_b64 exec, vcc\nbuffer_load_dwordx4 v[{40+4*i}:{43+4*i}], v6, {W}, s{4+i} offen {LD}\ns_mov_b64 exec, -1")
        A(f"F_SK{i}:")
    A("s_waitcnt vmcnt(0)")
    tagchk(38, 55, True)
    for i in range(3): tagchk(38, 43+4*i, False)
    spin_tail("F_POLL", 38, fa_sleep)
    tstamp(6)
    if stamps and not dbgf: A(f"s_sub_u32 s82, {SPIN+1}, s25\ns_add_u32 s82, s82, s80")
    for k in range(3): A(f"v_cndmask_b32 v{52+k}, 0, v{52+k}, s[38:39]")
    for i in range(4):
        d = 40 + 4*i; o = 60 + 4*i
        A(f"v_perm_b32 v{o}, v{d}, v{d+2}, s70\nv_perm_b32 v{o+1}, v{d}, v{d+2}, s71\nv_perm_b32 v{o+2}, v{d+1}, v{d+2}, s72\nv_perm_b32 v{o+3}, v{d+1}, v{d+2}, s73")
    for i in range(4): A(f"v_pk_add_f32 v[{60+2*i}:{61+2*i}], v[{60+2*i}:{61+2*i}], v[{68+2*i}:{69+2*i}]")
    for i in range(2): A(f"v_pk_add_f32 v[{60+2*i}:{61+2*i}], v[{60+2*i}:{61+2*i}], v[{64+2*i}:{65+2*i}]")
    A("s_nop 1\nv_permlane32_swap_b32 v60, v61\nv_permlane32_swap_b32 v62, v63\nv_add_f32 v60, v60, v61\nv_add_f32 v62, v62, v63")
    A(f"s_nop 1\nv_permlane16_swap_b32 v60, v62\nv_add_f32 v32, v60, v62")
    for k in (8, 4, 2): A(f"s_nop 1\nv_add_f32_dpp v32, v32, v32 row_ror:{k} row_mask:0xf bank_mask:0xf")
    rnd(32); A("v_mul_f32 v32, v32, v9"); rnd(32)
    A("v_add_f32 v33, v32, v33")
    A("s_cmp_lg_u32 s36, 0\ns_cbranch_scc1 F_OUT")
    tstamp(7)
    A(f"s_mov_b32 s36, 1\ns_mov_b64 s[38:39], -1\nv_mov_b32 v9, v30\ns_sub_u32 s4, s4, {WS_FB-WS_FA}\ns_branch F_LOOP")
    A("F_OUT:")
    A("v_cvt_pk_bf16_f32 v32, v33, v33")
    A("s_mov_b32 exec_lo, 0x00030003\ns_mov_b32 exec_hi, 0x00030003")
    A("buffer_store_short v32, v8, s[12:15], s27 offen")
    tstamp(8)
    A("s_cmp_lg_u32 s33, 0\ns_cbranch_scc1 F_NOE")
    A(f"s_mov_b64 exec, 1\nv_mov_b32 v5, 0\nv_mov_b32 v6, {TAG}\nbuffer_store_dword v6, v5, {W}, 0 offen")
    if amp is not None:
        A(f"s_memrealtime s[76:77]\ns_waitcnt lgkmcnt(0)\ns_sub_u32 s78, s{80+2*amp}, s80\ns_lshl_b32 s78, s78, 3\ns_min_u32 s78, s78, 100000")
        A("AMPL:\ns_memrealtime s[74:75]\ns_waitcnt lgkmcnt(0)\ns_sub_u32 s79, s74, s76\ns_cmp_lt_u32 s79, s78\ns_cbranch_scc1 AMPL")
    A("F_NOE:\ns_mov_b64 exec, -1")
    finish()
    A("SIDE:")
    A("v_lshlrev_b32 v62, 4, v0")
    A(f"s_lshl_b32 s9, {WV}, 12\ns_add_u32 s9, s9, {WS_QA}\ns_add_u32 s10, s9, 16384\ns_add_u32 s11, s9, 32768")
    A("v_and_b32 v2, 31, v0\nv_lshrrev_b32 v3, 5, v0\nv_and_b32 v5, 7, v0\nv_xor_b32 v4, v3, v5\nv_lshlrev_b32 v4, 4, v4\nv_lshl_add_u32 v4, v2, 10, v4")
    A(f"s_lshl_b32 s8, {WV}, 7\ns_add_u32 s8, s8, {QL}\nv_add_u32 v4, s8, v4")
    for q_ in range(1, 4): A(f"v_xor_b32 v{4+q_}, {q_ << 5}, v4")
    A("v_bfe_u32 v8, v0, 2, 3\nv_bfe_u32 v9, v0, 1, 1\nv_lshlrev_b32 v10, 1, v8\nv_xor_b32 v9, v9, v10\nv_lshlrev_b32 v9, 4, v9")
    A("v_lshl_add_u32 v8, v3, 4, v8\nv_lshl_add_u32 v9, v8, 10, v9\nv_and_b32 v10, 1, v0\nv_lshl_add_u32 v9, v10, 3, v9")
    A(f"s_lshl_b32 s12, {WV}, 8\nv_add_u32 v24, s12, v9\nv_add_u32 v25, 0x10000, v24")
    if cks:
        A("v_bfe_u32 v2, v0, 3, 1\nv_bfe_u32 v8, v0, 2, 1\nv_lshl_add_u32 v2, v8, 1, v2\nv_lshrrev_b32 v8, 4, v0\nv_lshl_add_u32 v2, v8, 2, v2\nv_bfe_u32 v8, v0, 1, 1\nv_lshl_add_u32 v2, v8, 4, v2")
        A("v_cmp_ne_u32 s[38:39], 0, v8")
        A(f"v_and_b32 v8, 15, v0\nv_add_u32 v38, {TAG}, v8\ns_mov_b32 s12, 0x9e3779b1\nv_mul_lo_u32 v38, v38, s12")
    A(f"v_lshlrev_b32 v8, 4, v2\nv_add_u32 v36, {QL+8192}, v8\nv_lshlrev_b32 v8, 5, v2\nv_add_u32 v37, {QL+9216}, v8")
    A(f"v_and_b32 v8, 15, v0\nv_bfe_u32 v9, v0, 4, 1\nv_lshl_add_u32 v9, v9, 5, v8\nv_lshl_add_u32 v9, v3, 6, v9\nv_lshlrev_b32 v9, 4, v9\nv_add_u32 v33, {QL}, v9")
    A("v_lshrrev_b32 v9, 4, v0\nv_lshlrev_b32 v9, 19, v9\nv_lshl_add_u32 v34, v8, 4, v9")
    A(f"s_lshl_b32 s13, {WV}, 15\ns_lshl_b32 s12, s33, 8\ns_add_u32 s13, s13, s12\ns_add_u32 s13, s13, {WS_OP}")
    if opx:
        A("v_bfe_u32 v9, v0, 4, 1\nv_lshlrev_b32 v9, 10, v9\ns_and_b32 s12, s13, 0x400\nv_xor_b32 v9, s12, v9\nv_add_u32 v34, v34, v9\ns_andn2_b32 s13, s13, 0x400")
    for r in range(4): A(f"s_xor_b32 s{72+r}, s13, {r*256 if opx else 0}")
    if st_mode == 2:
        A(f"{'v_and_b32 v35, 7, v2' if hmap == 0 else 'v_lshrrev_b32 v35, 2, v2'}\nv_lshlrev_b32 v35, 8, v35\n{'v_lshrrev_b32 v9, 3, v2' if hmap == 0 else 'v_and_b32 v9, 3, v2'}\nv_lshl_add_u32 v35, v9, 4, v35\ns_lshl_b32 s14, {WV}, 6\ns_lshl_b32 s12, s33, 11\ns_add_u32 s14, s14, s12\ns_add_u32 s14, s14, {WS_ST}")
    elif st_mode == 1:
        A(f"v_lshlrev_b32 v35, 4, v2\ns_lshl_b32 s14, {WV}, 9\ns_lshl_b32 s12, s33, 11\ns_add_u32 s14, s14, s12\ns_add_u32 s14, s14, {WS_ST}")
    else:
        A(f"v_lshlrev_b32 v35, 13, v2\ns_lshl_b32 s14, {WV}, 11\ns_lshl_b32 s12, s33, 4\ns_add_u32 s14, s14, s12\ns_add_u32 s14, s14, {WS_ST}")
    A("s_waitcnt vmcnt(0)")
    A("s_barrier")
    if not dbgf: stamp(2)
    A(f"s_mov_b32 s25, {SPIN}")
    def qld(q_):
        for ty in range(3):
            r = 200 + 12*q_ + 4*ty
            A(f"buffer_load_dwordx4 v[{r}:{r+3}], v62, {W}, s{9+ty} offen offset:{q_*1024} {LD}")
    def qwr(q_, base):
        for ty in range(3):
            r = 200 + 12*q_ + 4*ty
            if base is not None: A(f"s_waitcnt vmcnt({base - ty})")
            tagchk(28+q_, r+3, ty == 0)
            if ty < 2: A(f"ds_write_b96 v{4+q_}, v[{r}:{r+2}] offset:{ty*512}")
            else: A(f"ds_write2_b32 v{4+q_}, v{r}, v{r+1} offset0:3 offset1:131")
    for q_ in range(4): qld(q_)
    for q_ in range(4): qwr(q_, 11 - 3*q_)
    A("S_QRT:")
    A("v_or3_b32 v27, v28, v29, v30\nv_or_b32 v27, v27, v31\nv_cmp_ne_u32 vcc, 0, v27\ns_cbranch_vccz S_QOK")
    A("s_waitcnt lgkmcnt(0)")
    for q_ in range(4):
        A(f"v_cmp_ne_u32 vcc, 0, v{28+q_}\ns_cbranch_vccz S_QA{q_}")
        qld(q_)
        A(f"S_QA{q_}:")
    A("s_waitcnt vmcnt(0)")
    for q_ in range(4):
        A(f"v_cmp_ne_u32 vcc, 0, v{28+q_}\ns_cbranch_vccz S_QB{q_}")
        qwr(q_, None)
        A(f"S_QB{q_}:")
    A("s_sub_u32 s25, s25, 1\ns_cmp_lg_u32 s25, 0\ns_cbranch_scc1 S_QRT")
    A("S_QOK:")
    A("s_waitcnt lgkmcnt(0)")
    if stamps: A(f"s_sub_u32 s82, {SPIN+1}, s25\ns_add_u32 s82, s82, s80")
    stamp(3)
    A("s_barrier")
    if not apre: A("s_barrier")
    for f in range(32):
        if apre and f == 22: A("s_barrier")
        hi, T, lo = f >> 4, (f >> 1) & 7, f & 1
        if lo == 0: A(f"v_xor_b32 v26, {(2*T) << 4}, v{24+hi}\nv_xor_b32 v27, {((2*T) ^ 1) << 4}, v{24+hi}")
        for sec in range(2):
            d = 128 + 4*f + 2*sec
            A(f"ds_read_b64_tr_b16 v[{d}:{d+1}], v{26+sec} offset:{sec*8192 + lo*32768}")
    stamp(4)
    A("s_barrier")
    A("ds_read_b128 v[56:59], v36")
    A(f"v_mov_b32 v62, 0\nv_mov_b32 v63, {TAG}")
    A("s_waitcnt lgkmcnt(0)")
    A("v_max3_f32 v56, v56, v57, v58\nv_max_f32 v60, v56, v59")
    if prio: A("s_setprio 2")
    A("s_barrier")
    stamp(5)
    for hh in range(2):
        for ks in range(4):
            r = 64 + 16*hh + 4*ks
            A(f"ds_read_b128 v[{r}:{r+3}], v33 offset:{ks*2048 + hh*256}")
    def oreg(hh, T):
        if hh == 0: return 96 + 4*T
        return 8 + 4*T if T < 4 else 64 + 4*(T-4)
    def store_ops(hh):
        ops = []
        for r in range(4):
            d = 48 + 4*(r & 1) if hh == 0 else 96 + 4*r
            for k in range(4): ops.append(f"v_cvt_pk_bf16_f32 v{d+k}, v{oreg(hh,2*k)+r}, v{oreg(hh,2*k+1)+r}")
            if cks:
                for k in range(4): ops.append(f"v_xor_b32 v{d+k}, v38, v{d+k}")
            ops.append(f"s_add_u32 s11, s{72+r}, {(16*hh + r)*131072}\nbuffer_store_dwordx4 v[{d}:{d+3}], v34, {W}, s11 offen {ST}")
            if cks and hh == 0:
                ops.append(f"v_add3_u32 v{4+r}, v{d}, v{d+1}, v{d+2}"); ops.append(f"v_add_u32 v{4+r}, v{4+r}, v{d+3}")
        return ops
    for hh in range(2):
        ops = store_ops(0) if hh == 1 else []
        n_ = 0
        for T in range(8):
            for ks in range(4):
                if hh == 0 and T == 0: A(f"s_waitcnt lgkmcnt({7-ks})")
                if hh == 1 and T == 0 and ks == 0:
                    A("s_waitcnt lgkmcnt(0)")
                    if not b6late: A("s_barrier\nds_read_b128 v[40:43], v37\nds_read_b128 v[44:47], v37 offset:16")
                f = ((ks >> 1) << 4) | (T << 1) | (ks & 1)
                o = oreg(hh, T); a = 64 + 16*hh + 4*ks
                A(f"v_mfma_f32_16x16x32_bf16 v[{o}:{o+3}], v[{a}:{a+3}], v[{128+4*f}:{131+4*f}], {'0' if ks==0 else 'v[%d:%d]'%(o,o+3)}")
                n_ += 1
                if n_ >= 6 and ops:
                    A(ops.pop(0))
                    if cks and ops: A(ops.pop(0))
        for o_ in ops: A(o_)
    stamp(6)
    if b6late: A("s_barrier\nds_read_b128 v[40:43], v37\nds_read_b128 v[44:47], v37 offset:16\ns_nop 1")
    else: A("s_nop 4")
    for o_ in store_ops(1): A(o_)
    stamp(7)
    A("s_waitcnt lgkmcnt(0)")
    A("v_pk_add_f32 v[40:41], v[40:41], v[42:43]\nv_pk_add_f32 v[44:45], v[44:45], v[46:47]\nv_pk_add_f32 v[40:41], v[40:41], v[44:45]\nv_add_f32 v61, v40, v41")
    if cks:
        for r in range(4): A(f"v_add3_u32 v{28+r}, v{96+4*r}, v{97+4*r}, v{98+4*r}")
        for r in range(4): A(f"v_add_u32 v{28+r}, v{28+r}, v{99+4*r}")
        for b_ in (4, 6, 28, 30): A(f"v_add_u32_dpp v{b_}, v{b_}, v{b_} row_ror:8 row_mask:0xf bank_mask:0x3")
        for b_ in (4, 6, 28, 30): A(f"v_add_u32_dpp v{b_}, v{b_+1}, v{b_+1} row_ror:8 row_mask:0xf bank_mask:0xc")
        A("v_add_u32_dpp v4, v4, v4 row_half_mirror row_mask:0xf bank_mask:0x5\nv_add_u32_dpp v28, v28, v28 row_half_mirror row_mask:0xf bank_mask:0x5")
        A("v_add_u32_dpp v4, v6, v6 row_half_mirror row_mask:0xf bank_mask:0xa\nv_add_u32_dpp v28, v30, v30 row_half_mirror row_mask:0xf bank_mask:0xa\ns_nop 0")
        A("v_add_u32_dpp v4, v4, v4 quad_perm:[2,3,0,1] row_mask:0xf bank_mask:0xf\nv_add_u32_dpp v28, v28, v28 quad_perm:[2,3,0,1] row_mask:0xf bank_mask:0xf")
        A("v_cndmask_b32 v4, v4, v28, s[38:39]\ns_nop 1")
        A("v_add_u32_dpp v62, v4, v4 quad_perm:[1,0,3,2] row_mask:0xf bank_mask:0xf")
        A("s_mov_b32 exec_lo, 0x55555555\ns_mov_b32 exec_hi, 0x55555555")
    else:
        A("s_mov_b32 exec_hi, 0\ns_waitcnt vmcnt(0)")
    A(f"buffer_store_dwordx4 v[60:63], v35, {W}, s14 offen {ST}")
    A("s_mov_b64 exec, -1")
    stamp(8)
    finish()
    if stamps:
        A("DUMP:\ns_waitcnt vmcnt(0)")
        stamp(9)
        A("s_waitcnt lgkmcnt(0)")
        for i in range(10): A(f"v_mov_b32 v{8+i}, s{80+2*i}")
        A(f"s_lshl_b32 s8, s2, 3\ns_add_u32 s8, s8, {WV}\ns_lshl_b32 s8, s8, 6\ns_add_u32 s8, s8, {WS_DBG}")
        A("v_mov_b32 v5, 0\ns_mov_b64 exec, 1")
        A(f"buffer_store_dwordx4 v[8:11], v5, {W}, s8 offen\nbuffer_store_dwordx4 v[12:15], v5, {W}, s8 offen offset:16\nbuffer_store_dwordx2 v[16:17], v5, {W}, s8 offen offset:32")
    A("END:\ns_endpgm")
    hdr = open("gated_mix__compressed_kv_cla__geglu_ffn__decode.s.ref").read().split("; Override")[0]
    return hdr + "; @launch grid=(256,1,1) block=(512,1,1) lds=163840\n" + '.amdgcn_target "amdgcn-amd-amdhsa--gfx950"\n.text\n' + A.text() \
        + ".fill 2048, 4, 0xbf810000\n" + '.section .rodata,"a"\n.p2align 6\n' + kdesc(KN, 256)

if __name__ == "__main__":
    kw = eval("dict(%s)" % (sys.argv[2] if len(sys.argv) > 2 else ""))
    open(sys.argv[1], "w").write(gen(**kw))
```

```python
import sys, math
from asmlib import *
KN = "gated_mix__compressed_kv_cla__geglu_ffn__decode_kernel"
WS_CX = 0x1000; WS_HB = 0x638000; WS_HH = 0x30000; WS_QA = 0x40000; WS_ST = 0x50000; WS_FA = 0x90000; WS_GP = 0x140000; WS_QP = 0x180000; WS_OP = 0x200000
L2P = 0x600000
WS_SIZE = 0x800000; WS_DBG = 0x800000
SZ = dict(x=1280, ckv=16384*1024, wq=640*8192, wuk=512*8192, wuv=512*8192, wo=32*128*1280, wg=640*3456, wu=640*3456, wd=1728*1280, gw=1280, out=1280)
P = dict(x=40, ckv=42, wq=44, wuk=46, wuv=48, wo=50, wg=54, wu=56, wd=58, gw=60, out=62)
QSCALE = (128 ** -0.5) * math.log2(math.e)
QL = 131072
SPIN = 200000
WV = "s3"; TAG = "s24"; W = "s[16:19]"
L_PART = 32768; L_Q = 35072; L_QA = 35328; L_M = 35584; L_HH = 35712; L_G = 35776
DPP = "row_mask:0xf bank_mask:0xf"

def gen(NT="nt", stamps=False, cyc=False, dbgf=False, amp=None, att_win=7, att_w0=3, trig=32, tail_n0=2, prefetch=True, uk_early=8,
        poll_sleep=2, pre_sleep=4, fa_sleep=0, thr=48, prio=True, fpre=True, qsleep=0, wo_bar=True, wo_def=8, st_mode=2, lmiss=0, hint_at=64, skipA=True, lwave=0, early_uv=0, epf=64, b0=8, uk0=0, ffn_pre=4, ffn_gap=3, b6late=True, lo_win=0, skew=False, g_late=True):
    LD = "sc1"; ST = "sc1"
    A = Asm()
    def stamp(i):
        if stamps: A(f"{'s_memtime' if cyc else 's_memrealtime'} s[{80+2*i}:{81+2*i}]")
    tstamp = (lambda i: None) if dbgf else stamp
    fstamp = stamp if dbgf else (lambda i: None)
    def count(i, base):
        if stamps: A(f"s_sub_u32 s{80+2*i}, {base}, s25\ns_add_u32 s{80+2*i}, s{80+2*i}, s80")
    def clear_stamps(n=10):
        if stamps:
            for i in range(1, n): A(f"s_mov_b64 s[{80+2*i}:{81+2*i}], 0")
    def finish(): A("s_branch DUMP" if stamps else "s_endpgm")
    def srd(d, name):
        A(f"s_mov_b32 s{d}, s{P[name]}\ns_mov_b32 s{d+1}, s{P[name]+1}\ns_mov_b32 s{d+2}, {SZ[name]}\ns_mov_b32 s{d+3}, 0x20000")
    def tagchk(acc, v, first):
        if first: A(f"v_xor_b32 v{acc}, {TAG}, v{v}")
        else: A(f"v_bitop3_b32 v{acc}, v{v}, {TAG}, v{acc} bitop3:0xbe")
    def selectors(ve):
        A(f"v_and_b32 v25, 1, v{ve}\nv_cmp_eq_u32 vcc, 1, v25")
        A("v_mov_b32 v26, 0x0c0c0100\nv_mov_b32 v25, 0x01000c0c\nv_cndmask_b32 v26, v26, v25, vcc")
        A("v_mov_b32 v27, 0x0c0c0302\nv_mov_b32 v25, 0x03020c0c\nv_cndmask_b32 v27, v27, v25, vcc")
        A(f"v_bfe_u32 v25, v{ve}, 2, 1")
        for k in range(2):
            A(f"v_cmp_eq_u32 vcc, {k}, v25")
            A(f"v_mov_b32 v{20+k}, 0x0c0c0c0c\nv_mov_b32 v{22+k}, 0x0c0c0c0c")
            A(f"v_cndmask_b32 v{20+k}, v{20+k}, v26, vcc\nv_cndmask_b32 v{22+k}, v{22+k}, v27, vcc")
        A(f"v_and_b32 v25, 2, v{ve}\nv_cmp_eq_u32 vcc, 2, v25")
        A("v_mov_b32 v24, 0x4444\nv_mov_b32 v25, 0xeeee\nv_cndmask_b32 v24, v24, v25, vcc")
    def sel4(dst, src):
        for k in range(4): A(f"v_perm_b32 v{dst+k}, v{src}, v{src}, v{20+k}")
    def smf(d, a, b): A(f"v_smfmac_f32_16x16x64_bf16 v[{d}:{d+3}], v[{a}:{a+3}], v[{b}:{b+7}], v24")
    def rnd(v): A(f"v_cvt_pk_bf16_f32 v{v}, v{v}, v{v}\nv_lshlrev_b32 v{v}, 16, v{v}")
    def common_loads(): A("s_load_dwordx16 s[40:55], s[0:1], 0\ns_load_dwordx8 s[56:63], s[0:1], 64")
    def common_setup(): A(f"s_mov_b32 s18, {(WS_DBG + 0x40000) if stamps else WS_SIZE}\ns_mov_b32 s19, 0x20000\ns_and_b32 s33, s2, 127")
    def unit_idx(d, t):
        A(f"s_and_b32 s{d}, s33, 7\ns_lshr_b32 s{t}, s33, 5\ns_lshl3_add_u32 s{d}, s{t}, s{d}\ns_bfe_u32 s{t}, s33, 0x20003\ns_lshl2_add_u32 s{d}, s{d}, s{t}")
    def dual_poll(name, sbase, stmp, loads, tags, acc, bstore, nfast=12):
        A(f"s_mov_b32 s25, {SPIN}\ns_add_u32 s{stmp}, s{sbase}, {L2P}")
        A(f"{name}:")
        loads()
        A(f"v_cmp_ne_u32 vcc, 0, v{acc}\ns_cbranch_vccz {name}_OK")
        A(f"s_sub_u32 s25, s25, 1\ns_cmp_gt_u32 s25, {SPIN-nfast}\ns_cbranch_scc1 {name}")
        if bstore:
            A(f"s_cmp_lg_u32 s25, {SPIN-nfast}\ns_cbranch_scc1 {name}_NB")
            bstore()
            A(f"{name}_NB:")
        A(f"s_and_b32 s{stmp}, s25, 1\ns_cselect_b32 s{stmp}, 0, {L2P}\ns_add_u32 s{stmp}, s{stmp}, s{sbase}")
        A(f"s_cmp_lg_u32 s25, 0\ns_cbranch_scc1 {name}")
        A(f"{name}_OK:")

    A(f".globl {KN}\n.p2align 8\n.type {KN},@function\n{KN}:")
    stamp(0)
    A("s_load_dwordx8 s[64:71], s[0:1], 0")
    A("s_load_dwordx2 s[16:17], s[0:1], 104")
    A("v_cmp_gt_u32 vcc, 256, v0\ns_lshr_b32 s31, s2, 5\ns_and_b32 s30, s2, 31\ns_lshl_b32 s8, s30, 8")
    A("v_lshlrev_b32 v1, 9, v0\nv_and_b32 v1, 0xffffe000, v1\nv_and_b32 v3, 15, v0\nv_lshl_or_b32 v1, v3, 4, v1")
    A("s_cbranch_vccnz LO")
    if epf: A(f"s_getpc_b64 s[26:27]\nv_and_b32 v254, {epf-1}, v0\nv_lshlrev_b32 v254, 7, v254\nglobal_load_dword v255, v254, s[26:27] offset:256")
    A("s_cmp_ge_u32 s31, 4\ns_cbranch_scc1 ATT\ns_branch HI\nLO:")
    A(f"s_mul_i32 s9, s31, {80*8192}\ns_add_u32 s9, s9, s8\nv_add_u32 v4, s9, v1\ns_mov_b32 s10, 0x20000")
    A("s_cmp_ge_u32 s31, 8\ns_cbranch_scc1 END")
    A("s_waitcnt lgkmcnt(0)")
    for i in range(5):
        A(f"global_load_dwordx4 v[{120+4*i}:{123+4*i}], v4, s[68:69] {NT}")
        if i < 4: A("v_add_u32 v4, s10, v4")
    A("v_lshrrev_b32 v5, 6, v0\nv_bfe_u32 v7, v0, 4, 1\nv_lshlrev_b32 v7, 2, v7\nv_lshl_add_u32 v7, v5, 3, v7\ns_mul_i32 s11, s31, 160\nv_add_u32 v7, s11, v7")
    A("v_bfe_u32 v6, v0, 5, 1\nv_lshl_add_u32 v6, v6, 5, v7")
    A("global_load_dword v8, v6, s[64:65]\nglobal_load_dword v9, v6, s[64:65] offset:64\nglobal_load_dword v10, v7, s[64:65] offset:128")
    A(f"s_load_dword {TAG}, s[16:17], 0")
    A(f"s_lshl_b32 s9, s30, 13\ns_add_u32 s9, s9, {WS_QP}\ns_lshl_b32 s11, s31, 10\ns_add_u32 s11, s11, s9\ns_add_u32 s14, s11, {L2P}")
    A(f"v_lshrrev_b32 v6, 5, v0\nv_lshlrev_b32 v6, 7, v6\nv_add_u32 v6, s14, v6\nglobal_load_dword v31, v6, s[16:17] {LD}")
    common_loads()
    A(f"v_readfirstlane_b32 {WV}, v5")
    A("v_and_b32 v0, 63, v0\nv_lshrrev_b32 v2, 4, v0")
    clear_stamps()
    stamp(1)
    common_setup()
    if prefetch:
        A(f"s_getpc_b64 s[26:27]\nPFB:\ns_and_b32 s28, s2, 0xf8\ns_lshl_b32 s28, s28, 6\ns_sub_u32 s28, s28, PFB-{KN}\ns_lshl_b32 s29, {WV}, 7\ns_add_u32 s28, s28, s29\ns_ashr_i32 s29, s28, 31")
        A("s_add_u32 s26, s26, s28\ns_addc_u32 s27, s27, s29\ns_load_dword s28, s[26:27], 0\ns_load_dword s29, s[26:27], 64")
    selectors(3)
    for i in range(4): A(f"v_mov_b32 v{140+i}, 0\nv_mov_b32 v{32+i}, 0")
    A(f"v_lshlrev_b32 v11, 5, v3\nv_lshl_add_u32 v11, v2, 4, v11\ns_lshl_b32 s12, {WV}, 9\ns_add_u32 s12, s12, {QL}\nv_add_u32 v11, s12, v11")
    A(f"v_lshlrev_b32 v5, 4, v0\nv_lshlrev_b32 v17, 2, v0\nv_lshlrev_b32 v18, 3, v0\nv_add_u32 v18, {QL}, v18")
    if b0 is not None:
        A(f"s_waitcnt vmcnt({b0})\ns_barrier")
        fstamp(5)
    A(f"s_waitcnt lgkmcnt(0)\ns_add_u32 {TAG}, {TAG}, 1")
    A(f"v_mov_b32 v37, {TAG}\nv_mov_b32 v39, {TAG}")
    A("s_waitcnt vmcnt(0)")
    fstamp(6)
    for U in range(3): sel4(40+4*U, 8+U)
    A("s_nop 0")
    for U in range(3): smf(32, 40+4*U, 120+8*U)
    A("s_nop 6")
    A("s_mov_b32 exec_hi, 0\nds_write_b128 v11, v[32:35]\ns_mov_b64 exec, -1")
    A("s_waitcnt lgkmcnt(0)\ns_barrier")
    A(f"s_cmp_lg_u32 {WV}, 0\ns_cbranch_scc1 Q_DONE")
    for w in range(4): A(f"ds_read_b64 v[{60+2*w}:{61+2*w}], v18 offset:{512*w}")
    A("s_waitcnt lgkmcnt(2)\nv_pk_add_f32 v[60:61], v[60:61], v[62:63]")
    A("s_waitcnt lgkmcnt(0)\nv_pk_add_f32 v[64:65], v[64:65], v[66:67]")
    A("v_add_f32 v36, v60, v64\nv_add_f32 v38, v61, v65")
    A(f"buffer_store_dwordx4 v[36:39], v5, {W}, s14 offen")
    A(f"buffer_store_dwordx4 v[36:39], v5, {W}, s11 offen {ST}")
    fstamp(2)
    A("Q_DONE:")
    A("s_cmp_ge_u32 s31, 4\ns_cbranch_scc1 SIDE")
    A(f"s_cmp_lg_u32 {WV}, 1\ns_cbranch_scc1 T_NOG")
    A("v_lshrrev_b32 v12, 3, v0\nv_and_b32 v13, 7, v0\nv_lshlrev_b32 v14, 5, v13")
    A("v_cmp_eq_u32 vcc, 2, v12\nv_lshlrev_b32 v15, 4, v12\ns_nop 0")
    A("v_cndmask_b32 v15, v15, 12, vcc\nv_add_u32 v15, v15, v14\nv_cndmask_b32 v16, 4, 16, vcc\nv_add_u32 v16, v16, v15")
    A("v_lshlrev_b32 v12, 14, v12\nv_lshl_add_u32 v12, v13, 4, v12")
    A(f"s_lshl_b32 s10, s30, 9\ns_lshl_b32 s12, s31, 7\ns_add_u32 s10, s10, s12\ns_add_u32 s10, s10, {WS_QA}")
    A(f"v_mov_b32 v55, {TAG}")
    if qsleep: A(f"s_sleep {qsleep}")
    def qloads():
        A("s_add_u32 s13, s12, 4096")
        for e in range(8):
            A(f"buffer_load_dwordx4 v[{60+4*e}:{63+4*e}], v5, {W}, s{12+(e>>2)} offen offset:{(e&3)*1024} {LD}")
        for e in range(8):
            A(f"s_waitcnt vmcnt({7-e})")
            tagchk(31, 61+4*e, e == 0); tagchk(31, 63+4*e, False)
            if e & 1: A(f"v_add_f32 v{56+4*e}, v{56+4*e}, v{60+4*e}\nv_add_f32 v{58+4*e}, v{58+4*e}, v{62+4*e}")
    dual_poll("T_QP", 9, 12, qloads, None, 31, None, 6)
    fstamp(3)
    if dbgf: count(8, SPIN+1)
    A("v_add_f32 v60, v60, v68\nv_add_f32 v62, v62, v70\nv_add_f32 v76, v76, v84\nv_add_f32 v78, v78, v86")
    A("v_add_f32 v60, v60, v76\nv_add_f32 v62, v62, v78")
    A("v_cvt_pk_bf16_f32 v60, v60, v62")
    A(f"ds_write_b32 v17, v60 offset:{L_Q}")
    A("s_waitcnt lgkmcnt(0)\ns_barrier\ns_barrier")
    A(f"ds_read_b32 v52, v15 offset:{L_QA}\nds_read_b32 v53, v16 offset:{L_QA}\nds_read_b32 v54, v15 offset:{L_QA+8}")
    A("s_mov_b64 exec, 0xffffff")
    A("s_waitcnt lgkmcnt(0)")
    A(f"buffer_store_dwordx4 v[52:55], v12, {W}, s10 offen {ST}")
    A("s_mov_b64 exec, -1")
    stamp(4)
    if skew:
        A(f"s_waitcnt lgkmcnt(0)\nv_mov_b32 v52, s80\nv_mov_b32 v53, 0\ns_lshl_b32 s10, s33, 2\ns_add_u32 s10, s10, {WS_DBG+0x30000}\ns_mov_b64 exec, 1\nbuffer_store_dword v52, v53, {W}, s10 offen sc1\ns_mov_b64 exec, -1")
    A("s_branch T_LO")
    A("T_NOG:\ns_barrier\ns_barrier")
    A("T_LO:")
    srd(4, "wuv")
    A("v_lshlrev_b32 v4, 1, v2\nv_xor_b32 v4, v4, v3\nv_lshlrev_b32 v4, 4, v4\nv_lshl_add_u32 v4, v2, 17, v4\nv_xor_b32 v5, 0x80, v4")
    A(f"s_lshl_b32 s12, s31, 6\ns_add_u32 s12, s12, {WV}\ns_lshl_b32 s12, s12, 14\ns_lshl_b32 s13, s30, 8\ns_add_u32 s12, s12, s13\ns_lshl_b32 s15, {WV}, 12")
    if not early_uv: A(f"s_cmp_eq_u32 {WV}, 7\ns_cbranch_scc1 T_TRK\ns_barrier\nT_TRK:")
    for t in range(4):
        A(f"s_add_u32 m0, s15, {t*1024}")
        A(f"s_add_u32 s14, s12, {(64*(t&1) + (t>>1))*8192}")
        A(f"buffer_load_dwordx4 v{4+(t>>1)}, s[4:7], s14 offen {NT} lds")
        if early_uv:
            if t < early_uv: A("s_waitcnt vmcnt(0)")
        elif t < tail_n0:
            l_ = A.label("TRK")
            A(f"s_cmp_lg_u32 {WV}, 7\ns_cbranch_scc1 {l_}\ns_waitcnt vmcnt(0)")
            if t == tail_n0 - 1: A("s_barrier")
            A(f"{l_}:")
    A("s_branch T_WO")
    A(".p2align 7\nHI:")
    A("s_lshl_b32 s9, s31, 20\ns_add_u32 s9, s9, s8\ns_sub_u32 s9, s9, 0x20000\nv_add_u32 v19, s9, v1\ns_mov_b32 s10, 0x20000")
    A("s_waitcnt lgkmcnt(0)")
    def wuk(t):
        A(f"global_load_dwordx4 v[{200+4*t}:{203+4*t}], v19, s[70:71] {NT}")
        if t < 7: A("v_add_u32 v19, s10, v19")
    for t in range(uk0): wuk(t)
    if b0 is not None: A("s_barrier")
    for t in range(uk0, uk_early): wuk(t)
    A("s_barrier")
    for t in range(uk_early, 8): wuk(t)
    A(f"s_load_dword {TAG}, s[16:17], 0")
    common_loads()
    A("v_lshrrev_b32 v5, 6, v0\nv_and_b32 v0, 63, v0\nv_lshrrev_b32 v2, 4, v0")
    A(f"v_readfirstlane_b32 {WV}, v5")
    clear_stamps()
    common_setup()
    selectors(3)
    A("v_lshrrev_b32 v6, 3, v3\nv_bfe_u32 v7, v3, 2, 1\nv_lshl_add_u32 v6, v7, 1, v6\nv_bfe_u32 v7, v3, 1, 1\nv_lshl_add_u32 v6, v7, 2, v6\nv_lshl_add_u32 v6, v6, 4, v2")
    A(f"s_lshl_b32 s9, {WV}, 2\ns_sub_u32 s9, s9, 16\nv_add_u32 v6, s9, v6\nv_lshlrev_b32 v6, 1, v6")
    A("v_cmp_ne_u32 vcc, 0, v7\nv_lshlrev_b32 v7, 4, v3")
    for t in range(8): A(f"v_mov_b32 v{56+t}, 0")
    A(f"s_waitcnt lgkmcnt(0)\ns_add_u32 {TAG}, {TAG}, 1")
    A("s_waitcnt vmcnt(0)")
    fstamp(7)
    A("s_barrier")
    A(f"ds_read_b128 v[32:35], v7 offset:{L_Q}")
    A("s_waitcnt lgkmcnt(0)")
    for k in range(4):
        for t in range(8): A(f"v_dot2c_f32_bf16 v{56+t}, v{200+4*t+k}, v{32+k}")
    for p_ in range(4): A(f"v_add_f32_dpp v{56+2*p_}, v{56+2*p_}, v{56+2*p_} row_ror:8 row_mask:0xf bank_mask:0x3")
    for p_ in range(4): A(f"v_add_f32_dpp v{56+2*p_}, v{57+2*p_}, v{57+2*p_} row_ror:8 row_mask:0xf bank_mask:0xc")
    A("v_add_f32_dpp v56, v56, v56 row_half_mirror row_mask:0xf bank_mask:0x5\nv_add_f32_dpp v60, v60, v60 row_half_mirror row_mask:0xf bank_mask:0x5")
    A("v_add_f32_dpp v56, v58, v58 row_half_mirror row_mask:0xf bank_mask:0xa\nv_add_f32_dpp v60, v62, v62 row_half_mirror row_mask:0xf bank_mask:0xa\ns_nop 0")
    A(f"v_add_f32_dpp v56, v56, v56 quad_perm:[2,3,0,1] {DPP}\nv_add_f32_dpp v60, v60, v60 quad_perm:[2,3,0,1] {DPP}")
    A("v_cndmask_b32 v56, v56, v60, vcc\ns_nop 1")
    A(f"v_add_f32_dpp v56, v56, v56 quad_perm:[1,0,3,2] {DPP}")
    A(f"v_mul_f32 v56, {hex(f2u(QSCALE))}, v56\nv_cvt_pk_bf16_f32 v56, v56, v56")
    A(f"ds_write_b16 v6, v56 offset:{L_QA}")
    A("s_waitcnt lgkmcnt(0)\ns_barrier")
    A("s_branch T_LO")
    A("T_WO:")
    A(f"s_cmp_lg_u32 {WV}, 6\ns_cbranch_scc1 T_NOGT")
    srd(8, "gw"); srd(20, "x")
    A("v_mul_u32_u24 v5, 20, v0")
    A("buffer_load_dwordx4 v[40:43], v5, s[20:23], 0 offen\nbuffer_load_dword v44, v5, s[20:23], 0 offen offset:16")
    A("buffer_load_dwordx4 v[48:51], v5, s[8:11], 0 offen\nbuffer_load_dword v52, v5, s[8:11], 0 offen offset:16")
    A("v_mov_b32 v30, 0\ns_waitcnt vmcnt(0)")
    for i in range(5):
        A(f"v_lshlrev_b32 v56, 16, v{40+i}\nv_and_b32 v57, 0xffff0000, v{40+i}\nv_lshlrev_b32 v58, 16, v{48+i}\nv_and_b32 v59, 0xffff0000, v{48+i}")
        A("v_pk_mul_f32 v[56:57], v[56:57], v[58:59]\nv_cvt_pk_bf16_f32 v56, v56, v57\nv_lshlrev_b32 v57, 16, v56\nv_and_b32 v56, 0xffff0000, v56")
        A("v_add_f32 v30, v30, v57\nv_add_f32 v30, v30, v56")
    A("v_mov_b32 v31, v30\ns_nop 1\nv_permlane32_swap_b32 v30, v31\nv_add_f32 v30, v30, v31")
    A("v_mov_b32 v31, v30\ns_nop 1\nv_permlane16_swap_b32 v30, v31\nv_add_f32 v30, v30, v31")
    for k in (8, 4, 2, 1): A(f"s_nop 1\nv_add_f32_dpp v30, v30, v30 row_ror:{k} {DPP}")
    rnd(30)
    A(f"v_mul_f32 v30, {hex(f2u(-math.log2(math.e)))}, v30\nv_exp_f32 v30, v30\ns_nop 0\nv_add_f32 v30, 1.0, v30\nv_rcp_f32 v30, v30\ns_nop 0")
    rnd(30)
    A("v_sub_f32 v31, 1.0, v30")
    rnd(31)
    A(f"v_mov_b32 v5, 0\nds_write_b64 v5, v[30:31] offset:{L_G}")
    A("T_NOGT:")
    unit_idx(34, 35)
    A(f"s_lshl_b32 s39, s30, 2\ns_add_u32 s39, s39, s31")
    A(f"s_lshl_b32 s35, s39, 10\ns_lshl_b32 s14, {WV}, 7\ns_add_u32 s35, s35, s14\ns_add_u32 s35, s35, {WS_CX}\ns_add_u32 s36, s35, {L2P}\nv_mov_b32 v11, 0")
    A(f"buffer_load_dword v31, v11, {W}, s36 offen {LD}")
    srd(4, "wd"); srd(8, "wo")
    A("v_mul_u32_u24 v9, 1280, v2\nv_lshl_add_u32 v9, v3, 4, v9\nv_mov_b32 v98, v9")
    A(f"s_cmp_ge_u32 {WV}, 5\ns_cbranch_scc1 T_NOWO")
    A(f"s_lshl_b32 s14, {WV}, 8\ns_mul_i32 s12, s34, {16*1280}\ns_add_u32 s12, s12, s14\ns_mul_i32 s13, s39, {32*1280}\ns_add_u32 s13, s13, s14")
    for t in range(4):
        if lo_win: A(f"s_waitcnt vmcnt({lo_win-1})")
        A(f"buffer_load_dwordx4 v[{168+4*t}:{171+4*t}], v9, s[4:7], s12 offen {NT}")
        if t < 3: A("s_add_u32 s12, s12, 5120")
    A("s_mov_b32 s26, s13")
    def wo(t):
        A(f"buffer_load_dwordx4 v[{208+4*t}:{211+4*t}], v98, s[8:11], s26 offen {NT}")
        if t < 7: A("s_add_u32 s26, s26, 5120")
    for t in range(8 - wo_def): wo(t)
    A(f"s_waitcnt vmcnt({12 - wo_def})\ns_branch T_WO2\nT_NOWO:\ns_waitcnt vmcnt(0)\nT_WO2:")
    A("s_mov_b32 s70, 0x07060302\ns_mov_b32 s71, 0x0c0c0501\ns_mov_b32 s72, 0x05010c0c")
    A("v_bfe_u32 v5, v0, 1, 1\nv_lshlrev_b32 v5, 3, v5\nv_lshl_add_u32 v5, v2, 1, v5\nv_and_b32 v6, 1, v0\nv_add_u32 v5, v5, v6")
    if st_mode == 1: A(f"v_lshlrev_b32 v5, 11, v5\ns_lshl_b32 s13, {WV}, 15\ns_lshl_b32 s14, s31, 9\ns_add_u32 s13, s13, s14\ns_lshl_b32 s14, s30, 4\ns_add_u32 s13, s13, s14\ns_add_u32 s13, s13, {WS_ST}")
    elif st_mode == 2:
        A(f"v_lshlrev_b32 v5, 11, v5\ns_lshl_b32 s13, {WV}, 15\ns_lshl_b32 s14, s31, 6\ns_add_u32 s13, s13, s14\ns_and_b32 s14, s30, 7\ns_lshl_b32 s14, s14, 8\ns_add_u32 s13, s13, s14")
        A(f"s_lshr_b32 s14, s30, 3\ns_lshl_b32 s14, s14, 4\ns_add_u32 s13, s13, s14\ns_add_u32 s13, s13, {WS_ST}")
    else: A(f"v_lshlrev_b32 v5, 4, v5\ns_lshl_b32 s13, s39, 3\ns_add_u32 s13, s13, {WV}\ns_lshl_b32 s13, s13, 8\ns_add_u32 s13, s13, {WS_ST}")
    A(f"s_lshl_b32 s12, s39, 3\ns_add_u32 s12, s12, {WV}\ns_lshl_b32 s12, s12, 12\ns_add_u32 s12, s12, {WS_OP}")
    A("v_lshlrev_b32 v10, 4, v0")
    A(f"s_lshl_b32 s14, {WV}, 2\ns_add_u32 s14, s14, {L_M}\nv_mov_b32 v6, s14")
    A(f"v_lshlrev_b32 v7, 4, v3\nv_lshl_add_u32 v7, v2, 3, v7\ns_mul_i32 s14, {WV}, 272\nv_add_u32 v7, s14, v7")
    A("v_and_b32 v8, 7, v0\nv_mul_u32_u24 v8, 272, v8\nv_lshl_add_u32 v8, v2, 4, v8")
    A(f"v_bfe_u32 v12, v0, 2, 2\nv_lshl_add_u32 v12, v2, 3, v12\nv_lshlrev_b32 v12, 8, v12\nv_and_b32 v13, 3, v0\nv_lshl_add_u32 v12, v13, 3, v12\ns_lshl_b32 s14, {WV}, 5\nv_add_u32 v12, s14, v12")
    A("v_bfe_u32 v14, v0, 2, 3\nv_lshlrev_b32 v14, 5, v14\nv_xor_b32 v12, v12, v14")
    A("v_lshlrev_b32 v14, 3, v3")
    A("v_and_b32 v15, 12, v3\nv_add_u32 v15, v15, v2\nv_lshlrev_b32 v15, 4, v15\nv_lshl_add_u32 v15, v13, 10, v15")
    A(f"s_lshl_b32 s37, s30, 12\ns_lshl_b32 s14, s31, 8\ns_add_u32 s37, s37, s14\ns_add_u32 s37, s37, {WS_CX}")
    A("v_lshlrev_b32 v19, 5, v3\nv_lshl_add_u32 v19, v2, 4, v19")
    A(f"s_mul_i32 s15, s33, 2560\ns_lshl_b32 s14, {WV}, 9\ns_add_u32 s15, s15, s14\ns_add_u32 s15, s15, {WS_FA}")
    A(f"v_add_u32 v16, {TAG}, v3\ns_mov_b32 s14, 0x9e3779b1\nv_mul_lo_u32 v16, v16, s14")
    A("v_lshrrev_b32 v17, 3, v3\nv_lshrrev_b32 v18, 1, v2\nv_lshl_add_u32 v17, v17, 1, v18\nv_lshlrev_b32 v17, 4, v17")
    A("v_bfe_u32 v18, v3, 2, 1\nv_lshl_add_u32 v17, v18, 1, v17\nv_and_b32 v18, 1, v2\nv_add_u32 v17, v17, v18\nv_lshlrev_b32 v17, 2, v17")
    A(f"v_lshlrev_b32 v18, 4, v18\nv_add_u32 v18, {L_M}, v18\nv_xor_b32 v13, 16, v18\nv_lshlrev_b32 v4, 4, v2")
    A(f"s_lshl_b32 s38, s33, 7\ns_add_u32 s38, s38, {WS_HH}")
    for i in (60, 61, 62, 63, 116, 117, 118, 119): A(f"v_mov_b32 v{i}, 0")
    A(f"v_mov_b32 v65, {TAG}\nv_mov_b32 v67, {TAG}\nv_mov_b32 v71, {TAG}\nv_not_b32 v35, {TAG}")
    A(f"s_cmp_lg_u32 {WV}, 7\ns_cbranch_scc1 T_BW")
    A(f"v_lshlrev_b32 v9, 10, v3\ns_and_b32 s27, s33, 7\ns_lshl_b32 s27, s27, 7\ns_add_u32 s27, s27, {WS_HB}\ns_mov_b32 s25, 80\ns_mov_b64 exec, 0xffff")
    A(f"T_LH:\nbuffer_load_dword v79, v9, {W}, s27 offen {LD}\ns_waitcnt vmcnt(0)")
    A(f"v_cmp_ne_u32 vcc, {TAG}, v79\ns_bcnt1_i32_b64 s14, vcc\ns_cmp_le_u32 s14, {lmiss}\ns_cbranch_scc1 T_LH2")
    A("s_sleep 1\ns_sub_u32 s25, s25, 1\ns_cmp_lg_u32 s25, 0\ns_cbranch_scc1 T_LH")
    A("T_LH2:\ns_mov_b64 exec, -1")
    A("T_BW:")
    tstamp(5)
    A("s_waitcnt lgkmcnt(0)\ns_barrier")
    for ks in range(4):
        for sec in range(2): A(f"ds_read_b64_tr_b16 v[{100+4*ks+2*sec}:{101+4*ks+2*sec}], v12 offset:{ks*8192 + sec*1024}")
    A(f"ds_read_b64 v[96:97], v11 offset:{L_G}")
    A(f"s_mov_b32 s25, {SPIN}")
    if skipA:
        tstamp(6)
        A(f"buffer_load_dwordx4 v[32:35], v5, {W}, s13 offen {LD}")
        for t in range(4): A(f"buffer_load_dwordx4 v[{80+4*t}:{83+4*t}], v10, {W}, s12 offen offset:{t*1024} {LD}")
        if wo_def:
            A(f"s_cmp_ge_u32 {WV}, 5\ns_cbranch_scc1 T_CH")
            if wo_bar: A("s_sleep 1")
            for t in range(8 - wo_def, 8): wo(t)
            A(f"s_waitcnt vmcnt({wo_def})\ns_branch T_CH2")
        else: A("s_branch T_CH")
    else:
        A(f"buffer_load_dwordx4 v[32:35], v5, {W}, s13 offen {LD}")
        A("T_PA:")
        A(f"s_waitcnt vmcnt(0)\nv_cmp_ne_u32 vcc, {TAG}, v35\ns_bcnt1_i32_b64 s14, vcc\ns_cmp_le_u32 s14, {64-thr}\ns_cbranch_scc1 T_PB")
        A(f"s_sleep {poll_sleep}")
        A(f"s_mov_b64 exec, vcc\nbuffer_load_dwordx4 v[32:35], v5, {W}, s13 offen {LD}\ns_mov_b64 exec, -1")
        A("s_sub_u32 s25, s25, 1\ns_cmp_lg_u32 s25, 0\ns_cbranch_scc1 T_PA")
    A("T_PB:")
    A(f"s_mov_b32 s25, {SPIN}")
    A("T_ALL:\ns_mov_b64 s[28:29], -1")
    A("T_RL:")
    A(f"s_cbranch_vccz T_NS\ns_mov_b64 exec, vcc\nbuffer_load_dwordx4 v[32:35], v5, {W}, s13 offen {LD}\ns_mov_b64 exec, -1\nT_NS:")
    for t in range(4):
        A(f"s_and_b32 s14, s{28+(t&1)}, {'0x33333333' if t < 2 else '0xcccccccc'}\ns_cbranch_scc0 T_NL{t}")
        A(f"buffer_load_dwordx4 v[{80+4*t}:{83+4*t}], v10, {W}, s12 offen offset:{t*1024} {LD}\nT_NL{t}:")
    A("s_sub_u32 s25, s25, 1")
    A(f"T_CH:\ns_waitcnt vmcnt(0)\nT_CH2:\nv_cmp_ne_u32 vcc, {TAG}, v35\ns_cbranch_vccz T_VER")
    A("s_mov_b64 s[28:29], vcc\ns_cmp_gt_i32 s25, 0\ns_cbranch_scc1 T_RL")
    A("T_VER:")
    A("ds_bpermute_b32 v30, v17, v34\nv_mov_b32 v76, v32")
    for t in range(4): A(f"v_add3_u32 v{72+t}, v{80+4*t}, v{81+4*t}, v{82+4*t}")
    A(f"v_max_f32_dpp v76, v76, v76 quad_perm:[1,0,3,2] {DPP}")
    for t in range(4): A(f"v_add_u32 v{72+t}, v{72+t}, v{83+4*t}")
    A(f"v_max_f32_dpp v76, v76, v76 quad_perm:[2,3,0,1] {DPP}")
    A("v_add_u32_dpp v72, v72, v72 row_ror:8 row_mask:0xf bank_mask:0x3\nv_mov_b32 v77, v76\nv_add_u32_dpp v74, v74, v74 row_ror:8 row_mask:0xf bank_mask:0x3")
    A("v_add_u32_dpp v72, v73, v73 row_ror:8 row_mask:0xf bank_mask:0xc\nv_permlane16_swap_b32 v76, v77\nv_add_u32_dpp v74, v75, v75 row_ror:8 row_mask:0xf bank_mask:0xc")
    A("v_max_f32 v76, v76, v77\nv_mov_b32 v77, v76")
    A("v_add_u32_dpp v72, v72, v72 row_half_mirror row_mask:0xf bank_mask:0x5\nv_add_u32_dpp v72, v74, v74 row_half_mirror row_mask:0xf bank_mask:0xa")
    A("v_permlane32_swap_b32 v76, v77\nv_max_f32 v76, v76, v77")
    A(f"v_add_u32_dpp v72, v72, v72 quad_perm:[1,0,3,2] {DPP}")
    A("v_sub_f32 v36, v32, v76\nv_exp_f32 v36, v36")
    A(f"v_add_u32_dpp v72, v72, v72 quad_perm:[2,3,0,1] {DPP}")
    A("s_waitcnt lgkmcnt(0)\nv_cmp_ne_u32 vcc, v72, v30\ns_cbranch_vccz T_OK")
    A("s_mov_b64 vcc, 0\ns_cmp_gt_i32 s25, 0\ns_cbranch_scc1 T_ALL")
    A("T_OK:")
    A(f"s_add_u32 s14, s38, {L2P}\nbuffer_load_dwordx4 v[184:187], v4, {W}, s14 offen {LD}")
    for t in range(4): A(f"v_mov_b32_dpp v{40+t}, v36 quad_perm:[{t},{t},{t},{t}] {DPP}")
    A("v_cvt_pk_bf16_f32 v28, v40, v41\nv_cvt_pk_bf16_f32 v29, v42, v43\nv_mul_f32 v77, v36, v33")
    for i in range(4): A(f"v_mov_b32 v{56+i}, 0")
    for k in range(8): A(f"v_xor_b32 v{80+k}, v16, v{80+k}")
    sel4(44, 28); sel4(48, 29)
    smf(56, 44, 80)
    for k in range(8, 16): A(f"v_xor_b32 v{80+k}, v16, v{80+k}")
    A(f"v_add_f32_dpp v77, v77, v77 quad_perm:[1,0,3,2] {DPP}\ns_nop 0")
    smf(56, 48, 88)
    A(f"v_add_f32_dpp v77, v77, v77 quad_perm:[2,3,0,1] {DPP}")
    A("v_mov_b32 v78, v77\ns_nop 1\nv_permlane16_swap_b32 v77, v78\nv_add_f32 v77, v77, v78")
    A("v_mov_b32 v78, v77\ns_nop 1\nv_permlane32_swap_b32 v77, v78\nv_add_f32 v77, v77, v78")
    tstamp(7)
    if not dbgf: count(1, SPIN)
    A("v_cvt_pk_bf16_f32 v56, v56, v57\nv_cvt_pk_bf16_f32 v57, v58, v59")
    A(f"s_mov_b32 exec_hi, 0\nds_write_b64 v7, v[56:57] offset:{L_PART}\ns_mov_b64 exec, -1")
    A("ds_write2_b32 v6, v76, v77 offset0:0 offset1:8")
    A("s_waitcnt lgkmcnt(0)\ns_barrier")
    for ks in range(4):
        A(f"ds_read_b128 v[{80+4*ks}:{83+4*ks}], v8 offset:{L_PART + 64*ks}")
    A(f"ds_read_b128 v[36:39], v18\nds_read_b128 v[40:43], v13\nds_read_b128 v[44:47], v18 offset:32")
    for ks in range(4):
        A(f"s_waitcnt lgkmcnt({6-ks})")
        A(f"v_mfma_f32_16x16x32_bf16 v[52:55], v[{80+4*ks}:{83+4*ks}], v[{100+4*ks}:{103+4*ks}], {'0' if ks==0 else 'v[52:55]'}")
    A("s_waitcnt lgkmcnt(1)")
    A("v_max3_f32 v40, v40, v41, v42\nv_max3_f32 v41, v36, v37, v38\nv_max3_f32 v40, v40, v43, v39\nv_max_f32 v40, v40, v41")
    for r in range(4): A(f"v_sub_f32 v{36+r}, v{36+r}, v40")
    for r in range(4): A(f"v_exp_f32 v{36+r}, v{36+r}")
    A("s_waitcnt lgkmcnt(0)")
    A("v_mul_f32 v52, v52, v36\nv_mul_f32 v44, v44, v36")
    for r in range(1, 4): A(f"v_fmac_f32 v52, v{52+r}, v{36+r}\nv_fmac_f32 v44, v{44+r}, v{36+r}")
    A("v_mov_b32 v53, v52\nv_mov_b32 v45, v44\ns_nop 0\nv_permlane16_swap_b32 v52, v53\nv_permlane16_swap_b32 v44, v45\nv_add_f32 v64, v52, v53\nv_add_f32 v36, v44, v45\nv_rcp_f32 v36, v36")
    A(f"v_mov_b32_dpp v66, v64 quad_perm:[1,0,3,2] {DPP}")
    def cstore(sreg, fl): A(f"s_mov_b64 exec, 0x5555\nbuffer_store_dwordx4 v[64:67], v14, {W}, s{sreg} offen {fl}\ns_mov_b64 exec, -1")
    cstore(36, "")
    tstamp(2)
    A("s_waitcnt vmcnt(1)")
    A(f"s_cmp_ge_u32 {WV}, 5\ns_cbranch_scc1 T_BST")
    A("s_cmp_ge_u32 s34, 108\ns_cbranch_scc1 T_NOH")
    tagchk(31, 185, True); tagchk(31, 187, False)
    A("v_cmp_ne_u32 vcc, 0, v31\ns_cbranch_vccz T_HP_OK")
    def hloads():
        A(f"buffer_load_dwordx4 v[184:187], v4, {W}, s12 offen {LD}\ns_waitcnt vmcnt(0)")
        tagchk(31, 185, True); tagchk(31, 187, False)
    dual_poll("T_HP", 38, 12, hloads, None, 31, lambda: cstore(35, ST))
    sel4(44, 184); sel4(48, 186)
    A("s_nop 0")
    smf(116, 44, 168); smf(116, 48, 176)
    A("T_NOH:")
    def cloads():
        A(f"buffer_load_dwordx4 v[32:35], v15, {W}, s12 offen {LD}\ns_waitcnt vmcnt(0)")
        tagchk(31, 33, True); tagchk(31, 35, False)
    dual_poll("T_CP", 37, 12, cloads, None, 31, lambda: cstore(35, ST))
    tstamp(3)
    for qp in ("[1,0,3,2]", "[2,3,0,1]"):
        A(f"v_add_f32_dpp v32, v32, v32 quad_perm:{qp} {DPP}\nv_add_f32_dpp v34, v34, v34 quad_perm:{qp} {DPP}\ns_nop 0")
    A("v_mul_f32 v32, v32, v36\nv_mul_f32 v34, v34, v36\nv_cvt_pk_bf16_f32 v32, v32, v34\ns_nop 1")
    for U in range(4): A(f"v_mov_b32_dpp v{28+U}, v32 row_newbcast:{4*U} {DPP}")
    for U in range(4): sel4(40+4*U, 28+U)
    for U in range(4): smf(60, 40+4*U, 208+8*U)
    A("v_pk_mul_f32 v[116:117], v[116:117], v[96:97] op_sel:[0,1] op_sel_hi:[1,1]\nv_pk_mul_f32 v[118:119], v[118:119], v[96:97] op_sel:[0,1] op_sel_hi:[1,1]")
    A("s_nop 5")
    A("v_pk_fma_f32 v[60:61], v[60:61], v[96:97], v[116:117] op_sel_hi:[1,0,1]\nv_pk_fma_f32 v[62:63], v[62:63], v[96:97], v[118:119] op_sel_hi:[1,0,1]")
    A("v_perm_b32 v68, v61, v60, s70\nv_perm_b32 v69, v63, v62, s70\nv_perm_b32 v38, v61, v60, s71\nv_perm_b32 v70, v63, v62, s72\nv_or_b32 v70, v70, v38")
    A(f"s_mov_b32 exec_hi, 0\nbuffer_store_dwordx4 v[68:71], v19, {W}, s15 offen {ST}")
    A("T_BST:")
    cstore(35, ST)
    tstamp(8)
    finish()
    A(".p2align 7\nATT:")
    A("s_cmp_ge_u32 s31, 8\ns_cbranch_scc1 END")
    A("v_lshrrev_b32 v1, 6, v0\nv_and_b32 v0, 63, v0\ns_lshl_b32 s8, s2, 2")
    A(f"v_readfirstlane_b32 {WV}, v1")
    A("v_lshlrev_b32 v62, 4, v0\ns_mov_b32 s10, 0")
    A(f"s_sub_u32 s36, {WV}, 4\ns_add_u32 s8, s8, s36\ns_lshl_b32 s9, s36, 15\ns_bitset0_b32 s8, 9\ns_lshl_b32 s8, s8, 15\ns_mov_b32 m0, s9")
    A("s_waitcnt lgkmcnt(0)")
    A("s_add_u32 s66, s66, s8\ns_addc_u32 s67, s67, 0")
    def dma_loop(name, upto, win, bar=None):
        A(f"{name}:")
        A("s_lshl_b32 s11, s10, 5\ns_and_b32 s12, s10, 8\ns_and_b32 s11, s11, 0xe0\ns_lshl1_add_u32 s11, s12, s11")
        A("v_xor_b32 v63, s11, v62")
        A(f"s_waitcnt vmcnt({win-1})")
        if bar is not None: A(f"s_cmp_lg_u32 s10, {bar}\ns_cbranch_scc1 {name}_NB\ns_barrier\n{name}_NB:")
        A(f"global_load_lds_dwordx4 v63, s[66:67] {NT}")
        A("v_add_u32 v62, 0x400, v62\ns_add_u32 m0, m0, 0x400\ns_add_u32 s10, s10, 1")
        A(f"s_cmp_lt_u32 s10, {upto}\ns_cbranch_scc1 {name}")
    fstamp(6)
    if b0 is not None: A("s_barrier")
    dma_loop("DMA0", att_w0 + att_win, att_win, bar=att_w0)
    fstamp(8)
    common_loads()
    A(f"s_load_dword {TAG}, s[16:17], 0")
    clear_stamps(6 if dbgf else 10)
    common_setup()
    A("v_and_b32 v2, 31, v0\nv_lshrrev_b32 v3, 5, v0")
    A("v_and_b32 v4, 7, v2\nv_bfe_u32 v5, v2, 3, 1\nv_lshl_add_u32 v4, v4, 1, v5\nv_xor_b32 v4, v4, v3\nv_lshlrev_b32 v4, 4, v4\nv_lshl_add_u32 v4, v2, 10, v4")
    A("v_add_u32 v8, s9, v4")
    for tt in range(1, 8): A(f"v_xor_b32 v{8+tt}, {tt << 5}, v8")
    for tt in range(8):
        A(f"v_xor_b32 v{16+tt}, {tt}, v0\nv_lshlrev_b32 v{16+tt}, 4, v{16+tt}\nv_add_u32 v{16+tt}, {QL + tt*1024}, v{16+tt}")
    A(f"v_lshlrev_b32 v6, 4, v2\nv_add_u32 v28, {QL+8192}, v6\ns_lshl_b32 s11, s36, 2\nv_add_u32 v29, s11, v28")
    A(f"v_lshlrev_b32 v6, 5, v2\nv_add_u32 v31, {QL+9216}, v6\nv_lshl_add_u32 v31, v3, 2, v31\ns_lshl_b32 s11, s36, 3\nv_add_u32 v31, s11, v31")
    A(f"s_lshl_b32 s11, s36, 11\ns_add_u32 s11, s11, {QL}\nv_lshlrev_b32 v32, 4, v0\nv_add_u32 v32, s11, v32")
    unit_idx(34, 35)
    A("v_lshrrev_b32 v4, 3, v0\nv_and_b32 v35, 7, v0\nv_and_b32 v5, 1, v4\nv_lshl_add_u32 v5, v3, 1, v5")
    A("v_mul_u32_u24 v5, 20, v5\nv_bfe_u32 v6, v4, 1, 1\nv_add_u32 v5, v5, v6\nv_mul_u32_u24 v5, 3456, v5\nv_lshl_add_u32 v33, v35, 4, v5\nv_mul_u32_u24 v34, 40, v4")
    A("v_lshrrev_b32 v30, 4, v0\nv_lshlrev_b32 v30, 7, v30")
    A(f"s_waitcnt lgkmcnt(0)\ns_add_u32 {TAG}, {TAG}, 1")
    A("s_cmp_lt_u32 s36, 2")
    A(f"s_cselect_b32 s4, s{P['wg']}, s{P['wu']}\ns_cselect_b32 s5, s{P['wg']+1}, s{P['wu']+1}\ns_cselect_b32 s37, 0, 4096")
    A(f"s_mov_b32 s6, {SZ['wg']}\ns_mov_b32 s7, 0x20000")
    srd(20, "x")
    A(f"s_and_b32 s28, s34, 3\ns_lshr_b32 s29, s34, 2\ns_and_b32 s26, s36, 1")
    A(f"s_mul_i32 s13, s28, {160*3456}\ns_lshl_b32 s14, s29, 7\ns_add_u32 s13, s13, s14\ns_mul_i32 s14, s26, {10*3456}\ns_add_u32 s13, s13, s14\ns_add_u32 s14, s13, {80*3456}")
    A("s_mul_i32 s15, s28, 320\ns_mul_i32 s27, s26, 20\ns_add_u32 s15, s15, s27")
    A(f"s_lshl_b32 s29, s29, 13\ns_add_u32 s29, s29, {WS_GP}\ns_lshl_b32 s27, s28, 10\ns_lshl_b32 s26, s26, 9\ns_add_u32 s37, s37, s29\ns_add_u32 s37, s37, s27\ns_add_u32 s37, s37, s26\ns_add_u32 s35, s37, {L2P}")
    A(f"s_lshl_b32 s28, s28, 7\ns_add_u32 s38, s29, s28\ns_lshl_b32 s39, s33, 7\ns_add_u32 s39, s39, {WS_HH}")
    fstamp(7)
    dma_loop("DMA2", trig, att_win)
    A("s_barrier")
    if trig < 32: dma_loop("DMA3", 32, att_win)
    stamp(1)
    D = 4
    A("s_waitcnt vmcnt(0)")
    stamp(2)
    for t in range(32): A(f"ds_read_b128 v[{128+4*t}:{131+4*t}], v{8+(t&7)} offset:{(t>>3)*256}")
    A("s_cmp_ge_u32 s34, 108\ns_cbranch_scc1 K_NOF")
    A(f"buffer_load_dword v125, v30, {W}, s35 offen {LD}")
    A(f"s_add_u32 s27, s39, {L2P}\nbuffer_load_dword v126, off, {W}, s27 {LD}")
    A("buffer_load_dwordx4 v[120:123], v34, s[20:23], s15 offen\nbuffer_load_dword v124, v34, s[20:23], s15 offen offset:16")
    fops = []
    for T in range(5):
        for hf in range(2):
            r = 80 + 8*T + 4*hf
            fops.append(f"buffer_load_dwordx4 v[{r}:{r+3}], v33, s[4:7], s{13+hf} offen {NT}" + (f"\ns_add_u32 s{13+hf}, s{13+hf}, {2*3456}" if T < 4 else ""))
    for _ in range(ffn_pre): A(fops.pop(0))
    A("s_branch K_F1\nK_NOF:\ns_mov_b32 s6, 0\nK_F1:")
    if prio: A("s_setprio 2")
    A("s_waitcnt lgkmcnt(0)\ns_barrier")
    stamp(3)
    for t in range(D): A(f"ds_read_b128 v[{64+4*t}:{67+4*t}], v{16+t}")
    for t in range(32):
        A(f"s_waitcnt lgkmcnt({min(D-1, 31-t)})")
        if t == 31: A("s_barrier")
        a_ = 64 + 4*(t % D)
        A(f"v_mfma_f32_32x32x16_bf16 v[40:55], v[{128+4*t}:{131+4*t}], v[{a_}:{a_+3}], {'0' if t==0 else 'v[40:55]'}")
        if t + D < 32: A(f"ds_read_b128 v[{a_}:{a_+3}], v{16+((t+D)&7)} offset:{((t+D)>>3)*8192}")
        if t % ffn_gap == ffn_gap - 1 and fops: A(fops.pop(0))
    assert not fops
    A("s_nop 11")
    stamp(4)
    A("v_max3_f32 v56, v40, v41, v42\nv_max3_f32 v57, v43, v44, v45\nv_max3_f32 v58, v46, v47, v48\nv_max3_f32 v59, v49, v50, v51")
    A("v_max3_f32 v56, v56, v52, v53\nv_max3_f32 v57, v57, v54, v55\nv_max3_f32 v56, v56, v57, v58\nv_max_f32 v56, v56, v59")
    A("v_mov_b32 v57, v56\ns_nop 1\nv_permlane32_swap_b32 v56, v57\nv_max_f32 v56, v56, v57")
    A("v_ceil_f32 v36, v56\nds_write_b32 v29, v36")
    for i in range(8): A(f"v_pk_add_f32 v[{40+2*i}:{41+2*i}], v[{40+2*i}:{41+2*i}], v[36:37] op_sel_hi:[1,0] neg_lo:[0,1] neg_hi:[0,1]")
    for r in range(4): A(f"v_exp_f32 v{40+r}, v{40+r}")
    A("s_waitcnt lgkmcnt(0)\ns_barrier")
    A("ds_read_b128 v[56:59], v28")
    for r in range(4, 16): A(f"v_exp_f32 v{40+r}, v{40+r}")
    A("s_waitcnt lgkmcnt(0)")
    A("v_max3_f32 v56, v56, v57, v58\nv_max_f32 v60, v56, v59")
    A("v_sub_f32 v36, v36, v60\nv_exp_f32 v36, v36\ns_nop 0")
    for hs in range(2):
        for i in range(4*hs, 4*hs+4): A(f"v_pk_mul_f32 v[{40+2*i}:{41+2*i}], v[{40+2*i}:{41+2*i}], v[36:37] op_sel_hi:[1,0]")
        for i in range(4*hs, 4*hs+4): A(f"v_cvt_pk_bf16_f32 v{64+i}, v{40+2*i}, v{41+2*i}")
        A(f"ds_write_b128 v32, v[{64+4*hs}:{67+4*hs}] offset:{1024*hs}")
    A("s_waitcnt lgkmcnt(0)\ns_barrier")
    if prio: A("s_setprio 0")
    stamp(5)
    for i in range(4): A(f"v_pk_add_f32 v[{40+2*i}:{41+2*i}], v[{40+2*i}:{41+2*i}], v[{48+2*i}:{49+2*i}]")
    A("v_pk_add_f32 v[40:41], v[40:41], v[44:45]\nv_pk_add_f32 v[42:43], v[42:43], v[46:47]\nv_pk_add_f32 v[40:41], v[40:41], v[42:43]\nv_add_f32 v40, v40, v41")
    A("ds_write_b32 v31, v40")
    A("s_waitcnt lgkmcnt(0)\ns_barrier")
    A("s_cmp_ge_u32 s34, 108\ns_cbranch_scc1 K_END")
    selectors(35)
    A("v_lshrrev_b32 v2, 4, v0\nv_and_b32 v11, 1, v2\nv_lshrrev_b32 v12, 1, v2\nv_lshl_add_u32 v11, v11, 1, v12\nv_lshl_add_u32 v11, v35, 2, v11\nv_lshlrev_b32 v11, 4, v11")
    A("v_lshrrev_b32 v12, 3, v0\nv_lshlrev_b32 v12, 10, v12\nv_lshl_add_u32 v12, v35, 4, v12")
    A(f"v_mov_b32 v32, 0\nv_mov_b32 v33, 0\nv_mov_b32 v34, 0\nv_mov_b32 v35, 0\nv_mov_b32 v37, {TAG}\nv_mov_b32 v39, {TAG}")
    A("s_waitcnt vmcnt(10)")
    for T in range(5): sel4(40+4*T, 120+T)
    A("s_waitcnt vmcnt(0)")
    for T in range(5): smf(32, 40+4*T, 80+8*T)
    A("s_nop 7")
    A("v_permlane32_swap_b32 v32, v34\nv_permlane32_swap_b32 v33, v35\ns_nop 1")
    A(f"v_add_f32_dpp v36, v34, v32 row_ror:8 {DPP}\nv_add_f32_dpp v38, v35, v33 row_ror:8 {DPP}")
    def gstore(sreg, fl): A(f"s_mov_b32 exec_lo, 0x00ff00ff\ns_mov_b32 exec_hi, 0x00ff00ff\nbuffer_store_dwordx4 v[36:39], v11, {W}, s{sreg} offen {fl}\ns_mov_b64 exec, -1")
    gstore(35, "")
    tstamp(6)
    A("s_cmp_lg_u32 s36, 1\ns_cbranch_scc1 K_GB")
    def gloads():
        A(f"buffer_load_dwordx4 v[40:43], v12, {W}, s13 offen {LD}\nbuffer_load_dwordx4 v[44:47], v12, {W}, s13 offen offset:512 {LD}\ns_waitcnt vmcnt(0)")
        tagchk(31, 41, True); tagchk(31, 43, False); tagchk(31, 45, False); tagchk(31, 47, False)
    dual_poll("K_GP", 38, 13, gloads, None, 31, lambda: gstore(37, ST), 10)
    A("v_add_f32 v40, v40, v44\nv_add_f32 v42, v42, v46\ns_nop 1")
    A(f"v_add_f32_dpp v40, v40, v40 row_ror:8 {DPP}\nv_add_f32_dpp v42, v42, v42 row_ror:8 {DPP}")
    A("v_mov_b32 v41, v40\nv_mov_b32 v43, v42\ns_nop 1\nv_permlane16_swap_b32 v40, v41\nv_permlane16_swap_b32 v42, v43")
    A("v_add_f32 v40, v40, v41\nv_add_f32 v42, v42, v43")
    A("v_mov_b32 v41, v40\nv_mov_b32 v43, v42\ns_nop 1\nv_permlane32_swap_b32 v40, v41\nv_permlane32_swap_b32 v42, v43")
    for v in (40, 41, 42, 43): rnd(v)
    k1 = -2.0 * math.sqrt(2.0 / math.pi) * math.log2(math.e)
    for g in (40, 42):
        A(f"v_mul_f32 v44, v{g}, v{g}\nv_mul_f32 v44, {hex(f2u(0.044715))}, v44\nv_add_f32 v44, 1.0, v44\nv_mul_f32 v44, v44, v{g}\nv_mul_f32 v44, {hex(f2u(k1))}, v44")
        A(f"v_exp_f32 v44, v44\ns_nop 0\nv_add_f32 v44, 1.0, v44\nv_rcp_f32 v44, v44\ns_nop 0\nv_mul_f32 v{g}, v{g}, v44")
        rnd(g)
        A(f"v_mul_f32 v{g}, v{g}, v{g+1}")
    A(f"v_cvt_pk_bf16_f32 v48, v40, v42\nv_mov_b32 v49, {TAG}\nv_mov_b32 v51, {TAG}\nv_lshlrev_b32 v5, 4, v0")
    A(f"v_mov_b32_dpp v50, v48 row_ror:4 {DPP}")
    A(f"s_mov_b64 exec, 15\nbuffer_store_dwordx4 v[48:51], v5, {W}, s27 offen\nbuffer_store_dwordx4 v[48:51], v5, {W}, s39 offen {ST}\ns_mov_b64 exec, -1")
    tstamp(7)
    A("K_GB:")
    gstore(37, ST)
    A("s_cmp_lg_u32 s36, 0\ns_cbranch_scc1 K_END\ns_cmp_lt_u32 s34, 80\ns_cbranch_scc1 K_FIN")
    A("K_END:")
    finish()
    A("K_FIN:")
    srd(12, "out")
    A("s_mov_b32 s70, 0x0504000c\ns_mov_b32 s71, 0x0706010c\ns_mov_b32 s72, 0x0504020c\ns_mov_b32 s73, 0x0706030c")
    A("v_and_b32 v7, 1, v0\nv_bfe_u32 v6, v0, 4, 1\nv_lshl_add_u32 v6, v6, 1, v3\nv_lshl_add_u32 v8, v7, 2, v6\nv_lshlrev_b32 v8, 1, v8")
    A("s_lshl_b32 s27, s34, 4")
    A("v_lshrrev_b32 v6, 1, v0\nv_mul_u32_u24 v6, 2560, v6\nv_lshl_add_u32 v6, v7, 4, v6")
    A(f"s_lshl_b32 s4, s34, 5\ns_add_u32 s4, s4, {WS_FA}\ns_add_u32 s5, s4, {32*2560}\ns_add_u32 s6, s4, {64*2560}\ns_add_u32 s7, s4, {96*2560}")
    A(f"v_not_b32 v43, {TAG}\nv_mov_b32 v47, v43\nv_mov_b32 v51, v43\nv_mov_b32 v55, v43")
    A(f"s_mov_b32 s25, {SPIN}")
    if fpre:
        A("s_and_b32 s10, s33, 31\ns_lshl_b32 s10, s10, 1\ns_lshl_b64 exec, 3, s10")
        A(f"F_PRE:\nbuffer_load_dwordx4 v[40:43], v6, {W}, s4 offen {LD}\ns_waitcnt vmcnt(0)")
        A(f"v_cmp_ne_u32 vcc, {TAG}, v43\ns_cbranch_vccz F_PRE2")
        A(f"s_sleep {pre_sleep}\ns_sub_u32 s25, s25, 1\ns_cmp_lg_u32 s25, 0\ns_cbranch_scc1 F_PRE")
        A(f"F_PRE2:\ns_mov_b64 exec, -1\ns_mov_b32 s25, {SPIN}")
    tstamp(7)
    A("F_POLL:")
    for i in range(4):
        A(f"v_cmp_ne_u32 vcc, {TAG}, v{43+4*i}\ns_cbranch_vccz F_SK{i}")
        A(f"s_mov_b64 exec, vcc\nbuffer_load_dwordx4 v[{40+4*i}:{43+4*i}], v6, {W}, s{4+i} offen {LD}\ns_mov_b64 exec, -1")
        A(f"F_SK{i}:")
    A("s_waitcnt vmcnt(0)")
    for i in range(4): tagchk(38, 43+4*i, i == 0)
    A("v_cmp_ne_u32 vcc, 0, v38\ns_cbranch_vccz F_OK")
    if fa_sleep: A(f"s_sleep {fa_sleep}")
    A("s_sub_u32 s25, s25, 1\ns_cmp_lg_u32 s25, 0\ns_cbranch_scc1 F_POLL")
    A("F_OK:")
    tstamp(6)
    for i in range(4):
        d = 40 + 4*i; o = 60 + 4*i
        A(f"v_perm_b32 v{o}, v{d}, v{d+2}, s70\nv_perm_b32 v{o+1}, v{d}, v{d+2}, s71\nv_perm_b32 v{o+2}, v{d+1}, v{d+2}, s72\nv_perm_b32 v{o+3}, v{d+1}, v{d+2}, s73")
    for i in range(4): A(f"v_pk_add_f32 v[{60+2*i}:{61+2*i}], v[{60+2*i}:{61+2*i}], v[{68+2*i}:{69+2*i}]")
    for i in range(2): A(f"v_pk_add_f32 v[{60+2*i}:{61+2*i}], v[{60+2*i}:{61+2*i}], v[{64+2*i}:{65+2*i}]")
    A("s_nop 1\nv_permlane32_swap_b32 v60, v61\nv_permlane32_swap_b32 v62, v63\nv_add_f32 v60, v60, v61\nv_add_f32 v62, v62, v63")
    A("s_nop 1\nv_permlane16_swap_b32 v60, v62\nv_add_f32 v32, v60, v62")
    for k in (8, 4, 2): A(f"s_nop 1\nv_add_f32_dpp v32, v32, v32 row_ror:{k} {DPP}")
    A("v_cvt_pk_bf16_f32 v32, v32, v32")
    A("s_mov_b32 exec_lo, 0x00030003\ns_mov_b32 exec_hi, 0x00030003")
    A("buffer_store_short v32, v8, s[12:15], s27 offen")
    tstamp(8)
    A("s_cmp_lg_u32 s33, 0\ns_cbranch_scc1 F_NOE")
    A(f"s_mov_b64 exec, 1\nv_mov_b32 v5, 0\nv_mov_b32 v6, {TAG}\nbuffer_store_dword v6, v5, {W}, 0 offen")
    if skew:
        A(f"s_mov_b64 exec, -1\nv_lshlrev_b32 v5, 2, v0\ns_mov_b32 s10, {WS_DBG+0x30000}\nbuffer_load_dword v6, v5, {W}, s10 offen sc1\ns_waitcnt vmcnt(0)")
        A("v_subrev_u32 v6, s80, v6\ns_nop 1\nv_readlane_b32 s10, v6, 0\ns_mov_b32 s11, s10")
        for l in range(1, 8): A(f"v_readlane_b32 s12, v6, {l}\ns_nop 0\ns_max_i32 s10, s10, s12\ns_min_i32 s11, s11, s12")
        A("s_sub_u32 s10, s10, s11\ns_add_u32 s82, s80, s10")
    if amp is not None:
        A(f"s_memrealtime s[76:77]\ns_waitcnt lgkmcnt(0)\ns_sub_u32 s78, s{80+2*amp}, s80\ns_lshl_b32 s78, s78, 3\ns_min_u32 s78, s78, 100000")
        A("AMPL:\ns_memrealtime s[74:75]\ns_waitcnt lgkmcnt(0)\ns_sub_u32 s79, s74, s76\ns_cmp_lt_u32 s79, s78\ns_cbranch_scc1 AMPL")
    A("F_NOE:\ns_mov_b64 exec, -1")
    finish()
    A("SIDE:")
    A("v_lshlrev_b32 v62, 4, v0")
    A(f"s_lshl_b32 s9, {WV}, 12\ns_add_u32 s9, s9, {WS_QA}\ns_add_u32 s10, s9, 16384\ns_add_u32 s11, s9, 32768")
    A("v_and_b32 v2, 31, v0\nv_lshrrev_b32 v3, 5, v0\nv_and_b32 v5, 7, v0\nv_xor_b32 v4, v3, v5\nv_lshlrev_b32 v4, 4, v4\nv_lshl_add_u32 v4, v2, 10, v4")
    A(f"s_lshl_b32 s8, {WV}, 7\ns_add_u32 s8, s8, {QL}\nv_add_u32 v4, s8, v4")
    for q_ in range(1, 4): A(f"v_xor_b32 v{4+q_}, {q_ << 5}, v4")
    A("v_bfe_u32 v8, v0, 2, 3\nv_bfe_u32 v9, v0, 1, 1\nv_lshlrev_b32 v10, 1, v8\nv_xor_b32 v9, v9, v10\nv_lshlrev_b32 v9, 4, v9")
    A("v_lshl_add_u32 v8, v3, 4, v8\nv_lshl_add_u32 v9, v8, 10, v9\nv_and_b32 v10, 1, v0\nv_lshl_add_u32 v9, v10, 3, v9")
    A(f"s_lshl_b32 s12, {WV}, 8\nv_add_u32 v24, s12, v9\nv_add_u32 v25, 0x10000, v24")
    A("v_bfe_u32 v2, v0, 3, 1\nv_bfe_u32 v8, v0, 2, 1\nv_lshl_add_u32 v2, v8, 1, v2\nv_lshrrev_b32 v8, 4, v0\nv_lshl_add_u32 v2, v8, 2, v2\nv_bfe_u32 v8, v0, 1, 1\nv_lshl_add_u32 v2, v8, 4, v2")
    A("v_cmp_ne_u32 s[38:39], 0, v8")
    A(f"v_and_b32 v8, 15, v0\nv_add_u32 v38, {TAG}, v8\ns_mov_b32 s12, 0x9e3779b1\nv_mul_lo_u32 v38, v38, s12")
    A(f"v_lshlrev_b32 v35, 4, v2\nv_add_u32 v36, {QL+8192}, v35\nv_lshlrev_b32 v9, 5, v2\nv_add_u32 v37, {QL+9216}, v9")
    A(f"v_bfe_u32 v9, v0, 4, 1\nv_lshl_add_u32 v9, v9, 5, v8\nv_lshl_add_u32 v9, v3, 6, v9\nv_lshlrev_b32 v9, 4, v9\nv_add_u32 v33, {QL}, v9")
    A("v_lshrrev_b32 v9, 4, v0\nv_lshlrev_b32 v9, 19, v9\nv_lshl_add_u32 v34, v8, 4, v9")
    A(f"s_lshl_b32 s13, {WV}, 15\ns_lshl_b32 s12, s33, 8\ns_add_u32 s13, s13, s12\ns_add_u32 s13, s13, {WS_OP}")
    if st_mode == 1: A(f"s_lshl_b32 s14, {WV}, 9\ns_lshl_b32 s12, s33, 11\ns_add_u32 s14, s14, s12\ns_add_u32 s14, s14, {WS_ST}")
    elif st_mode == 2: A(f"v_and_b32 v35, 7, v2\nv_lshlrev_b32 v35, 8, v35\nv_lshrrev_b32 v9, 3, v2\nv_lshl_add_u32 v35, v9, 4, v35\ns_lshl_b32 s14, {WV}, 6\ns_lshl_b32 s12, s33, 11\ns_add_u32 s14, s14, s12\ns_add_u32 s14, s14, {WS_ST}")
    else: A(f"v_lshlrev_b32 v35, 13, v2\ns_lshl_b32 s14, {WV}, 11\ns_lshl_b32 s12, s33, 4\ns_add_u32 s14, s14, s12\ns_add_u32 s14, s14, {WS_ST}")
    A(f"v_lshlrev_b32 v39, 2, v0\ns_lshl_b32 s15, s33, 7\ns_add_u32 s15, s15, {WS_HB}\nv_cmp_lt_u32 vcc, 0, v0\ns_cmp_lg_u32 {WV}, {lwave}\ns_cselect_b64 vcc, -1, vcc\nv_cndmask_b32 v39, v39, 2.0, vcc")
    A("s_waitcnt vmcnt(0)\ns_barrier")
    tstamp(2)
    A(f"s_mov_b32 s25, {SPIN}")
    def qld(q_):
        for ty in range(3):
            r = 200 + 12*q_ + 4*ty
            A(f"buffer_load_dwordx4 v[{r}:{r+3}], v62, {W}, s{9+ty} offen offset:{q_*1024} {LD}")
    def qwr(q_, base):
        for ty in range(3):
            r = 200 + 12*q_ + 4*ty
            if base is not None: A(f"s_waitcnt vmcnt({base - ty})")
            tagchk(28+q_, r+3, ty == 0)
            if ty < 2: A(f"ds_write_b96 v{4+q_}, v[{r}:{r+2}] offset:{ty*512}")
            else: A(f"ds_write2_b32 v{4+q_}, v{r}, v{r+1} offset0:3 offset1:131")
    for q_ in range(4): qld(q_)
    for q_ in range(4): qwr(q_, 11 - 3*q_)
    A("S_QRT:")
    A("v_or3_b32 v27, v28, v29, v30\nv_or_b32 v27, v27, v31\nv_cmp_ne_u32 vcc, 0, v27\ns_cbranch_vccz S_QOK")
    A("s_waitcnt lgkmcnt(0)")
    for q_ in range(4):
        A(f"v_cmp_ne_u32 vcc, 0, v{28+q_}\ns_cbranch_vccz S_QA{q_}")
        qld(q_)
        A(f"S_QA{q_}:")
    A("s_waitcnt vmcnt(0)")
    for q_ in range(4):
        A(f"v_cmp_ne_u32 vcc, 0, v{28+q_}\ns_cbranch_vccz S_QB{q_}")
        qwr(q_, None)
        A(f"S_QB{q_}:")
    A("s_sub_u32 s25, s25, 1\ns_cmp_lg_u32 s25, 0\ns_cbranch_scc1 S_QRT")
    A("S_QOK:\ns_waitcnt lgkmcnt(0)")
    count(1, SPIN+1)
    stamp(3)
    A("s_barrier")
    for f in range(32):
        if f == 22: A("s_barrier")
        hi, T, lo = f >> 4, (f >> 1) & 7, f & 1
        if lo == 0: A(f"v_xor_b32 v26, {(2*T) << 4}, v{24+hi}\nv_xor_b32 v27, {((2*T) ^ 1) << 4}, v{24+hi}")
        for sec in range(2):
            d = 128 + 4*f + 2*sec
            A(f"ds_read_b64_tr_b16 v[{d}:{d+1}], v{26+sec} offset:{sec*8192 + lo*32768}")
    stamp(4)
    A("s_barrier")
    A(f"ds_read_b128 v[56:59], v36\nv_mov_b32 v63, {TAG}")
    A("s_waitcnt lgkmcnt(0)")
    A("v_max3_f32 v56, v56, v57, v58\nv_max_f32 v60, v56, v59")
    if prio: A("s_setprio 2")
    A("s_barrier")
    stamp(5)
    for hh in range(2):
        for ks in range(4):
            r = 64 + 16*hh + 4*ks
            A(f"ds_read_b128 v[{r}:{r+3}], v33 offset:{ks*2048 + hh*256}")
    def oreg(hh, T):
        if hh == 0: return 96 + 4*T
        return 8 + 4*T if T < 4 else 64 + 4*(T-4)
    def store_ops(hh):
        ops = []
        for r in range(4):
            d = 48 + 4*(r & 1) if hh == 0 else 96 + 4*r
            for k in range(4): ops.append(f"v_cvt_pk_bf16_f32 v{d+k}, v{oreg(hh,2*k)+r}, v{oreg(hh,2*k+1)+r}")
            for k in range(4): ops.append(f"v_xor_b32 v{d+k}, v38, v{d+k}")
            ops.append(f"s_add_u32 s11, s13, {(16*hh + r)*131072}\nbuffer_store_dwordx4 v[{d}:{d+3}], v34, {W}, s11 offen {ST}")
            if hh == 0:
                ops.append(f"v_add3_u32 v{4+r}, v{d}, v{d+1}, v{d+2}"); ops.append(f"v_add_u32 v{4+r}, v{4+r}, v{d+3}")
        return ops
    for hh in range(2):
        ops = store_ops(0) if hh == 1 else []
        n_ = 0
        for T in range(8):
            for ks in range(4):
                if hh == 0 and T == 0: A(f"s_waitcnt lgkmcnt({7-ks})")
                if hh == 1 and T == 0 and ks == 0:
                    A("s_waitcnt lgkmcnt(0)")
                    if not b6late: A("s_barrier\nds_read_b128 v[40:43], v37\nds_read_b128 v[44:47], v37 offset:16")
                f = ((ks >> 1) << 4) | (T << 1) | (ks & 1)
                o = oreg(hh, T); a = 64 + 16*hh + 4*ks
                A(f"v_mfma_f32_16x16x32_bf16 v[{o}:{o+3}], v[{a}:{a+3}], v[{128+4*f}:{131+4*f}], {'0' if ks==0 else 'v[%d:%d]'%(o,o+3)}")
                n_ += 1
                if 32*hh + n_ - 1 == hint_at: A(f"buffer_store_dword v63, v39, {W}, s15 offen")
                if n_ >= 6 and ops:
                    A(ops.pop(0))
                    if ops: A(ops.pop(0))
        for o_ in ops: A(o_)
    stamp(6)
    A("s_nop 4")
    for o_ in store_ops(1): A(o_)
    stamp(7)
    if b6late: A("s_barrier\nds_read_b128 v[40:43], v37\nds_read_b128 v[44:47], v37 offset:16")
    for r in range(4): A(f"v_add3_u32 v{28+r}, v{96+4*r}, v{97+4*r}, v{98+4*r}")
    for r in range(4): A(f"v_add_u32 v{28+r}, v{28+r}, v{99+4*r}")
    for b_ in (4, 6, 28, 30): A(f"v_add_u32_dpp v{b_}, v{b_}, v{b_} row_ror:8 row_mask:0xf bank_mask:0x3")
    for b_ in (4, 6, 28, 30): A(f"v_add_u32_dpp v{b_}, v{b_+1}, v{b_+1} row_ror:8 row_mask:0xf bank_mask:0xc")
    A("v_add_u32_dpp v4, v4, v4 row_half_mirror row_mask:0xf bank_mask:0x5\nv_add_u32_dpp v28, v28, v28 row_half_mirror row_mask:0xf bank_mask:0x5")
    A("v_add_u32_dpp v4, v6, v6 row_half_mirror row_mask:0xf bank_mask:0xa\nv_add_u32_dpp v28, v30, v30 row_half_mirror row_mask:0xf bank_mask:0xa\ns_nop 0")
    A(f"v_add_u32_dpp v4, v4, v4 quad_perm:[2,3,0,1] {DPP}\nv_add_u32_dpp v28, v28, v28 quad_perm:[2,3,0,1] {DPP}")
    A("v_cndmask_b32 v4, v4, v28, s[38:39]\ns_waitcnt lgkmcnt(0)")
    A("v_pk_add_f32 v[40:41], v[40:41], v[42:43]\nv_pk_add_f32 v[44:45], v[44:45], v[46:47]\nv_pk_add_f32 v[40:41], v[40:41], v[44:45]\nv_add_f32 v61, v40, v41")
    A(f"v_add_u32_dpp v62, v4, v4 quad_perm:[1,0,3,2] {DPP}")
    A("s_mov_b32 exec_lo, 0x55555555\ns_mov_b32 exec_hi, 0x55555555")
    A(f"buffer_store_dwordx4 v[60:63], v35, {W}, s14 offen {ST}")
    A("s_mov_b64 exec, -1")
    if hint_at == 65: A("s_waitcnt vmcnt(0)")
    if hint_at >= 64: A(f"buffer_store_dword v63, v39, {W}, s15 offen")
    stamp(8)
    finish()
    if stamps:
        A("DUMP:\ns_waitcnt vmcnt(0)")
        stamp(9)
        A("s_waitcnt lgkmcnt(0)")
        for i in range(10): A(f"v_mov_b32 v{8+i}, s{80+2*i}")
        A(f"s_lshl_b32 s8, s2, 3\ns_add_u32 s8, s8, {WV}\ns_lshl_b32 s8, s8, 6\ns_add_u32 s8, s8, {WS_DBG}")
        A("v_mov_b32 v5, 0\ns_mov_b64 exec, 1")
        A(f"buffer_store_dwordx4 v[8:11], v5, {W}, s8 offen\nbuffer_store_dwordx4 v[12:15], v5, {W}, s8 offen offset:16\nbuffer_store_dwordx2 v[16:17], v5, {W}, s8 offen offset:32")
    A("END:\ns_endpgm")
    hdr = open("gated_mix__compressed_kv_cla__geglu_ffn__decode.s.ref").read().split("; Override")[0]
    return hdr + "; @launch grid=(256,1,1) block=(512,1,1) lds=163840\n" + '.amdgcn_target "amdgcn-amd-amdhsa--gfx950"\n.text\n' + A.text() \
        + ".fill 2048, 4, 0xbf810000\n" + '.section .rodata,"a"\n.p2align 6\n' + kdesc(KN, 256)

if __name__ == "__main__":
    kw = eval("dict(%s)" % (sys.argv[2] if len(sys.argv) > 2 else ""))
    open(sys.argv[1], "w").write(gen(**kw))
```

```python
import sys, math
from asmlib import *
KN = "gated_mix__compressed_kv_cla__geglu_ffn__decode_kernel"
WS_CX = 0x1000; WS_HB = 0x638000; WS_HH = 0x30000; WS_QA = 0x40000; WS_ST = 0x50000; WS_FA = 0x90000; WS_GP = 0x140000; WS_QP = 0x180000; WS_OP = 0x200000
L2P = 0x600000
WS_SIZE = 0x800000; WS_DBG = 0x800000
SZ = dict(x=1280, ckv=16384*1024, wq=640*8192, wuk=512*8192, wuv=512*8192, wo=32*128*1280, wg=640*3456, wu=640*3456, wd=1728*1280, gw=1280, out=1280)
P = dict(x=40, ckv=42, wq=44, wuk=46, wuv=48, wo=50, wg=54, wu=56, wd=58, gw=60, out=62)
QSCALE = (128 ** -0.5) * math.log2(math.e)
QL = 131072
SPIN = 200000
WV = "s3"; TAG = "s24"; W = "s[16:19]"
L_PART = 32768; L_Q = 35072; L_QA = 35328; L_M = 35584; L_HH = 35712; L_G = 35776
DPP = "row_mask:0xf bank_mask:0xf"

def gen(NT="nt", stamps=False, cyc=False, dbgf=False, amp=None, att_win=7, att_w0=3, trig=32, tail_n0=2, prefetch=True, uk_early=8,
        poll_sleep=2, pre_sleep=4, fa_sleep=0, thr=48, prio=True, fpre=True, qsleep=0, wo_early=6, kprep=1, st_gap=4, nb3=24, gapcap=2, kmap=1, pf_wo=0, pf_wd=0, NTO=None, wo_bar=True, wo_pre=0, st_mode=2, lmiss=2, hint_at=64, skipA=True, lwave=0, early_uv=0, epf=64, b0=8, uk0=0, ffn_pre=4, ffn_gap=3, b6late=False, lo_win=6, skew=False, g_late=True):
    LD = "sc1"; ST = "sc1"
    if NTO is None: NTO = NT
    A = Asm()
    def stamp(i):
        if stamps: A(f"{'s_memtime' if cyc else 's_memrealtime'} s[{80+2*i}:{81+2*i}]")
    tstamp = (lambda i: None) if dbgf else stamp
    fstamp = stamp if dbgf else (lambda i: None)
    def count(i, base):
        if stamps: A(f"s_sub_u32 s{80+2*i}, {base}, s25\ns_add_u32 s{80+2*i}, s{80+2*i}, s80")
    def clear_stamps(n=10):
        if stamps:
            for i in range(1, n): A(f"s_mov_b64 s[{80+2*i}:{81+2*i}], 0")
    def finish(): A("s_branch DUMP" if stamps else "s_endpgm")
    def srd(d, name):
        A(f"s_mov_b32 s{d}, s{P[name]}\ns_mov_b32 s{d+1}, s{P[name]+1}\ns_mov_b32 s{d+2}, {SZ[name]}\ns_mov_b32 s{d+3}, 0x20000")
    def tagchk(acc, v, first):
        if first: A(f"v_xor_b32 v{acc}, {TAG}, v{v}")
        else: A(f"v_bitop3_b32 v{acc}, v{v}, {TAG}, v{acc} bitop3:0xbe")
    def selectors(ve):
        A(f"v_and_b32 v25, 1, v{ve}\nv_cmp_eq_u32 vcc, 1, v25")
        A("v_mov_b32 v26, 0x0c0c0100\nv_mov_b32 v25, 0x01000c0c\nv_cndmask_b32 v26, v26, v25, vcc")
        A("v_mov_b32 v27, 0x0c0c0302\nv_mov_b32 v25, 0x03020c0c\nv_cndmask_b32 v27, v27, v25, vcc")
        A(f"v_bfe_u32 v25, v{ve}, 2, 1")
        for k in range(2):
            A(f"v_cmp_eq_u32 vcc, {k}, v25")
            A(f"v_mov_b32 v{20+k}, 0x0c0c0c0c\nv_mov_b32 v{22+k}, 0x0c0c0c0c")
            A(f"v_cndmask_b32 v{20+k}, v{20+k}, v26, vcc\nv_cndmask_b32 v{22+k}, v{22+k}, v27, vcc")
        A(f"v_and_b32 v25, 2, v{ve}\nv_cmp_eq_u32 vcc, 2, v25")
        A("v_mov_b32 v24, 0x4444\nv_mov_b32 v25, 0xeeee\nv_cndmask_b32 v24, v24, v25, vcc")
    def sel4(dst, src):
        for k in range(4): A(f"v_perm_b32 v{dst+k}, v{src}, v{src}, v{20+k}")
    def smf(d, a, b): A(f"v_smfmac_f32_16x16x64_bf16 v[{d}:{d+3}], v[{a}:{a+3}], v[{b}:{b+7}], v24")
    def rnd(v): A(f"v_cvt_pk_bf16_f32 v{v}, v{v}, v{v}\nv_lshlrev_b32 v{v}, 16, v{v}")
    def common_loads(): A("s_load_dwordx16 s[40:55], s[0:1], 0\ns_load_dwordx8 s[56:63], s[0:1], 64")
    def common_setup(): A(f"s_mov_b32 s18, {(WS_DBG + 0x40000) if stamps else WS_SIZE}\ns_mov_b32 s19, 0x20000\ns_and_b32 s33, s2, 127")
    def unit_idx(d, t):
        A(f"s_and_b32 s{d}, s33, 7\ns_lshr_b32 s{t}, s33, 5\ns_lshl3_add_u32 s{d}, s{t}, s{d}\ns_bfe_u32 s{t}, s33, 0x20003\ns_lshl2_add_u32 s{d}, s{d}, s{t}")
    def dual_poll(name, sbase, stmp, loads, tags, acc, bstore, nfast=12):
        A(f"s_mov_b32 s25, {SPIN}\ns_add_u32 s{stmp}, s{sbase}, {L2P}")
        A(f"{name}:")
        loads()
        A(f"v_cmp_ne_u32 vcc, 0, v{acc}\ns_cbranch_vccz {name}_OK")
        A(f"s_sub_u32 s25, s25, 1\ns_cmp_gt_u32 s25, {SPIN-nfast}\ns_cbranch_scc1 {name}")
        if bstore:
            A(f"s_cmp_lg_u32 s25, {SPIN-nfast}\ns_cbranch_scc1 {name}_NB")
            bstore()
            A(f"{name}_NB:")
        A(f"s_and_b32 s{stmp}, s25, 1\ns_cselect_b32 s{stmp}, 0, {L2P}\ns_add_u32 s{stmp}, s{stmp}, s{sbase}")
        A(f"s_cmp_lg_u32 s25, 0\ns_cbranch_scc1 {name}")
        A(f"{name}_OK:")

    A(f".globl {KN}\n.p2align 8\n.type {KN},@function\n{KN}:")
    stamp(0)
    A("s_load_dwordx8 s[64:71], s[0:1], 0")
    A("s_load_dwordx2 s[16:17], s[0:1], 104")
    A("v_cmp_gt_u32 vcc, 256, v0\ns_lshr_b32 s31, s2, 5\ns_and_b32 s30, s2, 31\ns_lshl_b32 s8, s30, 8")
    A("v_lshlrev_b32 v1, 9, v0\nv_and_b32 v1, 0xffffe000, v1\nv_and_b32 v3, 15, v0\nv_lshl_or_b32 v1, v3, 4, v1")
    A("s_cbranch_vccnz LO")
    if epf: A(f"s_getpc_b64 s[26:27]\nv_and_b32 v254, {epf-1}, v0\nv_lshlrev_b32 v254, 7, v254\nglobal_load_dword v255, v254, s[26:27] offset:256")
    A("s_cmp_ge_u32 s31, 4\ns_cbranch_scc1 ATT\ns_branch HI\nLO:")
    A(f"s_mul_i32 s9, s31, {80*8192}\ns_add_u32 s9, s9, s8\nv_add_u32 v4, s9, v1\ns_mov_b32 s10, 0x20000")
    A("s_cmp_ge_u32 s31, 8\ns_cbranch_scc1 END")
    A("s_waitcnt lgkmcnt(0)")
    for i in range(5):
        A(f"global_load_dwordx4 v[{120+4*i}:{123+4*i}], v4, s[68:69] {NT}")
        if i < 4: A("v_add_u32 v4, s10, v4")
    A("v_lshrrev_b32 v5, 6, v0\nv_bfe_u32 v7, v0, 4, 1\nv_lshlrev_b32 v7, 2, v7\nv_lshl_add_u32 v7, v5, 3, v7\ns_mul_i32 s11, s31, 160\nv_add_u32 v7, s11, v7")
    A("v_bfe_u32 v6, v0, 5, 1\nv_lshl_add_u32 v6, v6, 5, v7")
    A("global_load_dword v8, v6, s[64:65]\nglobal_load_dword v9, v6, s[64:65] offset:64\nglobal_load_dword v10, v7, s[64:65] offset:128")
    A(f"s_load_dword {TAG}, s[16:17], 0")
    A(f"s_lshl_b32 s9, s30, 13\ns_add_u32 s9, s9, {WS_QP}\ns_lshl_b32 s11, s31, 10\ns_add_u32 s11, s11, s9\ns_add_u32 s14, s11, {L2P}")
    A(f"v_lshrrev_b32 v6, 5, v0\nv_lshlrev_b32 v6, 7, v6\nv_add_u32 v6, s14, v6\nglobal_load_dword v31, v6, s[16:17] {LD}")
    common_loads()
    A(f"v_readfirstlane_b32 {WV}, v5")
    A("v_and_b32 v0, 63, v0\nv_lshrrev_b32 v2, 4, v0")
    clear_stamps()
    stamp(1)
    common_setup()
    if prefetch:
        A(f"s_getpc_b64 s[26:27]\nPFB:\ns_and_b32 s28, s2, 0xf8\ns_lshl_b32 s28, s28, 6\ns_sub_u32 s28, s28, PFB-{KN}\ns_lshl_b32 s29, {WV}, 7\ns_add_u32 s28, s28, s29\ns_ashr_i32 s29, s28, 31")
        A("s_add_u32 s26, s26, s28\ns_addc_u32 s27, s27, s29\ns_load_dword s28, s[26:27], 0\ns_load_dword s29, s[26:27], 64")
    selectors(3)
    for i in range(4): A(f"v_mov_b32 v{140+i}, 0\nv_mov_b32 v{32+i}, 0")
    A(f"v_lshlrev_b32 v11, 5, v3\nv_lshl_add_u32 v11, v2, 4, v11\ns_lshl_b32 s12, {WV}, 9\ns_add_u32 s12, s12, {QL}\nv_add_u32 v11, s12, v11")
    A(f"v_lshlrev_b32 v5, 4, v0\nv_lshlrev_b32 v17, 2, v0\nv_lshlrev_b32 v18, 3, v0\nv_add_u32 v18, {QL}, v18")
    if b0 is not None:
        A(f"s_waitcnt vmcnt({b0})\ns_barrier")
        fstamp(5)
    A(f"s_waitcnt lgkmcnt(0)\ns_add_u32 {TAG}, {TAG}, 1")
    A(f"v_mov_b32 v37, {TAG}\nv_mov_b32 v39, {TAG}")
    A("s_waitcnt vmcnt(0)")
    fstamp(6)
    for U in range(3): sel4(40+4*U, 8+U)
    A("s_nop 0")
    for U in range(3): smf(32, 40+4*U, 120+8*U)
    A("s_nop 6")
    A("s_mov_b32 exec_hi, 0\nds_write_b128 v11, v[32:35]\ns_mov_b64 exec, -1")
    A("s_waitcnt lgkmcnt(0)\ns_barrier")
    A(f"s_cmp_lg_u32 {WV}, 0\ns_cbranch_scc1 Q_DONE")
    for w in range(4): A(f"ds_read_b64 v[{60+2*w}:{61+2*w}], v18 offset:{512*w}")
    A("s_waitcnt lgkmcnt(2)\nv_pk_add_f32 v[60:61], v[60:61], v[62:63]")
    A("s_waitcnt lgkmcnt(0)\nv_pk_add_f32 v[64:65], v[64:65], v[66:67]")
    A("v_add_f32 v36, v60, v64\nv_add_f32 v38, v61, v65")
    A(f"buffer_store_dwordx4 v[36:39], v5, {W}, s14 offen")
    A(f"buffer_store_dwordx4 v[36:39], v5, {W}, s11 offen {ST}")
    fstamp(2)
    A("Q_DONE:")
    A("s_cmp_ge_u32 s31, 4\ns_cbranch_scc1 SIDE")
    A(f"s_cmp_lg_u32 {WV}, 1\ns_cbranch_scc1 T_NOG")
    A("v_lshrrev_b32 v12, 3, v0\nv_and_b32 v13, 7, v0\nv_lshlrev_b32 v14, 5, v13")
    A("v_cmp_eq_u32 vcc, 2, v12\nv_lshlrev_b32 v15, 4, v12\ns_nop 0")
    A("v_cndmask_b32 v15, v15, 12, vcc\nv_add_u32 v15, v15, v14\nv_cndmask_b32 v16, 4, 16, vcc\nv_add_u32 v16, v16, v15")
    A("v_lshlrev_b32 v12, 14, v12\nv_lshl_add_u32 v12, v13, 4, v12")
    A(f"s_lshl_b32 s10, s30, 9\ns_lshl_b32 s12, s31, 7\ns_add_u32 s10, s10, s12\ns_add_u32 s10, s10, {WS_QA}")
    A(f"v_mov_b32 v55, {TAG}")
    if qsleep: A(f"s_sleep {qsleep}")
    def qloads():
        A("s_add_u32 s13, s12, 4096")
        for e in range(8):
            A(f"buffer_load_dwordx4 v[{60+4*e}:{63+4*e}], v5, {W}, s{12+(e>>2)} offen offset:{(e&3)*1024} {LD}")
        for e in range(8):
            A(f"s_waitcnt vmcnt({7-e})")
            tagchk(31, 61+4*e, e == 0); tagchk(31, 63+4*e, False)
            if e & 1: A(f"v_add_f32 v{56+4*e}, v{56+4*e}, v{60+4*e}\nv_add_f32 v{58+4*e}, v{58+4*e}, v{62+4*e}")
    dual_poll("T_QP", 9, 12, qloads, None, 31, None, 6)
    fstamp(3)
    if dbgf: count(8, SPIN+1)
    A("v_add_f32 v60, v60, v68\nv_add_f32 v62, v62, v70\nv_add_f32 v76, v76, v84\nv_add_f32 v78, v78, v86")
    A("v_add_f32 v60, v60, v76\nv_add_f32 v62, v62, v78")
    A("v_cvt_pk_bf16_f32 v60, v60, v62")
    A(f"ds_write_b32 v17, v60 offset:{L_Q}")
    A("s_waitcnt lgkmcnt(0)\ns_barrier\ns_barrier")
    A(f"ds_read_b32 v52, v15 offset:{L_QA}\nds_read_b32 v53, v16 offset:{L_QA}\nds_read_b32 v54, v15 offset:{L_QA+8}")
    A("s_mov_b64 exec, 0xffffff")
    A("s_waitcnt lgkmcnt(0)")
    A(f"buffer_store_dwordx4 v[52:55], v12, {W}, s10 offen {ST}")
    A("s_mov_b64 exec, -1")
    stamp(4)
    if skew:
        A(f"s_waitcnt lgkmcnt(0)\nv_mov_b32 v52, s80\nv_mov_b32 v53, 0\ns_lshl_b32 s10, s33, 2\ns_add_u32 s10, s10, {WS_DBG+0x30000}\ns_mov_b64 exec, 1\nbuffer_store_dword v52, v53, {W}, s10 offen sc1\ns_mov_b64 exec, -1")
    A("s_branch T_LO")
    A("T_NOG:\ns_barrier\ns_barrier")
    A("T_LO:")
    srd(4, "wuv")
    A("v_lshlrev_b32 v4, 1, v2\nv_xor_b32 v4, v4, v3\nv_lshlrev_b32 v4, 4, v4\nv_lshl_add_u32 v4, v2, 17, v4\nv_xor_b32 v5, 0x80, v4")
    A(f"s_lshl_b32 s12, s31, 5\ns_add_u32 s12, s12, {WV}\ns_lshl_b32 s12, s12, 15\ns_lshl_b32 s13, s30, 8\ns_add_u32 s12, s12, s13\ns_lshl_b32 s15, {WV}, 13")
    A(f"s_cmp_eq_u32 {WV}, 0\ns_cbranch_scc1 T_TRK\ns_barrier\ns_barrier\nT_TRK:")
    for t in range(8):
        A(f"s_add_u32 m0, s15, {t*1024}")
        A(f"s_add_u32 s14, s12, {(64*(t&1) + (t>>1))*8192}")
        if lo_win and t >= lo_win: A(f"s_waitcnt vmcnt({lo_win-1})")
        A(f"buffer_load_dwordx4 v{4+((t>>1)&1)}, s[4:7], s14 offen {NT} lds")
        if t < tail_n0:
            l_ = A.label("TRK")
            A(f"s_cmp_lg_u32 {WV}, 0\ns_cbranch_scc1 {l_}\ns_waitcnt vmcnt(0)")
            if t == tail_n0 - 1: A("s_barrier\ns_barrier")
            A(f"{l_}:")
    A("s_branch T_WO")
    A(".p2align 7\nHI:")
    A("s_lshl_b32 s9, s31, 20\ns_add_u32 s9, s9, s8\ns_sub_u32 s9, s9, 0x20000\nv_add_u32 v19, s9, v1\ns_mov_b32 s10, 0x20000")
    A("s_waitcnt lgkmcnt(0)")
    def wuk(t):
        A(f"global_load_dwordx4 v[{200+4*t}:{203+4*t}], v19, s[70:71] {NT}")
        if t < 7: A("v_add_u32 v19, s10, v19")
    for t in range(uk0): wuk(t)
    if b0 is not None: A("s_barrier")
    for t in range(uk0, uk_early): wuk(t)
    A("s_barrier")
    for t in range(uk_early, 8): wuk(t)
    A(f"s_load_dword {TAG}, s[16:17], 0")
    common_loads()
    A("v_lshrrev_b32 v5, 6, v0\nv_and_b32 v0, 63, v0\nv_lshrrev_b32 v2, 4, v0")
    A(f"v_readfirstlane_b32 {WV}, v5")
    clear_stamps()
    common_setup()
    selectors(3)
    A("v_lshrrev_b32 v6, 3, v3\nv_bfe_u32 v7, v3, 2, 1\nv_lshl_add_u32 v6, v7, 1, v6\nv_bfe_u32 v7, v3, 1, 1\nv_lshl_add_u32 v6, v7, 2, v6\nv_lshl_add_u32 v6, v6, 4, v2")
    A(f"s_lshl_b32 s9, {WV}, 2\ns_sub_u32 s9, s9, 16\nv_add_u32 v6, s9, v6\nv_lshlrev_b32 v6, 1, v6")
    A("v_cmp_ne_u32 vcc, 0, v7\nv_lshlrev_b32 v7, 4, v3")
    for t in range(8): A(f"v_mov_b32 v{56+t}, 0")
    A(f"s_waitcnt lgkmcnt(0)\ns_add_u32 {TAG}, {TAG}, 1")
    A("s_waitcnt vmcnt(0)")
    fstamp(7)
    A("s_barrier")
    A(f"ds_read_b128 v[32:35], v7 offset:{L_Q}")
    A("s_waitcnt lgkmcnt(0)")
    for k in range(4):
        for t in range(8): A(f"v_dot2c_f32_bf16 v{56+t}, v{200+4*t+k}, v{32+k}")
    for p_ in range(4): A(f"v_add_f32_dpp v{56+2*p_}, v{56+2*p_}, v{56+2*p_} row_ror:8 row_mask:0xf bank_mask:0x3")
    for p_ in range(4): A(f"v_add_f32_dpp v{56+2*p_}, v{57+2*p_}, v{57+2*p_} row_ror:8 row_mask:0xf bank_mask:0xc")
    A("v_add_f32_dpp v56, v56, v56 row_half_mirror row_mask:0xf bank_mask:0x5\nv_add_f32_dpp v60, v60, v60 row_half_mirror row_mask:0xf bank_mask:0x5")
    A("v_add_f32_dpp v56, v58, v58 row_half_mirror row_mask:0xf bank_mask:0xa\nv_add_f32_dpp v60, v62, v62 row_half_mirror row_mask:0xf bank_mask:0xa\ns_nop 0")
    A(f"v_add_f32_dpp v56, v56, v56 quad_perm:[2,3,0,1] {DPP}\nv_add_f32_dpp v60, v60, v60 quad_perm:[2,3,0,1] {DPP}")
    A("v_cndmask_b32 v56, v56, v60, vcc\ns_nop 1")
    A(f"v_add_f32_dpp v56, v56, v56 quad_perm:[1,0,3,2] {DPP}")
    A(f"v_mul_f32 v56, {hex(f2u(QSCALE))}, v56\nv_cvt_pk_bf16_f32 v56, v56, v56")
    A(f"ds_write_b16 v6, v56 offset:{L_QA}")
    A("s_waitcnt lgkmcnt(0)\ns_barrier")
    srd(20, "x")
    unit_idx(34, 35)
    A("v_lshrrev_b32 v4, 3, v0\nv_and_b32 v8, 7, v0\nv_and_b32 v5, 1, v4\nv_lshrrev_b32 v6, 5, v0\nv_lshl_add_u32 v5, v6, 1, v5")
    A("v_mul_u32_u24 v5, 20, v5\nv_bfe_u32 v6, v4, 1, 1\nv_add_u32 v5, v5, v6\nv_mul_u32_u24 v5, 3456, v5\nv_lshl_add_u32 v9, v8, 4, v5\nv_mul_u32_u24 v10, 40, v4")
    A(f"s_cmp_lt_u32 {WV}, 6")
    A(f"s_cselect_b32 s4, s{P['wg']}, s{P['wu']}\ns_cselect_b32 s5, s{P['wg']+1}, s{P['wu']+1}\ns_cselect_b32 s37, 0, 4096")
    A(f"s_mov_b32 s6, {SZ['wg']}\ns_mov_b32 s7, 0x20000")
    A(f"s_and_b32 s11, s34, 3\ns_lshr_b32 s12, s34, 2\ns_and_b32 s26, {WV}, 1")
    A(f"s_mul_i32 s13, s11, {160*3456}\ns_lshl_b32 s14, s12, 7\ns_add_u32 s13, s13, s14\ns_mul_i32 s14, s26, {10*3456}\ns_add_u32 s13, s13, s14\ns_add_u32 s14, s13, {80*3456}")
    A("s_mul_i32 s15, s11, 320\ns_mul_i32 s27, s26, 20\ns_add_u32 s15, s15, s27")
    A(f"s_lshl_b32 s12, s12, 13\ns_add_u32 s12, s12, {WS_GP}\ns_lshl_b32 s27, s11, 10\ns_lshl_b32 s26, s26, 9\ns_add_u32 s37, s37, s12\ns_add_u32 s37, s37, s27\ns_add_u32 s37, s37, s26\ns_add_u32 s36, s37, {L2P}")
    A("s_lshl_b32 s11, s11, 7\ns_add_u32 s38, s12, s11")
    A("v_and_b32 v11, 1, v2\nv_lshrrev_b32 v12, 1, v2\nv_lshl_add_u32 v11, v11, 1, v12\nv_lshl_add_u32 v11, v8, 2, v11\nv_lshlrev_b32 v11, 4, v11")
    A("v_lshlrev_b32 v12, 10, v4\nv_lshl_add_u32 v12, v8, 4, v12\nv_lshlrev_b32 v13, 7, v2\nv_lshlrev_b32 v14, 2, v8")
    A(f"v_mov_b32 v32, 0\nv_mov_b32 v33, 0\nv_mov_b32 v34, 0\nv_mov_b32 v35, 0\nv_mov_b32 v37, {TAG}\nv_mov_b32 v39, {TAG}")
    A(f"s_lshl_b32 s28, s33, 7\ns_add_u32 s28, s28, {WS_HH}\ns_add_u32 s29, s28, {L2P}\nbuffer_load_dword v31, off, {W}, s29 {LD}")
    A("s_barrier")
    A("s_cmp_lt_u32 s34, 108\ns_cbranch_scc1 T_FFN")
    A("s_barrier\ns_branch T_G")
    A("T_FFN:")
    A(f"buffer_load_dword v31, v13, {W}, s36 offen {LD}")
    A("buffer_load_dwordx4 v[160:163], v10, s[20:23], s15 offen\nbuffer_load_dword v164, v10, s[20:23], s15 offen offset:16")
    for T in range(5):
        for hf in range(2):
            r = 120 + 8*T + 4*hf
            A(f"buffer_load_dwordx4 v[{r}:{r+3}], v9, s[4:7], s{13+hf} offen {NT}")
            if T < 4: A(f"s_add_u32 s{13+hf}, s{13+hf}, {2*3456}")
    A("s_barrier")
    A("s_waitcnt vmcnt(10)")
    for T in range(5): sel4(40+4*T, 160+T)
    for T in range(5):
        A(f"s_waitcnt vmcnt({8-2*T})")
        smf(32, 40+4*T, 120+8*T)
    A("s_nop 7")
    A("v_permlane32_swap_b32 v32, v34\nv_permlane32_swap_b32 v33, v35\ns_nop 1")
    A(f"v_add_f32_dpp v36, v34, v32 row_ror:8 {DPP}\nv_add_f32_dpp v38, v35, v33 row_ror:8 {DPP}")
    def gstore(sreg, fl): A(f"s_mov_b32 exec_lo, 0x00ff00ff\ns_mov_b32 exec_hi, 0x00ff00ff\nbuffer_store_dwordx4 v[36:39], v11, {W}, s{sreg} offen {fl}\ns_mov_b64 exec, -1")
    gstore(36, "")
    tstamp(3)
    A(f"s_cmp_lg_u32 {WV}, 7\ns_cbranch_scc1 T_GB")
    def gloads():
        A(f"buffer_load_dwordx4 v[40:43], v12, {W}, s13 offen {LD}\nbuffer_load_dwordx4 v[44:47], v12, {W}, s13 offen offset:512 {LD}\ns_waitcnt vmcnt(0)")
        tagchk(31, 41, True); tagchk(31, 43, False); tagchk(31, 45, False); tagchk(31, 47, False)
    dual_poll("T_GP", 38, 13, gloads, None, 31, lambda: gstore(37, ST), 6)
    A("v_add_f32 v40, v40, v44\nv_add_f32 v42, v42, v46\ns_nop 1")
    A(f"v_add_f32_dpp v40, v40, v40 row_ror:8 {DPP}\nv_add_f32_dpp v42, v42, v42 row_ror:8 {DPP}")
    A("v_mov_b32 v41, v40\nv_mov_b32 v43, v42\ns_nop 1\nv_permlane16_swap_b32 v40, v41\nv_permlane16_swap_b32 v42, v43")
    A("v_add_f32 v40, v40, v41\nv_add_f32 v42, v42, v43")
    A("v_mov_b32 v41, v40\nv_mov_b32 v43, v42\ns_nop 1\nv_permlane32_swap_b32 v40, v41\nv_permlane32_swap_b32 v42, v43")
    for v in (40, 41, 42, 43): rnd(v)
    k1 = -2.0 * math.sqrt(2.0 / math.pi) * math.log2(math.e)
    for g in (40, 42):
        A(f"v_mul_f32 v44, v{g}, v{g}\nv_mul_f32 v44, {hex(f2u(0.044715))}, v44\nv_add_f32 v44, 1.0, v44\nv_mul_f32 v44, v44, v{g}\nv_mul_f32 v44, {hex(f2u(k1))}, v44")
        A(f"v_exp_f32 v44, v44\ns_nop 0\nv_add_f32 v44, 1.0, v44\nv_rcp_f32 v44, v44\ns_nop 0\nv_mul_f32 v{g}, v{g}, v44")
        rnd(g)
        A(f"v_mul_f32 v{g}, v{g}, v{g+1}")
    A(f"v_cvt_pk_bf16_f32 v48, v40, v42\nv_mov_b32 v49, {TAG}\nv_mov_b32 v51, {TAG}\nv_lshlrev_b32 v5, 4, v0")
    A(f"v_mov_b32_dpp v50, v48 row_ror:4 {DPP}")
    A(f"s_mov_b64 exec, 15\nbuffer_store_dwordx4 v[48:51], v5, {W}, s29 offen\nbuffer_store_dwordx4 v[48:51], v5, {W}, s28 offen {ST}\ns_mov_b64 exec, -1")
    tstamp(4)
    A("T_GB:")
    gstore(37, ST)
    A(f"T_G:\ns_cmp_lg_u32 {WV}, 6\ns_cbranch_scc1 T_WO")
    srd(8, "gw"); srd(20, "x")
    A("v_mul_u32_u24 v5, 20, v0")
    A("buffer_load_dwordx4 v[40:43], v5, s[20:23], 0 offen\nbuffer_load_dword v44, v5, s[20:23], 0 offen offset:16")
    A("buffer_load_dwordx4 v[48:51], v5, s[8:11], 0 offen\nbuffer_load_dword v52, v5, s[8:11], 0 offen offset:16")
    A("v_mov_b32 v30, 0\ns_waitcnt vmcnt(0)")
    for i in range(5):
        A(f"v_lshlrev_b32 v56, 16, v{40+i}\nv_and_b32 v57, 0xffff0000, v{40+i}\nv_lshlrev_b32 v58, 16, v{48+i}\nv_and_b32 v59, 0xffff0000, v{48+i}")
        A("v_pk_mul_f32 v[56:57], v[56:57], v[58:59]\nv_cvt_pk_bf16_f32 v56, v56, v57\nv_lshlrev_b32 v57, 16, v56\nv_and_b32 v56, 0xffff0000, v56")
        A("v_add_f32 v30, v30, v57\nv_add_f32 v30, v30, v56")
    A("v_mov_b32 v31, v30\ns_nop 1\nv_permlane32_swap_b32 v30, v31\nv_add_f32 v30, v30, v31")
    A("v_mov_b32 v31, v30\ns_nop 1\nv_permlane16_swap_b32 v30, v31\nv_add_f32 v30, v30, v31")
    for k in (8, 4, 2, 1): A(f"s_nop 1\nv_add_f32_dpp v30, v30, v30 row_ror:{k} {DPP}")
    rnd(30)
    A(f"v_mul_f32 v30, {hex(f2u(-math.log2(math.e)))}, v30\nv_exp_f32 v30, v30\ns_nop 0\nv_add_f32 v30, 1.0, v30\nv_rcp_f32 v30, v30\ns_nop 0")
    rnd(30)
    A("v_sub_f32 v31, 1.0, v30")
    rnd(31)
    A(f"v_mov_b32 v32, 0\nv_mov_b32 v33, {TAG}\ns_mov_b64 exec, 1")
    A(f"buffer_store_dwordx4 v[30:33], off, {W}, s29 offset:64\nbuffer_store_dwordx4 v[30:33], off, {W}, s28 offset:64 {ST}\ns_mov_b64 exec, -1")
    A("T_WO:")
    unit_idx(34, 35)
    A(f"s_lshl_b32 s39, s30, 2\ns_add_u32 s39, s39, s31")
    A(f"s_lshl_b32 s35, s39, 10\ns_lshl_b32 s14, {WV}, 7\ns_add_u32 s35, s35, s14\ns_add_u32 s35, s35, {WS_CX}\ns_add_u32 s36, s35, {L2P}\nv_mov_b32 v11, 0")
    A(f"buffer_load_dword v31, v11, {W}, s36 offen {LD}")
    if pf_wo:
        srd(8, "wo")
        A(f"v_lshlrev_b32 v9, 7, v0\ns_mul_i32 s12, s39, {32*1280}\ns_lshl_b32 s13, {WV}, 13\ns_add_u32 s12, s12, s13")
        A(f"s_cmp_ge_u32 {WV}, {pf_wo}\ns_cbranch_scc1 T_NPO\nbuffer_load_dword v30, v9, s[8:11], s12 offen\nT_NPO:")
    if pf_wd:
        srd(8, "wd")
        A(f"v_lshlrev_b32 v9, 7, v0\ns_mul_i32 s12, s34, {16*1280}\ns_sub_u32 s13, {WV}, 5\ns_mul_i32 s14, s13, 6912\ns_add_u32 s12, s12, s14")
        A(f"s_cmp_ge_u32 s13, {pf_wd}\ns_cbranch_scc1 T_NPD\ns_mov_b32 exec_hi, 0x3fffff\nbuffer_load_dword v30, v9, s[8:11], s12 offen\ns_mov_b64 exec, -1\nT_NPD:")
    A("v_bfe_u32 v5, v0, 1, 1\nv_lshlrev_b32 v5, 3, v5\nv_lshl_add_u32 v5, v2, 1, v5\nv_and_b32 v6, 1, v0\nv_add_u32 v5, v5, v6")
    if st_mode == 1: A(f"v_lshlrev_b32 v5, 11, v5\ns_lshl_b32 s13, {WV}, 15\ns_lshl_b32 s14, s31, 9\ns_add_u32 s13, s13, s14\ns_lshl_b32 s14, s30, 4\ns_add_u32 s13, s13, s14\ns_add_u32 s13, s13, {WS_ST}")
    elif st_mode == 2:
        A(f"v_lshlrev_b32 v5, 11, v5\ns_lshl_b32 s13, {WV}, 15\ns_lshl_b32 s14, s31, 6\ns_add_u32 s13, s13, s14\ns_and_b32 s14, s30, 7\ns_lshl_b32 s14, s14, 8\ns_add_u32 s13, s13, s14")
        A(f"s_lshr_b32 s14, s30, 3\ns_lshl_b32 s14, s14, 4\ns_add_u32 s13, s13, s14\ns_add_u32 s13, s13, {WS_ST}")
    else: A(f"v_lshlrev_b32 v5, 4, v5\ns_lshl_b32 s13, s39, 3\ns_add_u32 s13, s13, {WV}\ns_lshl_b32 s13, s13, 8\ns_add_u32 s13, s13, {WS_ST}")
    A(f"s_lshl_b32 s12, s39, 3\ns_add_u32 s12, s12, {WV}\ns_lshl_b32 s12, s12, 12\ns_add_u32 s12, s12, {WS_OP}")
    A("v_lshlrev_b32 v10, 4, v0")
    A(f"s_lshl_b32 s14, {WV}, 2\ns_add_u32 s14, s14, {L_M}\nv_mov_b32 v6, s14")
    A(f"v_lshlrev_b32 v7, 4, v3\nv_lshl_add_u32 v7, v2, 3, v7\ns_mul_i32 s14, {WV}, 272\nv_add_u32 v7, s14, v7")
    A("v_and_b32 v8, 7, v0\nv_mul_u32_u24 v8, 272, v8\nv_lshl_add_u32 v8, v2, 4, v8")
    A(f"v_bfe_u32 v12, v0, 2, 2\nv_lshl_add_u32 v12, v2, 3, v12\nv_lshlrev_b32 v12, 8, v12\nv_and_b32 v13, 3, v0\nv_lshl_add_u32 v12, v13, 3, v12\ns_lshl_b32 s14, {WV}, 5\nv_add_u32 v12, s14, v12")
    A("v_bfe_u32 v14, v0, 2, 3\nv_lshlrev_b32 v14, 5, v14\nv_xor_b32 v12, v12, v14")
    A("v_lshlrev_b32 v14, 3, v3")
    A(f"v_add_u32 v16, {TAG}, v3\ns_mov_b32 s14, 0x9e3779b1\nv_mul_lo_u32 v16, v16, s14")
    A("v_lshrrev_b32 v17, 3, v3\nv_lshrrev_b32 v18, 1, v2\nv_lshl_add_u32 v17, v17, 1, v18\nv_lshlrev_b32 v17, 4, v17")
    A("v_bfe_u32 v18, v3, 2, 1\nv_lshl_add_u32 v17, v18, 1, v17\nv_and_b32 v18, 1, v2\nv_add_u32 v17, v17, v18\nv_lshlrev_b32 v17, 2, v17")
    A(f"v_lshlrev_b32 v18, 4, v18\nv_add_u32 v18, {L_M}, v18\nv_xor_b32 v13, 16, v18\nv_lshlrev_b32 v4, 4, v2")
    A(f"v_mov_b32 v65, {TAG}\nv_mov_b32 v67, {TAG}\nv_mov_b32 v71, {TAG}\nv_not_b32 v35, {TAG}")
    A(f"s_cmp_lg_u32 {WV}, 5\ns_cbranch_scc1 T_BW")
    A(f"v_lshlrev_b32 v9, 10, v3\ns_and_b32 s27, s33, 7\ns_lshl_b32 s27, s27, 7\ns_add_u32 s27, s27, {WS_HB}\ns_mov_b32 s25, 80\ns_mov_b64 exec, 0xffff")
    A(f"T_LH:\nbuffer_load_dword v79, v9, {W}, s27 offen {LD}\ns_waitcnt vmcnt(0)")
    A(f"v_cmp_ne_u32 vcc, {TAG}, v79\ns_bcnt1_i32_b64 s14, vcc\ns_cmp_le_u32 s14, {lmiss}\ns_cbranch_scc1 T_LH2")
    A("s_sleep 1\ns_sub_u32 s25, s25, 1\ns_cmp_lg_u32 s25, 0\ns_cbranch_scc1 T_LH")
    A("T_LH2:\ns_mov_b64 exec, -1")
    A("T_BW:")
    A("s_waitcnt vmcnt(0)")
    tstamp(5)
    A("s_barrier")
    A(f"s_mov_b32 s25, {SPIN}")
    if skipA:
        tstamp(6)
        A(f"buffer_load_dwordx4 v[32:35], v5, {W}, s13 offen {LD}")
        for t in range(4): A(f"buffer_load_dwordx4 v[{80+4*t}:{83+4*t}], v10, {W}, s12 offen offset:{t*1024} {LD}")
        for ks in range(4):
            for sec in range(2): A(f"ds_read_b64_tr_b16 v[{100+4*ks+2*sec}:{101+4*ks+2*sec}], v12 offset:{ks*8192 + sec*1024}")
        A("s_branch T_CH")
    else:
        A(f"buffer_load_dwordx4 v[32:35], v5, {W}, s13 offen {LD}")
        A("T_PA:")
        A(f"s_waitcnt vmcnt(0)\nv_cmp_ne_u32 vcc, {TAG}, v35\ns_bcnt1_i32_b64 s14, vcc\ns_cmp_le_u32 s14, {64-thr}\ns_cbranch_scc1 T_PB")
        A(f"s_sleep {poll_sleep}")
        A(f"s_mov_b64 exec, vcc\nbuffer_load_dwordx4 v[32:35], v5, {W}, s13 offen {LD}\ns_mov_b64 exec, -1")
        A("s_sub_u32 s25, s25, 1\ns_cmp_lg_u32 s25, 0\ns_cbranch_scc1 T_PA")
    A("T_PB:")
    A(f"s_mov_b32 s25, {SPIN}")
    A("T_ALL:\ns_mov_b64 s[28:29], -1")
    A("T_RL:")
    A(f"s_cbranch_vccz T_NS\ns_mov_b64 exec, vcc\nbuffer_load_dwordx4 v[32:35], v5, {W}, s13 offen {LD}\ns_mov_b64 exec, -1\nT_NS:")
    for t in range(4):
        A(f"s_and_b32 s14, s{28+(t&1)}, {'0x33333333' if t < 2 else '0xcccccccc'}\ns_cbranch_scc0 T_NL{t}")
        A(f"buffer_load_dwordx4 v[{80+4*t}:{83+4*t}], v10, {W}, s12 offen offset:{t*1024} {LD}\nT_NL{t}:")
    A("s_sub_u32 s25, s25, 1")
    A(f"T_CH:\ns_waitcnt vmcnt(0)\nT_CH2:\nv_cmp_ne_u32 vcc, {TAG}, v35\ns_cbranch_vccz T_VER")
    A("s_mov_b64 s[28:29], vcc\ns_cmp_gt_i32 s25, 0\ns_cbranch_scc1 T_RL")
    A("T_VER:")
    A("ds_bpermute_b32 v30, v17, v34\nv_mov_b32 v76, v32")
    for t in range(4): A(f"v_add3_u32 v{72+t}, v{80+4*t}, v{81+4*t}, v{82+4*t}")
    A(f"v_max_f32_dpp v76, v76, v76 quad_perm:[1,0,3,2] {DPP}")
    for t in range(4): A(f"v_add_u32 v{72+t}, v{72+t}, v{83+4*t}")
    A(f"v_max_f32_dpp v76, v76, v76 quad_perm:[2,3,0,1] {DPP}")
    A("v_add_u32_dpp v72, v72, v72 row_ror:8 row_mask:0xf bank_mask:0x3\nv_mov_b32 v77, v76\nv_add_u32_dpp v74, v74, v74 row_ror:8 row_mask:0xf bank_mask:0x3")
    A("v_add_u32_dpp v72, v73, v73 row_ror:8 row_mask:0xf bank_mask:0xc\nv_permlane16_swap_b32 v76, v77\nv_add_u32_dpp v74, v75, v75 row_ror:8 row_mask:0xf bank_mask:0xc")
    A("v_max_f32 v76, v76, v77\nv_mov_b32 v77, v76")
    A("v_add_u32_dpp v72, v72, v72 row_half_mirror row_mask:0xf bank_mask:0x5\nv_add_u32_dpp v72, v74, v74 row_half_mirror row_mask:0xf bank_mask:0xa")
    A("v_permlane32_swap_b32 v76, v77\nv_max_f32 v76, v76, v77")
    A(f"v_add_u32_dpp v72, v72, v72 quad_perm:[1,0,3,2] {DPP}")
    A("v_sub_f32 v36, v32, v76\nv_exp_f32 v36, v36")
    A(f"v_add_u32_dpp v72, v72, v72 quad_perm:[2,3,0,1] {DPP}")
    A("s_waitcnt lgkmcnt(0)\nv_cmp_ne_u32 vcc, v72, v30\ns_cbranch_vccz T_OK")
    A("s_mov_b64 vcc, 0\ns_cmp_gt_i32 s25, 0\ns_cbranch_scc1 T_ALL")
    A("T_OK:")
    for t in range(4): A(f"v_mov_b32_dpp v{40+t}, v36 quad_perm:[{t},{t},{t},{t}] {DPP}")
    A("v_cvt_pk_bf16_f32 v28, v40, v41\nv_cvt_pk_bf16_f32 v29, v42, v43\nv_mul_f32 v77, v36, v33")
    for i in range(4): A(f"v_mov_b32 v{56+i}, 0")
    for k in range(8): A(f"v_xor_b32 v{80+k}, v16, v{80+k}")
    sel4(44, 28); sel4(48, 29)
    smf(56, 44, 80)
    for k in range(8, 16): A(f"v_xor_b32 v{80+k}, v16, v{80+k}")
    A(f"v_add_f32_dpp v77, v77, v77 quad_perm:[1,0,3,2] {DPP}\ns_nop 0")
    smf(56, 48, 88)
    A(f"v_add_f32_dpp v77, v77, v77 quad_perm:[2,3,0,1] {DPP}")
    A("v_mov_b32 v78, v77\ns_nop 1\nv_permlane16_swap_b32 v77, v78\nv_add_f32 v77, v77, v78")
    A("v_mov_b32 v78, v77\ns_nop 1\nv_permlane32_swap_b32 v77, v78\nv_add_f32 v77, v77, v78")
    tstamp(7)
    if not dbgf: count(1, SPIN)
    A("v_cvt_pk_bf16_f32 v56, v56, v57\nv_cvt_pk_bf16_f32 v57, v58, v59")
    A(f"s_mov_b32 exec_hi, 0\nds_write_b64 v7, v[56:57] offset:{L_PART}\ns_mov_b64 exec, -1")
    A("ds_write2_b32 v6, v76, v77 offset0:0 offset1:8")
    A("s_waitcnt lgkmcnt(0)\ns_barrier")
    for ks in range(4):
        A(f"ds_read_b128 v[{80+4*ks}:{83+4*ks}], v8 offset:{L_PART + 64*ks}")
    A(f"ds_read_b128 v[36:39], v18\nds_read_b128 v[40:43], v13\nds_read_b128 v[44:47], v18 offset:32")
    for ks in range(4):
        A(f"s_waitcnt lgkmcnt({6-ks})")
        A(f"v_mfma_f32_16x16x32_bf16 v[52:55], v[{80+4*ks}:{83+4*ks}], v[{100+4*ks}:{103+4*ks}], {'0' if ks==0 else 'v[52:55]'}")
    A("s_waitcnt lgkmcnt(1)")
    A("v_max3_f32 v40, v40, v41, v42\nv_max3_f32 v41, v36, v37, v38\nv_max3_f32 v40, v40, v43, v39\nv_max_f32 v40, v40, v41")
    for r in range(4): A(f"v_sub_f32 v{36+r}, v{36+r}, v40")
    for r in range(4): A(f"v_exp_f32 v{36+r}, v{36+r}")
    A("s_waitcnt lgkmcnt(0)")
    A("v_mul_f32 v52, v52, v36\nv_mul_f32 v44, v44, v36")
    for r in range(1, 4): A(f"v_fmac_f32 v52, v{52+r}, v{36+r}\nv_fmac_f32 v44, v{44+r}, v{36+r}")
    A("v_mov_b32 v53, v52\nv_mov_b32 v45, v44\ns_nop 0\nv_permlane16_swap_b32 v52, v53\nv_permlane16_swap_b32 v44, v45\nv_add_f32 v64, v52, v53\nv_add_f32 v36, v44, v45\nv_rcp_f32 v36, v36")
    A("s_nop 0\nv_mul_f32 v64, v64, v36\ns_nop 1")
    A(f"v_mov_b32_dpp v66, v64 quad_perm:[1,0,3,2] {DPP}")
    A(f"s_mov_b64 exec, 0x5555\nbuffer_store_dwordx4 v[64:67], v14, {W}, s36 offen\nbuffer_store_dwordx4 v[64:67], v14, {W}, s35 offen {ST}\ns_mov_b64 exec, -1")
    tstamp(2)
    A(f"s_cmp_lg_u32 {WV}, 0\ns_cbranch_scc1 T_END\ns_cmp_lt_u32 s34, 80\ns_cbranch_scc1 T_FIN")
    A("T_END:")
    finish()
    A("T_FIN:\nv_lshrrev_b32 v3, 5, v0")
    srd(12, "out")
    A("s_mov_b32 s70, 0x0504000c\ns_mov_b32 s71, 0x0706010c\ns_mov_b32 s72, 0x0504020c\ns_mov_b32 s73, 0x0706030c")
    A("v_and_b32 v7, 1, v0\nv_bfe_u32 v6, v0, 4, 1\nv_lshl_add_u32 v6, v6, 1, v3\nv_lshl_add_u32 v8, v7, 2, v6\nv_lshlrev_b32 v8, 1, v8")
    A("s_lshl_b32 s27, s34, 4")
    A("v_lshrrev_b32 v6, 1, v0\nv_mul_u32_u24 v6, 2560, v6\nv_lshl_add_u32 v6, v7, 4, v6")
    A(f"s_lshl_b32 s4, s34, 5\ns_add_u32 s4, s4, {WS_FA}\ns_add_u32 s5, s4, {32*2560}\ns_add_u32 s6, s4, {64*2560}\ns_add_u32 s7, s4, {96*2560}")
    A(f"v_not_b32 v43, {TAG}\nv_mov_b32 v47, v43\nv_mov_b32 v51, v43\nv_mov_b32 v55, v43")
    A(f"s_mov_b32 s25, {SPIN}")
    if fpre:
        A("s_and_b32 s10, s33, 31\ns_lshl_b32 s10, s10, 1\ns_lshl_b64 exec, 3, s10")
        A(f"F_PRE:\nbuffer_load_dwordx4 v[40:43], v6, {W}, s4 offen {LD}\ns_waitcnt vmcnt(0)")
        A(f"v_cmp_ne_u32 vcc, {TAG}, v43\ns_cbranch_vccz F_PRE2")
        A(f"s_sleep {pre_sleep}\ns_sub_u32 s25, s25, 1\ns_cmp_lg_u32 s25, 0\ns_cbranch_scc1 F_PRE")
        A(f"F_PRE2:\ns_mov_b64 exec, -1\ns_mov_b32 s25, {SPIN}")
    tstamp(3)
    A("F_POLL:")
    for i in range(4):
        A(f"v_cmp_ne_u32 vcc, {TAG}, v{43+4*i}\ns_cbranch_vccz F_SK{i}")
        A(f"s_mov_b64 exec, vcc\nbuffer_load_dwordx4 v[{40+4*i}:{43+4*i}], v6, {W}, s{4+i} offen {LD}\ns_mov_b64 exec, -1")
        A(f"F_SK{i}:")
    A("s_waitcnt vmcnt(0)")
    for i in range(4): tagchk(38, 43+4*i, i == 0)
    A("v_cmp_ne_u32 vcc, 0, v38\ns_cbranch_vccz F_OK")
    if fa_sleep: A(f"s_sleep {fa_sleep}")
    A("s_sub_u32 s25, s25, 1\ns_cmp_lg_u32 s25, 0\ns_cbranch_scc1 F_POLL")
    A("F_OK:")
    tstamp(4)
    for i in range(4):
        d = 40 + 4*i; o = 60 + 4*i
        A(f"v_perm_b32 v{o}, v{d}, v{d+2}, s70\nv_perm_b32 v{o+1}, v{d}, v{d+2}, s71\nv_perm_b32 v{o+2}, v{d+1}, v{d+2}, s72\nv_perm_b32 v{o+3}, v{d+1}, v{d+2}, s73")
    for i in range(4): A(f"v_pk_add_f32 v[{60+2*i}:{61+2*i}], v[{60+2*i}:{61+2*i}], v[{68+2*i}:{69+2*i}]")
    for i in range(2): A(f"v_pk_add_f32 v[{60+2*i}:{61+2*i}], v[{60+2*i}:{61+2*i}], v[{64+2*i}:{65+2*i}]")
    A("s_nop 1\nv_permlane32_swap_b32 v60, v61\nv_permlane32_swap_b32 v62, v63\nv_add_f32 v60, v60, v61\nv_add_f32 v62, v62, v63")
    A("s_nop 1\nv_permlane16_swap_b32 v60, v62\nv_add_f32 v32, v60, v62")
    for k in (8, 4, 2): A(f"s_nop 1\nv_add_f32_dpp v32, v32, v32 row_ror:{k} {DPP}")
    A("v_cvt_pk_bf16_f32 v32, v32, v32")
    A("s_mov_b32 exec_lo, 0x00030003\ns_mov_b32 exec_hi, 0x00030003")
    A("buffer_store_short v32, v8, s[12:15], s27 offen")
    tstamp(8)
    A("s_cmp_lg_u32 s33, 0\ns_cbranch_scc1 F_NOE")
    A(f"s_mov_b64 exec, 1\nv_mov_b32 v5, 0\nv_mov_b32 v6, {TAG}\nbuffer_store_dword v6, v5, {W}, 0 offen")
    if skew:
        A(f"s_mov_b64 exec, -1\nv_lshlrev_b32 v5, 2, v0\ns_mov_b32 s10, {WS_DBG+0x30000}\nbuffer_load_dword v6, v5, {W}, s10 offen sc1\ns_waitcnt vmcnt(0)")
        A("v_subrev_u32 v6, s80, v6\ns_nop 1\nv_readlane_b32 s10, v6, 0\ns_mov_b32 s11, s10")
        for l in range(1, 8): A(f"v_readlane_b32 s12, v6, {l}\ns_nop 0\ns_max_i32 s10, s10, s12\ns_min_i32 s11, s11, s12")
        A("s_sub_u32 s10, s10, s11\ns_add_u32 s82, s80, s10")
    if amp is not None:
        A(f"s_memrealtime s[76:77]\ns_waitcnt lgkmcnt(0)\ns_sub_u32 s78, s{80+2*amp}, s80\ns_lshl_b32 s78, s78, 3\ns_min_u32 s78, s78, 100000")
        A("AMPL:\ns_memrealtime s[74:75]\ns_waitcnt lgkmcnt(0)\ns_sub_u32 s79, s74, s76\ns_cmp_lt_u32 s79, s78\ns_cbranch_scc1 AMPL")
    A("F_NOE:\ns_mov_b64 exec, -1")
    finish()
    A(".p2align 7\nATT:")
    A("s_cmp_ge_u32 s31, 8\ns_cbranch_scc1 END")
    A("v_lshrrev_b32 v1, 6, v0\nv_and_b32 v0, 63, v0\ns_lshl_b32 s8, s2, 2")
    A(f"v_readfirstlane_b32 {WV}, v1")
    A("v_lshlrev_b32 v62, 4, v0\ns_mov_b32 s10, 0")
    A(f"s_sub_u32 s36, {WV}, 4\ns_add_u32 s8, s8, s36\ns_lshl_b32 s9, s36, 15\ns_bitset0_b32 s8, 9\ns_lshl_b32 s8, s8, {15 if kmap == 0 else 10}\ns_mov_b32 m0, s9")
    if kmap == 2: A("s_lshl_b32 s8, s36, 7\ns_add_u32 s8, s8, s2\ns_sub_u32 s8, s8, 128\ns_lshl_b32 s8, s8, 10")
    A("s_waitcnt lgkmcnt(0)")
    A("s_add_u32 s66, s66, s8\ns_addc_u32 s67, s67, 0")
    def dma_loop(name, upto, win, bar=None):
        A(f"{name}:")
        A("s_lshl_b32 s11, s10, 5\ns_and_b32 s12, s10, 8\ns_and_b32 s11, s11, 0xe0\ns_lshl1_add_u32 s11, s12, s11")
        A("v_xor_b32 v63, s11, v62")
        A(f"s_waitcnt vmcnt({win-1})")
        if bar is not None: A(f"s_cmp_lg_u32 s10, {bar}\ns_cbranch_scc1 {name}_NB\ns_barrier\n{name}_NB:")
        A(f"global_load_lds_dwordx4 v63, s[66:67] {NT}")
        A(f"v_add_u32 v62, {0x400 if kmap == 0 else 0x80000}, v62\ns_add_u32 m0, m0, 0x400\ns_add_u32 s10, s10, 1")
        A(f"s_cmp_lt_u32 s10, {upto}\ns_cbranch_scc1 {name}")
    fstamp(6)
    if b0 is not None: A("s_barrier")
    dma_loop("DMA0", att_w0 + att_win, att_win, bar=att_w0)
    fstamp(8)
    common_loads()
    A(f"s_load_dword {TAG}, s[16:17], 0")
    clear_stamps(6 if dbgf else 10)
    common_setup()
    A("v_and_b32 v2, 31, v0\nv_lshrrev_b32 v3, 5, v0")
    A("v_and_b32 v4, 7, v2\nv_bfe_u32 v5, v2, 3, 1\nv_lshl_add_u32 v4, v4, 1, v5\nv_xor_b32 v4, v4, v3\nv_lshlrev_b32 v4, 4, v4\nv_lshl_add_u32 v4, v2, 10, v4")
    A("v_add_u32 v8, s9, v4")
    for tt in range(1, 8): A(f"v_xor_b32 v{8+tt}, {tt << 5}, v8")
    for tt in range(8):
        A(f"v_xor_b32 v{16+tt}, {tt}, v0\nv_lshlrev_b32 v{16+tt}, 4, v{16+tt}\nv_add_u32 v{16+tt}, {QL + tt*1024}, v{16+tt}")
    A(f"v_lshlrev_b32 v6, 4, v2\nv_add_u32 v28, {QL+8192}, v6\ns_lshl_b32 s11, s36, 2\nv_add_u32 v29, s11, v28")
    A(f"v_lshlrev_b32 v6, 5, v2\nv_add_u32 v31, {QL+9216}, v6\nv_lshl_add_u32 v31, v3, 2, v31\ns_lshl_b32 s11, s36, 3\nv_add_u32 v31, s11, v31")
    A(f"s_lshl_b32 s11, s36, 11\ns_add_u32 s11, s11, {QL}\nv_lshlrev_b32 v32, 4, v0\nv_add_u32 v32, s11, v32")
    unit_idx(34, 35)
    A(f"s_waitcnt lgkmcnt(0)\ns_add_u32 {TAG}, {TAG}, 1")
    def outb_addr():
        srd(4, "wd"); srd(72, "wo")
        A("v_lshrrev_b32 v33, 4, v0\nv_and_b32 v34, 15, v0\nv_mul_u32_u24 v30, 1280, v33\nv_lshl_add_u32 v30, v34, 4, v30")
        A(f"s_and_b32 s31, s31, 3\ns_lshl_b32 s39, s30, 2\ns_add_u32 s39, s39, s31")
        A(f"s_lshl_b32 s14, s36, 8\ns_mul_i32 s26, s34, {16*1280}\ns_add_u32 s26, s26, s14\ns_mul_i32 s27, s39, {32*1280}\ns_add_u32 s27, s27, s14")
    outb_addr()
    wops = []
    for t in range(12):
        r = 80 + 4*t
        wops.append(f"buffer_load_dwordx4 v[{r}:{r+3}], v30, {'s[72:75]' if t < 8 else 's[4:7]'}, s{27 if t < 8 else 26} offen {NT}\ns_add_u32 s{27 if t < 8 else 26}, s{27 if t < 8 else 26}, 5120")
    fstamp(7)
    dma_loop("DMA2", trig, att_win)
    A("s_barrier")
    if trig < 32: dma_loop("DMA3", 32, att_win)
    stamp(1)
    D = 4
    A("s_waitcnt vmcnt(0)")
    stamp(2)
    for t in range(32): A(f"ds_read_b128 v[{128+4*t}:{131+4*t}], v{8+(t&7)} offset:{(t>>3)*256}")
    fops = wops[:wo_early]
    for _ in range(min(ffn_pre, len(fops))): A(fops.pop(0))
    if prio: A("s_setprio 2")
    A("s_waitcnt lgkmcnt(0)\ns_barrier")
    stamp(3)
    for t in range(D): A(f"ds_read_b128 v[{64+4*t}:{67+4*t}], v{16+t}")
    for t in range(32):
        A(f"s_waitcnt lgkmcnt({min(D-1, 31-t)})")
        if t == 31: A("s_barrier")
        a_ = 64 + 4*(t % D)
        A(f"v_mfma_f32_32x32x16_bf16 v[40:55], v[{128+4*t}:{131+4*t}], v[{a_}:{a_+3}], {'0' if t==0 else 'v[40:55]'}")
        if t + D < 32: A(f"ds_read_b128 v[{a_}:{a_+3}], v{16+((t+D)&7)} offset:{((t+D)>>3)*8192}")
        if t % ffn_gap == ffn_gap - 1 and fops: A(fops.pop(0))
    assert not fops
    A("s_nop 11")
    stamp(4)
    A("v_max3_f32 v56, v40, v41, v42\nv_max3_f32 v57, v43, v44, v45\nv_max3_f32 v58, v46, v47, v48\nv_max3_f32 v59, v49, v50, v51")
    A("v_max3_f32 v56, v56, v52, v53\nv_max3_f32 v57, v57, v54, v55\nv_max3_f32 v56, v56, v57, v58\nv_max_f32 v56, v56, v59")
    A("v_mov_b32 v57, v56\ns_nop 1\nv_permlane32_swap_b32 v56, v57\nv_max_f32 v56, v56, v57")
    A("v_ceil_f32 v36, v56\nds_write_b32 v29, v36")
    for i in range(8): A(f"v_pk_add_f32 v[{40+2*i}:{41+2*i}], v[{40+2*i}:{41+2*i}], v[36:37] op_sel_hi:[1,0] neg_lo:[0,1] neg_hi:[0,1]")
    A("s_waitcnt lgkmcnt(0)\ns_barrier")
    A("ds_read_b128 v[56:59], v28")
    for r in range(10): A(f"v_exp_f32 v{40+r}, v{40+r}")
    for i in range(4): A(f"v_cvt_pk_bf16_f32 v{64+i}, v{40+2*i}, v{41+2*i}")
    A("s_waitcnt lgkmcnt(0)")
    A("v_max3_f32 v56, v56, v57, v58\nv_exp_f32 v50, v50\nv_max_f32 v60, v56, v59\nv_exp_f32 v51, v51\nv_sub_f32 v36, v60, v36\nv_exp_f32 v52, v52")
    A("v_cvt_u32_f32 v57, v36\nv_exp_f32 v53, v53\nv_min_u32 v57, 0xff, v57\nv_exp_f32 v54, v54\nv_mul_u32_u24 v57, 0x800080, v57\nv_exp_f32 v55, v55")
    for i in range(4): A(f"v_pk_sub_u16 v{64+i}, v{64+i}, v57 clamp")
    A("ds_write_b128 v32, v[64:67]")
    for i in range(4, 8): A(f"v_cvt_pk_bf16_f32 v{64+i}, v{40+2*i}, v{41+2*i}")
    for i in range(4, 8): A(f"v_pk_sub_u16 v{64+i}, v{64+i}, v57 clamp")
    A("ds_write_b128 v32, v[68:71] offset:1024")
    A("s_waitcnt lgkmcnt(0)\ns_barrier")
    if prio: A("s_setprio 0")
    stamp(5)
    for i in range(4): A(f"v_pk_add_f32 v[{40+2*i}:{41+2*i}], v[{40+2*i}:{41+2*i}], v[{48+2*i}:{49+2*i}]")
    A("v_pk_add_f32 v[40:41], v[40:41], v[44:45]\nv_pk_add_f32 v[42:43], v[42:43], v[46:47]\nv_pk_add_f32 v[40:41], v[40:41], v[42:43]\nv_exp_f32 v36, -v36\nv_add_f32 v40, v40, v41\nv_mul_f32 v40, v40, v36")
    A("ds_write_b32 v31, v40")
    A("s_waitcnt lgkmcnt(0)\ns_barrier\ns_barrier")
    A("OUTB:")
    for o_ in wops[wo_early:]: A(o_)
    A("v_mov_b32 v2, v33\nv_mov_b32 v3, v34")
    selectors(3)
    A("s_mov_b32 s70, 0x07060302\ns_mov_b32 s71, 0x0c0c0501\ns_mov_b32 s69, 0x05010c0c")
    A("v_and_b32 v13, 3, v0\nv_and_b32 v15, 12, v3\nv_add_u32 v15, v15, v2\nv_lshlrev_b32 v15, 4, v15\nv_lshl_add_u32 v15, v13, 10, v15")
    A(f"s_lshl_b32 s37, s30, 12\ns_lshl_b32 s14, s31, 8\ns_add_u32 s37, s37, s14\ns_add_u32 s37, s37, {WS_CX}")
    A("v_lshlrev_b32 v19, 5, v3\nv_lshl_add_u32 v19, v2, 4, v19\nv_lshlrev_b32 v4, 4, v2")
    A(f"s_mul_i32 s15, s33, 2560\ns_lshl_b32 s14, s36, 9\ns_add_u32 s15, s15, s14\ns_add_u32 s15, s15, {WS_FA}")
    A(f"s_lshl_b32 s38, s33, 7\ns_add_u32 s38, s38, {WS_HH}")
    for i in (60, 61, 62, 63, 64, 65, 66, 67): A(f"v_mov_b32 v{i}, 0")
    A(f"v_mov_b32 v71, {TAG}")
    A("s_cmp_lt_u32 s34, 108\ns_cselect_b64 s[28:29], -1, 0")
    def hloads():
        A(f"buffer_load_dwordx4 v[184:187], v4, {W}, s12 offen {LD}\nbuffer_load_dwordx4 v[188:191], off, {W}, s12 offset:64 {LD}\ns_waitcnt vmcnt(0)")
        tagchk(31, 185, True); tagchk(31, 187, False)
        A("v_cndmask_b32 v31, 0, v31, s[28:29]")
        tagchk(31, 191, False)
    dual_poll("O_HP", 38, 12, hloads, None, 31, None, 20)
    A("v_cndmask_b32 v184, 0, v184, s[28:29]\nv_cndmask_b32 v186, 0, v186, s[28:29]")
    sel4(44, 184); sel4(48, 186)
    A("s_nop 0")
    smf(64, 44, 112); smf(64, 48, 120)
    tstamp(7)
    def cloads():
        A(f"buffer_load_dwordx4 v[32:35], v15, {W}, s12 offen {LD}\ns_waitcnt vmcnt(0)")
        tagchk(31, 33, True); tagchk(31, 35, False)
    dual_poll("O_CP", 37, 12, cloads, None, 31, None, 60)
    tstamp(1)
    for qp in ("[1,0,3,2]", "[2,3,0,1]"):
        A(f"v_add_f32_dpp v32, v32, v32 quad_perm:{qp} {DPP}\nv_add_f32_dpp v34, v34, v34 quad_perm:{qp} {DPP}\ns_nop 0")
    A("v_cvt_pk_bf16_f32 v32, v32, v34\ns_nop 1")
    for U in range(4): A(f"v_mov_b32_dpp v{28+U}, v32 row_newbcast:{4*U} {DPP}")
    for U in range(4): sel4(40+4*U, 28+U)
    for U in range(4): smf(60, 40+4*U, 80+8*U)
    A("v_pk_mul_f32 v[64:65], v[64:65], v[188:189] op_sel:[0,1] op_sel_hi:[1,1]\nv_pk_mul_f32 v[66:67], v[66:67], v[188:189] op_sel:[0,1] op_sel_hi:[1,1]")
    A("s_nop 5")
    A("v_pk_fma_f32 v[60:61], v[60:61], v[188:189], v[64:65] op_sel_hi:[1,0,1]\nv_pk_fma_f32 v[62:63], v[62:63], v[188:189], v[66:67] op_sel_hi:[1,0,1]")
    A("v_perm_b32 v68, v61, v60, s70\nv_perm_b32 v69, v63, v62, s70\nv_perm_b32 v38, v61, v60, s71\nv_perm_b32 v70, v63, v62, s69\nv_or_b32 v70, v70, v38")
    A(f"s_mov_b32 exec_hi, 0\nbuffer_store_dwordx4 v[68:71], v19, {W}, s15 offen {ST}\ns_mov_b64 exec, -1")
    tstamp(8)
    finish()
    A("SIDE:")
    A("v_lshlrev_b32 v62, 4, v0")
    A(f"s_lshl_b32 s9, {WV}, 12\ns_add_u32 s9, s9, {WS_QA}\ns_add_u32 s10, s9, 16384\ns_add_u32 s11, s9, 32768")
    A("v_and_b32 v2, 31, v0\nv_lshrrev_b32 v3, 5, v0\nv_and_b32 v5, 7, v0\nv_xor_b32 v4, v3, v5\nv_lshlrev_b32 v4, 4, v4\nv_lshl_add_u32 v4, v2, 10, v4")
    A(f"s_lshl_b32 s8, {WV}, 7\ns_add_u32 s8, s8, {QL}\nv_add_u32 v4, s8, v4")
    for q_ in range(1, 4): A(f"v_xor_b32 v{4+q_}, {q_ << 5}, v4")
    A("v_bfe_u32 v8, v0, 2, 3\nv_bfe_u32 v9, v0, 1, 1\nv_lshlrev_b32 v10, 1, v8\nv_xor_b32 v9, v9, v10\nv_lshlrev_b32 v9, 4, v9")
    A("v_lshl_add_u32 v8, v3, 4, v8\nv_lshl_add_u32 v9, v8, 10, v9\nv_and_b32 v10, 1, v0\nv_lshl_add_u32 v9, v10, 3, v9")
    A(f"s_lshl_b32 s12, {WV}, 8\nv_add_u32 v24, s12, v9\nv_add_u32 v25, 0x10000, v24")
    A("v_bfe_u32 v2, v0, 3, 1\nv_bfe_u32 v8, v0, 2, 1\nv_lshl_add_u32 v2, v8, 1, v2\nv_lshrrev_b32 v8, 4, v0\nv_lshl_add_u32 v2, v8, 2, v2\nv_bfe_u32 v8, v0, 1, 1\nv_lshl_add_u32 v2, v8, 4, v2")
    A("v_cmp_ne_u32 s[38:39], 0, v8")
    A(f"v_and_b32 v8, 15, v0\nv_add_u32 v38, {TAG}, v8\ns_mov_b32 s12, 0x9e3779b1\nv_mul_lo_u32 v38, v38, s12")
    A(f"v_lshlrev_b32 v35, 4, v2\nv_add_u32 v36, {QL+8192}, v35\nv_lshlrev_b32 v9, 5, v2\nv_add_u32 v37, {QL+9216}, v9")
    A(f"v_bfe_u32 v9, v0, 4, 1\nv_lshl_add_u32 v9, v9, 5, v8\nv_lshl_add_u32 v9, v3, 6, v9\nv_lshlrev_b32 v9, 4, v9\nv_add_u32 v33, {QL}, v9")
    A("v_lshrrev_b32 v9, 4, v0\nv_lshlrev_b32 v9, 19, v9\nv_lshl_add_u32 v34, v8, 4, v9")
    A(f"s_lshl_b32 s13, {WV}, 15\ns_lshl_b32 s12, s33, 8\ns_add_u32 s13, s13, s12\ns_add_u32 s13, s13, {WS_OP}")
    if st_mode == 1: A(f"s_lshl_b32 s14, {WV}, 9\ns_lshl_b32 s12, s33, 11\ns_add_u32 s14, s14, s12\ns_add_u32 s14, s14, {WS_ST}")
    elif st_mode == 2: A(f"v_and_b32 v35, 7, v2\nv_lshlrev_b32 v35, 8, v35\nv_lshrrev_b32 v9, 3, v2\nv_lshl_add_u32 v35, v9, 4, v35\ns_lshl_b32 s14, {WV}, 6\ns_lshl_b32 s12, s33, 11\ns_add_u32 s14, s14, s12\ns_add_u32 s14, s14, {WS_ST}")
    else: A(f"v_lshlrev_b32 v35, 13, v2\ns_lshl_b32 s14, {WV}, 11\ns_lshl_b32 s12, s33, 4\ns_add_u32 s14, s14, s12\ns_add_u32 s14, s14, {WS_ST}")
    A(f"v_lshlrev_b32 v39, 2, v0\ns_lshl_b32 s15, s33, 7\ns_add_u32 s15, s15, {WS_HB}\nv_cmp_lt_u32 vcc, 0, v0\ns_cmp_lg_u32 {WV}, {lwave}\ns_cselect_b64 vcc, -1, vcc\nv_cndmask_b32 v39, v39, 2.0, vcc")
    A("s_waitcnt vmcnt(0)\ns_barrier")
    tstamp(2)
    A(f"s_mov_b32 s25, {SPIN}")
    def qld(q_):
        for ty in range(3):
            r = 200 + 12*q_ + 4*ty
            A(f"buffer_load_dwordx4 v[{r}:{r+3}], v62, {W}, s{9+ty} offen offset:{q_*1024} {LD}")
    def qwr(q_, base):
        for ty in range(3):
            r = 200 + 12*q_ + 4*ty
            if base is not None: A(f"s_waitcnt vmcnt({base - ty})")
            tagchk(28+q_, r+3, ty == 0)
            if ty < 2: A(f"ds_write_b96 v{4+q_}, v[{r}:{r+2}] offset:{ty*512}")
            else: A(f"ds_write2_b32 v{4+q_}, v{r}, v{r+1} offset0:3 offset1:131")
    for q_ in range(4): qld(q_)
    for q_ in range(4): qwr(q_, 11 - 3*q_)
    A("S_QRT:")
    A("v_or3_b32 v27, v28, v29, v30\nv_or_b32 v27, v27, v31\nv_cmp_ne_u32 vcc, 0, v27\ns_cbranch_vccz S_QOK")
    A("s_waitcnt lgkmcnt(0)")
    for q_ in range(4):
        A(f"v_cmp_ne_u32 vcc, 0, v{28+q_}\ns_cbranch_vccz S_QA{q_}")
        qld(q_)
        A(f"S_QA{q_}:")
    A("s_waitcnt vmcnt(0)")
    for q_ in range(4):
        A(f"v_cmp_ne_u32 vcc, 0, v{28+q_}\ns_cbranch_vccz S_QB{q_}")
        qwr(q_, None)
        A(f"S_QB{q_}:")
    A("s_sub_u32 s25, s25, 1\ns_cmp_lg_u32 s25, 0\ns_cbranch_scc1 S_QRT")
    A("S_QOK:\ns_waitcnt lgkmcnt(0)")
    count(1, SPIN+1)
    stamp(3)
    A("s_barrier")
    for f in range(32):
        if f == nb3:
            stamp(4)
            A("s_barrier\ns_barrier")
            A(f"ds_read_b128 v[56:59], v36\nv_mov_b32 v63, {TAG}")
        hi, T, lo = f >> 4, (f >> 1) & 7, f & 1
        if lo == 0: A(f"v_xor_b32 v26, {(2*T) << 4}, v{24+hi}\nv_xor_b32 v27, {((2*T) ^ 1) << 4}, v{24+hi}")
        for sec in range(2):
            d = 128 + 4*f + 2*sec
            A(f"ds_read_b64_tr_b16 v[{d}:{d+1}], v{26+sec} offset:{sec*8192 + lo*32768}")
    A("s_waitcnt lgkmcnt(0)")
    A("v_max3_f32 v56, v56, v57, v58\nv_max_f32 v60, v56, v59")
    if prio: A("s_setprio 2")
    A("s_barrier")
    stamp(5)
    for hh in range(2):
        for ks in range(4):
            r = 64 + 16*hh + 4*ks
            A(f"ds_read_b128 v[{r}:{r+3}], v33 offset:{ks*2048 + hh*256}")
    def oreg(hh, T):
        if hh == 0: return 96 + 4*T
        return 8 + 4*T if T < 4 else 64 + 4*(T-4)
    stg = lambda hh, r: (40 if hh == 0 else 96) + 4*r
    sm = lambda hh, r: (4 if hh == 0 else 28) + r
    slot = [0]; wr = {}
    def emit(txt, n=1):
        A(txt); slot[0] += n
    Q = []
    mslot = {}
    def kops(hh, k):
        o_ = [f"v_cvt_pk_bf16_f32 v{stg(hh,r)+k}, v{oreg(hh,2*k)+r}, v{oreg(hh,2*k+1)+r}" for r in range(4)]
        o_ += [f"v_xor_b32 v{stg(hh,r)+k}, v38, v{stg(hh,r)+k}" for r in range(4)]
        return o_
    def sts(hh): return [f"s_add_u32 s11, s13, {(16*hh + r)*131072}\nbuffer_store_dwordx4 v[{stg(hh,r)}:{stg(hh,r)+3}], v34, {W}, s11 offen {ST}" for r in range(4)]
    def add3(hh): return [f"v_add3_u32 v{sm(hh,r)}, v{stg(hh,r)}, v{stg(hh,r)+1}, v{stg(hh,r)+2}" for r in range(4)]
    def addl(hh): return [f"v_add_u32 v{sm(hh,r)}, v{sm(hh,r)}, v{stg(hh,r)+3}" for r in range(4)]
    def tree(b_): return [f"v_add_u32_dpp v{b_}, v{b_}, v{b_} row_ror:8 row_mask:0xf bank_mask:0x3", f"v_add_u32_dpp v{b_+2}, v{b_+2}, v{b_+2} row_ror:8 row_mask:0xf bank_mask:0x3",
                          f"v_add_u32_dpp v{b_}, v{b_+1}, v{b_+1} row_ror:8 row_mask:0xf bank_mask:0xc", f"v_add_u32_dpp v{b_+2}, v{b_+3}, v{b_+3} row_ror:8 row_mask:0xf bank_mask:0xc", "s_nop 0",
                          f"v_add_u32_dpp v{b_}, v{b_}, v{b_} row_half_mirror row_mask:0xf bank_mask:0x5", f"v_add_u32_dpp v{b_}, v{b_+2}, v{b_+2} row_half_mirror row_mask:0xf bank_mask:0xa", "s_nop 1",
                          f"v_add_u32_dpp v{b_}, v{b_}, v{b_} quad_perm:[2,3,0,1] {DPP}"]
    lsum = ["s_waitcnt lgkmcnt(0)", "v_pk_add_f32 v[112:113], v[112:113], v[114:115]", "v_pk_add_f32 v[116:117], v[116:117], v[118:119]", "v_pk_add_f32 v[112:113], v[112:113], v[116:117]", "v_add_f32 v61, v112, v113"]
    hi_q = []
    for hh in range(2):
        for k in range(4):
            hi_q += [(32*hh + 8*k + 7, t_) for t_ in kops(hh, k)]
            if k == 3 and hh == 1: hi_q += [(None, t_) for t_ in sts(hh)]
    lo_q = [("after", 24, t_) for t_ in add3(0)] + [("after", 32, t_) for t_ in addl(0) + tree(4) + lsum] + [("after", 56, t_) for t_ in add3(1)]
    done_hi = [0]; st0 = sts(0)
    def fill(cap):
        for _ in range(cap):
            if hi_q and (hi_q[0][0] is None or (hi_q[0][0] in mslot and slot[0] - mslot[hi_q[0][0]] > 8)):
                t_ = hi_q.pop(0)[1]; emit(t_, t_.count("\n") + 1); done_hi[0] += 1
            elif lo_q and done_hi[0] >= lo_q[0][1]:
                emit(lo_q.pop(0)[2])
            elif hi_q and hi_q[0][0] in mslot: emit("s_nop 0")
    for m in range(64):
        hh, T, ks = m >> 5, (m >> 2) & 7, m & 3
        if m < 4: emit(f"s_waitcnt lgkmcnt({7-ks})")
        if m == 32:
            assert done_hi[0] >= 20
            emit("s_waitcnt lgkmcnt(0)\ns_barrier\nds_read_b128 v[112:115], v37\nds_read_b128 v[116:119], v37 offset:16", 4)
        f = ((ks >> 1) << 4) | (T << 1) | (ks & 1)
        o = oreg(hh, T); a = 64 + 16*hh + 4*ks
        mslot[m] = slot[0]
        emit(f"v_mfma_f32_16x16x32_bf16 v[{o}:{o+3}], v[{a}:{a+3}], v[{128+4*f}:{131+4*f}], {'0' if ks==0 else 'v[%d:%d]'%(o,o+3)}")
        if m >= 37 and (m - 37) % st_gap == 0 and st0:
            assert done_hi[0] >= 32
            emit(st0.pop(0), 2)
        else: fill(gapcap)
    stamp(6)
    while hi_q:
        fill(1)
    stamp(7)
    for x_ in lo_q: A(x_[2])
    for t_ in addl(1) + tree(28): A(t_)
    A("v_cndmask_b32 v4, v4, v28, s[38:39]\ns_nop 1")
    A(f"v_add_u32_dpp v62, v4, v4 quad_perm:[1,0,3,2] {DPP}")
    A("s_mov_b32 exec_lo, 0x55555555\ns_mov_b32 exec_hi, 0x55555555")
    A(f"buffer_store_dwordx4 v[60:63], v35, {W}, s14 offen {ST}")
    A("s_mov_b64 exec, -1")
    if hint_at == 65: A("s_waitcnt vmcnt(0)")
    if hint_at >= 64: A(f"buffer_store_dword v63, v39, {W}, s15 offen")
    if prio: A("s_setprio 0")
    stamp(8)
    A("s_barrier")
    A(f"s_cmp_lg_u32 {WV}, 0\ns_cbranch_scc1 S_END")
    unit_idx(34, 35)
    A("s_mov_b32 s36, 4")
    outb_addr()
    for o_ in wops[:wo_early]: A(o_)
    A("s_branch OUTB")
    A("S_END:")
    finish()
    if stamps:
        A("DUMP:\ns_waitcnt vmcnt(0)")
        stamp(9)
        A("s_waitcnt lgkmcnt(0)")
        for i in range(10): A(f"v_mov_b32 v{8+i}, s{80+2*i}")
        A(f"s_lshl_b32 s8, s2, 3\ns_add_u32 s8, s8, {WV}\ns_lshl_b32 s8, s8, 6\ns_add_u32 s8, s8, {WS_DBG}")
        A("s_getreg_b32 s9, hwreg(HW_REG_HW_ID)\nv_mov_b32 v18, s9\nv_mov_b32 v19, 0")
        A("v_mov_b32 v5, 0\ns_mov_b64 exec, 1")
        A(f"buffer_store_dwordx4 v[8:11], v5, {W}, s8 offen\nbuffer_store_dwordx4 v[12:15], v5, {W}, s8 offen offset:16\nbuffer_store_dwordx4 v[16:19], v5, {W}, s8 offen offset:32")
    A("END:\ns_endpgm")
    hdr = open("gated_mix__compressed_kv_cla__geglu_ffn__decode.s.ref").read().split("; Override")[0]
    return hdr + "; @launch grid=(256,1,1) block=(512,1,1) lds=163840\n" + '.amdgcn_target "amdgcn-amd-amdhsa--gfx950"\n.text\n' + A.text() \
        + ".fill 2048, 4, 0xbf810000\n" + '.section .rodata,"a"\n.p2align 6\n' + kdesc(KN, 256)

if __name__ == "__main__":
    kw = eval("dict(%s)" % (sys.argv[2] if len(sys.argv) > 2 else ""))
    open(sys.argv[1], "w").write(gen(**kw))
```
